```python
import torch

def _softmax(x, axis=-1):
    return torch.softmax(x, dim=axis)
def _gelu(x):
    return torch.nn.functional.gelu(x, approximate="tanh")
def _silu(x):
    return torch.nn.functional.silu(x)
def _sigmoid(x):
    return torch.sigmoid(x)
def _layernorm(x, axis=-1, eps=1e-5):
    m = x.mean(dim=axis, keepdim=True)
    v = x.var(dim=axis, keepdim=True, unbiased=False)
    return (x - m) / torch.sqrt(v + eps)
def _scatter_add(tgt, idx, src, axis=0):
    return tgt.clone().index_add_(axis, idx, src)
def _segment_sum(src, seg, n):
    out = torch.zeros((n,) + src.shape[1:], dtype=src.dtype)
    return out.index_add_(0, seg, src)
def _pad(x, pw):
    flat = tuple(v for pair in reversed(pw) for v in pair)
    return torch.nn.functional.pad(x, flat)

kernel_name = 'interleave_layers__gqa_block_cached__sliding_block_cached__decode'

def setup_inputs():

    _w = (lambda a: (lambda t: t.to(torch.bfloat16) if t.is_floating_point() else t)(torch.as_tensor(a)))
    def _A_setup():
        B, Sq, D = 1, 1, 448
        Hq, Hkv, Sk, Dh = 16, 8, 16384, 256
        assert Hq % Hkv == 0, (Hq, Hkv)
        return {
            "x": _w((lambda *s: torch.randn(*s, dtype=torch.bfloat16) * 0.1)(B, Sq, D)),
            "k_cache": _w((lambda *s: torch.randn(*s, dtype=torch.bfloat16) * 0.8)(B, Hkv, Sk, Dh)),
            "v_cache": _w((lambda *s: torch.randn(*s, dtype=torch.bfloat16) * 3.2)(B, Hkv, Sk, Dh)),
            "wq": _w((lambda *s: torch.randn(*s, dtype=torch.bfloat16) * 0.8)(D, Hq * Dh) * (D ** -0.5)),
            "wo": _w((lambda *s: torch.randn(*s, dtype=torch.bfloat16) * 3.2)(Hq * Dh, D) * ((Hq * Dh) ** -0.5)),
        }
    _A_in = _A_setup()

    def _B_setup():
        B, Sq, D = 1, 1, 448
        Hq, Hkv, Sk, Dh = 16, 8, 16384, 256
        assert Hq % Hkv == 0, (Hq, Hkv)
        return {
            "x": _w((lambda *s: torch.randn(*s, dtype=torch.bfloat16) * 0.1)(B, Sq, D)),
            "k_cache": _w((lambda *s: torch.randn(*s, dtype=torch.bfloat16) * 1.6)(B, Hkv, Sk, Dh)),
            "v_cache": _w((lambda *s: torch.randn(*s, dtype=torch.bfloat16) * 1.6)(B, Hkv, Sk, Dh)),
            "wq": _w((lambda *s: torch.randn(*s, dtype=torch.bfloat16) * 1.6)(D, Hq * Dh) * (D ** -0.5)),
            "wo": _w((lambda *s: torch.randn(*s, dtype=torch.bfloat16) * 1.6)(Hq * Dh, D) * ((Hq * Dh) ** -0.5)),
        }
    _B_in = _B_setup()

    return {
        "A_x": _A_in["x"],
        "A_k_cache": _A_in["k_cache"],
        "A_v_cache": _A_in["v_cache"],
        "A_wq": _A_in["wq"],
        "A_wo": _A_in["wo"],
        "B_x": _B_in["x"],
        "B_k_cache": _B_in["k_cache"],
        "B_v_cache": _B_in["v_cache"],
        "B_wq": _B_in["wq"],
        "B_wo": _B_in["wo"],
    }

def reference(A_x, A_k_cache, A_v_cache, A_wq, A_wo, B_x, B_k_cache, B_v_cache, B_wq, B_wo):
    def _A_ref(x, k_cache, v_cache, wq, wo):
        B, Sq, D = x.shape
        Hq, Dh = 16, 256
        Hkv = k_cache.shape[1]
        rep = Hq // Hkv
        q = (lambda x, *d: x.permute(*d))((x @ wq).reshape(B, Sq, Hq, Dh), 0, 2, 1, 3)
        k = (lambda x, n, axis: torch.repeat_interleave(x, n, dim=axis))(k_cache, rep, axis=1)
        v = (lambda x, n, axis: torch.repeat_interleave(x, n, dim=axis))(v_cache, rep, axis=1)
        scores = torch.einsum("bhqd,bhkd->bhqk", q, k) * (Dh ** -0.5)
        p = _softmax(scores, axis=-1)
        o = torch.einsum("bhqk,bhkd->bhqd", p, v)
        return (lambda x, *d: x.permute(*d))(o, 0, 2, 1, 3).reshape(B, Sq, Hq * Dh) @ wo

    def _B_ref(x, k_cache, v_cache, wq, wo):
        B, Sq, D = x.shape
        Hq, Dh = 16, 256
        Hkv, Sk = k_cache.shape[1], k_cache.shape[2]
        W = min(4096, max(256, Sk // 4))
        rep = Hq // Hkv
        q = (lambda x, *d: x.permute(*d))((x @ wq).reshape(B, Sq, Hq, Dh), 0, 2, 1, 3)
        k = (lambda x, n, axis: torch.repeat_interleave(x, n, dim=axis))(k_cache[:, :, Sk - W:, :], rep, axis=1)
        v = (lambda x, n, axis: torch.repeat_interleave(x, n, dim=axis))(v_cache[:, :, Sk - W:, :], rep, axis=1)
        scores = torch.einsum("bhqd,bhkd->bhqk", q, k) * (Dh ** -0.5)
        p = _softmax(scores, axis=-1)
        o = torch.einsum("bhqk,bhkd->bhqd", p, v)
        return (lambda x, *d: x.permute(*d))(o, 0, 2, 1, 3).reshape(B, Sq, Hq * Dh) @ wo

    x = A_x
    x = x + _A_ref(_layernorm(x, axis=-1), A_k_cache, A_v_cache, A_wq, A_wo)
    x = x + _B_ref(_layernorm(x, axis=-1), B_k_cache, B_v_cache, B_wq, B_wo)
    x = x + _A_ref(_layernorm(x, axis=-1), A_k_cache, A_v_cache, A_wq, A_wo)
    x = x + _B_ref(_layernorm(x, axis=-1), B_k_cache, B_v_cache, B_wq, B_wo)
    return x
```

```python
NAME = "interleave_layers__gqa_block_cached__sliding_block_cached__decode"
HEADER = open("cdna_kernels/" + NAME + ".s.ref").read().split("; Override launch geometry")[0]

class Asm:
    def __init__(self):
        self.lines = []
        self.uid = 0
    def __call__(self, s):
        for l in s.strip("\n").split("\n"):
            self.lines.append("    " + l.strip())
    def label(self, name):
        self.lines.append(name + ":")
    def newlabel(self, p="L"):
        self.uid += 1
        return f".{p}{self.uid}"
    def comment(self, s):
        self.lines.append("    ; " + s)
    def text(self):
        return "\n".join(self.lines) + "\n"

def reg(i, n=1):
    if i < 256:
        assert i + n <= 256
        return f"v{i}" if n == 1 else f"v[{i}:{i+n-1}]"
    j = i - 256
    assert j + n <= 256
    return f"a{j}" if n == 1 else f"a[{j}:{j+n-1}]"

def wrap(body, grid=256, block=256, lds=163840, nvgpr=512, accum=256, sgpr=102):
    s = HEADER
    s += f"; @launch grid=({grid},1,1) block=({block},1,1) lds={lds}\n"
    s += f""".amdgcn_target "amdgcn-amd-amdhsa--gfx950"
.text
.globl {NAME}_kernel
.p2align 8
.type {NAME}_kernel,@function
{NAME}_kernel:
"""
    s += body
    s += f""".section .rodata,"a"
.p2align 6
.amdhsa_kernel {NAME}_kernel
  .amdhsa_next_free_vgpr {nvgpr}
  .amdhsa_next_free_sgpr {sgpr}
  .amdhsa_accum_offset {accum}
  .amdhsa_group_segment_fixed_size 0
  .amdhsa_kernarg_size 104
  .amdhsa_user_sgpr_count 2
  .amdhsa_user_sgpr_kernarg_segment_ptr 1
  .amdhsa_system_sgpr_workgroup_id_x 1
.end_amdhsa_kernel
"""
    return s
```

```python
import sys
from asmlib import *

REC = 0
LAM = 0x200000
YX  = 0x210000
XS  = 0x310000
QS  = 0x320000
CLEAN_TOTAL = 0x340000
CLEAN_PER_WG = CLEAN_TOTAL // 256
assert CLEAN_PER_WG == 13 * 1024
STAMP = 0x400000
WS_SIZE = 0x800000
L_KB = 0
L_VX = 65536
L_CMB = 131072
L_ML = L_CMB + 8192
L_Q = L_ML + 256
L_XN = L_Q + 4096
L_YP = L_XN + 4096
L_QP = L_YP + 512
LDS_TOTAL = 163840
assert L_QP + 256 <= LDS_TOTAL
SCALE = 0.0625 * 1.4426950408889634
import struct
def f2u(x): return struct.unpack("<I", struct.pack("<f", x))[0]

sWAVE, sG, sC = "s3", "s4", "s5"
KA, VA, KBs, VBs, WS, WQ, WO, XI, DBG = "s[8:11]", "s[12:15]", "s[16:19]", "s[20:23]", "s[24:27]", "s[28:31]", "s[32:35]", "s[36:39]", "s[40:43]"
sAoff, sBoff, sT, sSC, sFAST, sL = "s54", "s55", "s56", "s57", "s58", "s59"
sT2, sT3, sSPIN, sLDSW = "s60", "s61", "s62", "s63"
RET = "s[96:97]"
EXS = "s[98:99]"
sT4, sT5 = "s100", "s101"
sSELLO, sSELHI = "s6", "s7"

class K:
    def __init__(self, stamps=False, nt="nt"):
        self.a = Asm()
        self.stamps = stamps
        self.nst = 0
        self.nt = nt
        self.vm = 0
    def stamp(self):
        if not self.stamps: return
        i = self.nst; self.nst += 1
        assert i < 16
        self.a(f"s_memrealtime s[{64+2*i}:{65+2*i}]\ns_waitcnt lgkmcnt(0)")
    def vmem(self, ins):
        self.a(ins); self.vm += 1
        return self.vm
    def waitvm(self, tok):
        n = self.vm - tok
        if n <= 63: self.a(f"s_waitcnt vmcnt({n})")
    def call(self, name):
        self.a(f"s_call_b64 {RET}, {name}")
    def ret(self):
        self.a(f"s_setpc_b64 {RET}")

    def tile_soff(self, base, t):
        self.a(f"s_add_u32 {sT}, {base}, {t * 1048576}")
    def loadK_reg(self, t):
        self.tile_soff(sAoff, t)
        for cc in range(8):
            tok = self.vmem(f"buffer_load_dwordx4 a[{t*32+cc*4}:{t*32+cc*4+3}], v2, {KA}, {sT} offen offset:{cc*64} {self.nt}")
        return tok
    def loadV_reg(self, t):
        self.tile_soff(sAoff, t)
        for n in range(8):
            b = 64 + t * 32 + n * 4
            tok = self.vmem(f"buffer_load_dwordx4 v[{b}:{b+3}], v3, {VA}, {sT} offen offset:{(n>>1)*512+(n&1)*256} {self.nt}")
        return tok
    def dma(self, kind, srd, base, t, ldsoff):
        self.tile_soff(base, t)
        for n in range(8):
            imm = n * 64 if kind == "K" else (n >> 1) * 512 + (n & 1) * 256
            self.a(f"s_add_u32 m0, {sLDSW}, {ldsoff + n*1024 - imm}\ns_nop 0")
            tok = self.vmem(f"buffer_load_dwordx4 {'v2' if kind=='K' else 'v3'}, {srd}, {sT} offen offset:{imm} {self.nt} lds")
        return tok

    def validate(self, regs, tmp):
        a = self.a
        regs = list(regs)
        if len(regs) == 1:
            a(f"v_cmp_eq_u32 vcc, -1, {regs[0]}"); return
        if len(regs) == 2:
            a(f"v_max_u32 {tmp}, {regs[0]}, {regs[1]}")
        else:
            a(f"v_max3_u32 {tmp}, {regs[0]}, {regs[1]}, {regs[2]}")
            k = 3
            while k < len(regs):
                if k + 1 < len(regs):
                    a(f"v_max3_u32 {tmp}, {tmp}, {regs[k]}, {regs[k+1]}"); k += 2
                else:
                    a(f"v_max_u32 {tmp}, {tmp}, {regs[k]}"); k += 1
        a(f"v_cmp_eq_u32 vcc, -1, {tmp}")
    def poll(self, loads, regs, tmp):
        a = self.a
        Lp, Ld = a.newlabel("poll"), a.newlabel("pdone")
        a.label(Lp)
        for l in loads: a(l)
        a("s_waitcnt vmcnt(0)")
        self.validate(regs, tmp)
        a(f"""s_cbranch_vccz {Ld}
        s_cmp_eq_u32 {sSPIN}, 0
        s_cbranch_scc1 {Ld}
        s_sub_u32 {sSPIN}, {sSPIN}, 1
        s_branch {Lp}""")
        a.label(Ld)
    def local_store(self, ins):
        a = self.a
        Lf, Ld = a.newlabel("fs"), a.newlabel("fd")
        a(f"s_cmp_eq_u32 {sFAST}, 1\ns_cbranch_scc1 {Lf}\n{ins} sc1\ns_branch {Ld}")
        a.label(Lf); a(ins); a.label(Ld)
    def xgroup_max(self, x, t):
        self.a(f"""v_mov_b32 {t}, {x}
        s_nop 1
        v_permlane16_swap_b32 {x}, {t}
        v_max_f32 {x}, {x}, {t}
        v_mov_b32 {t}, {x}
        s_nop 1
        v_permlane32_swap_b32 {x}, {t}
        v_max_f32 {x}, {x}, {t}""")
    def xgroup_add(self, x, t):
        self.a(f"""v_mov_b32 {t}, {x}
        s_nop 1
        v_permlane16_swap_b32 {x}, {t}
        v_add_f32 {x}, {x}, {t}
        v_mov_b32 {t}, {x}
        s_nop 1
        v_permlane32_swap_b32 {x}, {t}
        v_add_f32 {x}, {x}, {t}""")

    def sub_s4(self):
        a = self.a
        a.label("sub_s4")
        a(f"""s_lshl_b32 {sT}, {sL}, 3
        s_add_u32 {sT}, {sT}, {sG}
        s_lshl_b32 {sT}, {sT}, 10
        s_add_u32 {sT}, {sT}, {QS}""")
        self.poll([f"buffer_load_dwordx4 v[40:43], v1, {WS}, {sT} offen sc1"], ["v40", "v41", "v42", "v43"], "v44")
        a.label("sub_s4b")
        a(f"""s_lshl_b32 {sT}, {sWAVE}, 10
        s_add_u32 {sT}, {sT}, {L_Q}
        v_add_u32 v44, {sT}, v1
        ds_write_b128 v44, v[40:43]
        s_waitcnt lgkmcnt(0)""")
        self.ret()
    def qaddr(self, dst):
        self.a(f"""s_lshl_b32 {sT}, {sWAVE}, 10
        s_add_u32 {sT}, {sT}, {L_Q}
        v_bfe_u32 {dst}, v1, 7, 1
        v_lshlrev_b32 {dst}, 9, {dst}
        v_bfe_u32 v63, v1, 8, 2
        v_lshl_add_u32 {dst}, v63, 4, {dst}
        v_add_u32 {dst}, {sT}, {dst}""")
    def softmax_prep(self, sregs):
        a = self.a
        a(f"v_max3_f32 v56, {sregs[0]}, {sregs[1]}, {sregs[2]}")
        k = 3
        while k < len(sregs):
            if k + 1 < len(sregs):
                a(f"v_max3_f32 v56, v56, {sregs[k]}, {sregs[k+1]}"); k += 2
            else:
                a(f"v_max_f32 v56, v56, {sregs[k]}"); k += 1
        self.xgroup_max("v56", "v58")
        a(f"v_mul_f32 v56, {sSC}, v56\nv_sub_f32 v56, 0, v56\nv_mov_b32 v57, 0")
        for i in range(8): a(f"v_mov_b32 v{40+i}, 0")
    def sub_qka(self):
        a = self.a
        a.label("sub_qka")
        self.qaddr("v62")
        NB = 5
        for cc in range(NB):
            a(f"ds_read_b128 v[{40+4*cc}:{43+4*cc}], v62 offset:{cc*64}")
        for cc in range(8):
            qb = 40 + 4 * (cc % NB)
            issued = min(8, NB + max(0, cc - 0)) if cc > 0 else NB
            issued = min(8, NB + cc)
            issued = min(8, NB + max(0, cc - 1)) if cc >= 1 else NB
            a(f"s_waitcnt lgkmcnt({issued - cc - 1})")
            for t in range(8):
                c = "0" if cc == 0 else f"v[{8+4*t}:{11+4*t}]"
                a(f"v_mfma_f32_16x16x32_bf16 v[{8+4*t}:{11+4*t}], a[{t*32+cc*4}:{t*32+cc*4+3}], v[{qb}:{qb+3}], {c}")
            if cc >= 1 and cc - 1 + NB < 8:
                pb = 40 + 4 * ((cc - 1) % NB)
                a(f"ds_read_b128 v[{pb}:{pb+3}], v62 offset:{(cc-1+NB)*64}")
        a("s_nop 7")
        self.softmax_prep([f"v{8+i}" for i in range(32)])
        self.ret()
    def sub_qkb(self):
        a = self.a
        a.label("sub_qkb")
        self.qaddr("v62")
        a(f"v_add_u32 v61, {sLDSW}, v1")
        def rd(cc):
            b = cc % 3
            a(f"ds_read_b128 v[{40+4*b}:{43+4*b}], v62 offset:{cc*64}")
            a(f"ds_read_b128 v[{8+8*b}:{11+8*b}], v61 offset:{L_KB + cc*1024}")
            a(f"ds_read_b128 v[{12+8*b}:{15+8*b}], v61 offset:{L_KB + 8192 + cc*1024}")
        rd(0); rd(1)
        for cc in range(8):
            if cc + 2 < 8: rd(cc + 2)
            rem = min(8, cc + 3) - cc - 1
            a(f"s_waitcnt lgkmcnt({rem*3})")
            b = cc % 3
            for t in range(2):
                c = "0" if cc == 0 else f"v[{32+4*t}:{35+4*t}]"
                a(f"v_mfma_f32_16x16x32_bf16 v[{32+4*t}:{35+4*t}], v[{8+8*b+4*t}:{11+8*b+4*t}], v[{40+4*b}:{43+4*b}], {c}")
            a("s_nop 3")
        a("s_nop 7")
        self.softmax_prep([f"v{32+i}" for i in range(8)])
        self.ret()
    def pstep(self, s, bb):
        self.a(f"""v_fma_f32 {s}, {s}, {sSC}, v56
        v_exp_f32 {s}, {s}
        s_nop 0
        v_add_f32 v57, v57, {s}
        v_cvt_pk_bf16_f32 {s}, {s}, {s}
        v_and_b32 v{bb}, v4, {s}
        v_and_b32 v{bb+1}, v5, {s}
        v_and_b32 v{bb+2}, v6, {s}
        v_and_b32 v{bb+3}, v7, {s}""")
    def sub_pvreg(self, name, tiles):
        a = self.a
        a.label(name)
        steps = [(t, r) for t in tiles for r in range(4)]
        self.pstep(f"v{8+4*steps[0][0]+steps[0][1]}", 48)
        for k, (t, r) in enumerate(steps):
            bb = 48 + 4 * (k & 1)
            if k + 1 < len(steps):
                t2, r2 = steps[k + 1]
                self.pstep(f"v{8+4*t2+r2}", 48 + 4 * ((k + 1) & 1))
            else:
                a("s_nop 1")
            for hf in range(2):
                vb = 64 + t * 32 + (r * 2 + hf) * 4
                a(f"v_mfma_f32_16x16x32_bf16 v[{40+4*hf}:{43+4*hf}], v[{vb}:{vb+3}], v[{bb}:{bb+3}], v[{40+4*hf}:{43+4*hf}]")
        self.ret()
    def sub_pvlds(self):
        a = self.a
        a.label("sub_pvlds")
        a(f"v_add_u32 v61, {sLDSW}, v1")
        steps = [(t, r) for t in range(2) for r in range(4)]
        def rd(k):
            t, r = steps[k]; b = 8 + 8 * (k % 3)
            for hf in range(2):
                a(f"ds_read_b128 v[{b+4*hf}:{b+4*hf+3}], v61 offset:{L_VX - 32768 + t*8192 + (r*2+hf)*1024}")
        a("v_add_u32 v61, 32768, v61")
        rd(0); rd(1)
        self.pstep("v32", 48)
        for k, (t, r) in enumerate(steps):
            bb = 48 + 4 * (k & 1)
            if k + 1 < 8: self.pstep(f"v{32+k+1}", 48 + 4 * ((k + 1) & 1))
            if k + 2 < 8: rd(k + 2)
            rem = min(8, k + 3) - k - 1
            a(f"s_waitcnt lgkmcnt({rem*2})")
            b = 8 + 8 * (k % 3)
            if k + 1 >= 8: a("s_nop 0")
            for hf in range(2):
                a(f"v_mfma_f32_16x16x32_bf16 v[{40+4*hf}:{43+4*hf}], v[{b+4*hf}:{b+4*hf+3}], v[{bb}:{bb+3}], v[{40+4*hf}:{43+4*hf}]")
        self.ret()
    def sub_ldwo(self):
        a = self.a
        a.label("sub_ldwo")
        a(f"""s_cmp_ge_u32 {sC}, 14
        s_cselect_b32 {sT2}, 1, 0
        s_mul_i32 {sT3}, {sT2}, 14
        s_sub_u32 {sT3}, {sC}, {sT3}
        s_lshl_b32 {sT}, {sG}, 1
        s_add_u32 {sT}, {sT}, {sT2}
        s_lshl_b32 {sT}, {sT}, 2
        s_add_u32 {sT}, {sT}, {sWAVE}
        s_mul_i32 {sT}, {sT}, {64*896}
        s_lshl_b32 {sT3}, {sT3}, 6
        s_add_u32 {sT}, {sT}, {sT3}
        v_bfe_u32 v24, v1, 4, 3              ; u'%8
        v_bfe_u32 v25, v1, 7, 1              ; u'/8
        v_lshl_add_u32 v24, v25, 5, v24      ; row0
        v_mul_u32_u24 v24, 896, v24
        v_bfe_u32 v25, v1, 8, 2              ; ps
        v_lshl_add_u32 v24, v25, 4, v24
        s_add_u32 {sT2}, {sT}, {8*896}
        s_add_u32 {sT3}, {sT}, {16*896}
        s_add_u32 {sT4}, {sT}, {24*896}
        buffer_load_dwordx4 v[8:11], v24, {WO}, {sT} offen
        buffer_load_dwordx4 v[12:15], v24, {WO}, {sT2} offen
        buffer_load_dwordx4 v[16:19], v24, {WO}, {sT3} offen
        buffer_load_dwordx4 v[20:23], v24, {WO}, {sT4} offen""")
        self.ret()
    def perm16(self, src, dst):
        a = self.a
        for p in range(2):
            for k in range(8):
                A = src + p * 8 + k // 2; B = A + 4
                a(f"v_perm_b32 v{dst+p*8+k}, v{B}, v{A}, {sSELLO if k % 2 == 0 else sSELHI}")
    def sub_s0(self):
        a = self.a
        a.label("sub_s0")
        a("s_nop 7")
        self.xgroup_add("v57", "v58")
        a(f"""s_lshl_b32 {sT}, {sWAVE}, 11
        s_add_u32 {sT}, {sT}, {L_CMB}
        v_add_u32 v58, {sT}, v1
        ds_write_b128 v58, v[40:43]
        ds_write_b128 v58, v[44:47] offset:1024
        v_sub_f32 v60, 0, v56
        v_mov_b32 v61, v57
        v_bfe_u32 v59, v1, 7, 1
        v_lshlrev_b32 v59, 5, v59
        s_lshl_b32 {sT}, {sWAVE}, 3
        s_add_u32 {sT}, {sT}, {L_ML}
        v_add_u32 v59, {sT}, v59
        ds_write_b64 v59, v[60:61]
        ; thread T: E=2T -> byte T*8 in each wave buffer ; head = bit 4 of T ((T/2)%16/8)
        v_lshlrev_b32 v58, 3, v0
        v_add_u32 v58, {L_CMB}, v58
        v_bfe_u32 v62, v0, 4, 1
        v_lshlrev_b32 v59, 5, v62
        v_add_u32 v59, {L_ML}, v59
        s_waitcnt lgkmcnt(0)
        s_barrier
        ds_read_b128 v[40:43], v59
        ds_read_b128 v[44:47], v59 offset:16
        ds_read_b64 v[48:49], v58
        ds_read_b64 v[50:51], v58 offset:2048
        ds_read_b64 v[52:53], v58 offset:4096
        ds_read_b64 v[54:55], v58 offset:6144
        v_and_b32 v60, 15, v0
        v_lshlrev_b32 v60, 3, v60            ; (e*4 + rr)*4 = (T&15)*8
        v_lshrrev_b32 v61, 5, v0             ; hf*4+g'
        v_lshl_add_u32 v60, v61, 7, v60
        v_lshl_add_u32 v60, v62, 10, v60
        s_lshl_b32 {sT}, {sL}, 3
        s_add_u32 {sT}, {sT}, {sG}
        s_lshl_b32 {sT2}, {sT}, 8
        s_lshl_b32 {sT}, {sT}, 5
        s_add_u32 {sT}, {sT}, {sC}
        s_lshl_b32 {sT}, {sT}, 11
        s_lshl_b32 {sT3}, {sC}, 2
        s_add_u32 {sT2}, {sT2}, {sT3}
        s_add_u32 {sT2}, {sT2}, {LAM}
        s_waitcnt lgkmcnt(4)
        v_max3_f32 v56, v40, v42, v44
        v_max_f32 v56, v56, v46
        v_sub_f32 v40, v40, v56
        v_sub_f32 v42, v42, v56
        v_sub_f32 v44, v44, v56
        v_sub_f32 v46, v46, v56
        v_exp_f32 v40, v40
        v_exp_f32 v42, v42
        v_exp_f32 v44, v44
        v_exp_f32 v46, v46
        s_nop 0
        v_mul_f32 v57, v40, v41
        v_fmac_f32 v57, v42, v43
        v_fmac_f32 v57, v44, v45
        v_fmac_f32 v57, v46, v47
        v_rcp_f32 v61, v57
        v_log_f32 v57, v57
        s_waitcnt lgkmcnt(0)
        v_mul_f32 v48, v48, v40
        v_mul_f32 v49, v49, v40
        v_fmac_f32 v48, v50, v42
        v_fmac_f32 v49, v51, v42
        v_fmac_f32 v48, v52, v44
        v_fmac_f32 v49, v53, v44
        v_fmac_f32 v48, v54, v46
        v_fmac_f32 v49, v55, v46
        v_mul_f32 v48, v48, v61
        v_mul_f32 v49, v49, v61
        v_add_f32 v57, v57, v56
        v_min_u32 v48, -2, v48
        v_min_u32 v49, -2, v49
        v_min_u32 v57, -2, v57
        v_lshlrev_b32 v62, 7, v62            ; h*128""")
        self.local_store(f"buffer_store_dwordx2 v[48:49], v60, {WS}, {sT} offen")
        Ls = a.newlabel("lam")
        a(f"""v_and_b32 v61, 0xef, v0
        v_cmp_eq_u32 vcc, 0, v61
        s_and_saveexec_b64 {EXS}, vcc
        s_cbranch_execz {Ls}""")
        self.local_store(f"buffer_store_dword v57, v62, {WS}, {sT2} offen")
        a.label(Ls)
        a(f"s_mov_b64 exec, {EXS}")
        self.ret()
    def sub_s1(self):
        a = self.a
        a.label("sub_s1")
        a(f"""s_cmp_ge_u32 {sC}, 14
        s_cselect_b32 {sT2}, 1, 0            ; hh
        s_lshl_b32 {sT}, {sL}, 3
        s_add_u32 {sT}, {sT}, {sG}           ; L*8+g
        s_lshl_b32 {sT3}, {sT}, 8
        s_lshl_b32 {sT4}, {sT2}, 7
        s_add_u32 {sT3}, {sT3}, {sT4}
        s_add_u32 {sT3}, {sT3}, {LAM}
        s_lshl_b32 {sT}, {sT}, 16
        s_lshl_b32 {sT4}, {sT2}, 10
        s_add_u32 {sT}, {sT}, {sT4}
        s_lshl_b32 {sT4}, {sWAVE}, 8
        s_add_u32 {sT}, {sT}, {sT4}
        v_bfe_u32 v62, v1, 8, 2              ; ps
        v_lshlrev_b32 v63, 5, v62
        v_lshlrev_b32 v62, 14, v62           ; ps*8*2048
        v_and_b32 v61, 0xf0, v1              ; u'*16
        v_add_u32 v62, v62, v61
        v_add_u32 v61, 4096, v62
        v_add_u32 v60, 8192, v62
        v_add_u32 v59, 12288, v62""")
        a("s_waitcnt vmcnt(0)")
        self.perm16(8, 24)
        loads = []
        oregs = [8, 12, 16, 20, 40, 44, 48, 52]
        av = ["v62", "v62", "v61", "v61", "v60", "v60", "v59", "v59"]
        for k in range(8):
            loads.append(f"buffer_load_dwordx4 v[{oregs[k]}:{oregs[k]+3}], {av[k]}, {WS}, {sT} offen offset:{(k&1)*2048} sc1")
        loads.append(f"buffer_load_dwordx4 v[4:7], v63, {WS}, {sT3} offen sc1")
        loads.append(f"buffer_load_dwordx2 v[56:57], v63, {WS}, {sT3} offen offset:16 sc1")
        loads.append(f"buffer_load_dwordx2 v[2:3], v63, {WS}, {sT3} offen offset:24 sc1")
        lam = ["v4", "v5", "v6", "v7", "v56", "v57", "v2", "v3"]
        regs = [f"v{o+i}" for o in oregs for i in range(4)] + lam
        self.poll(loads, regs, "v58")
        a(f"""v_max3_f32 v58, v4, v5, v6
        v_max3_f32 v58, v58, v7, v56
        v_max3_f32 v58, v58, v57, v2
        v_max_f32 v58, v58, v3""")
        self.xgroup_max("v58", "v59")
        for r in lam: a(f"v_sub_f32 {r}, {r}, v58")
        for r in lam: a(f"v_exp_f32 {r}, {r}")
        a(f"""s_nop 0
        v_add_f32 v58, v4, v5
        v_add_f32 v59, v6, v7
        v_add_f32 v60, v56, v57
        v_add_f32 v61, v2, v3
        v_add_f32 v58, v58, v59
        v_add_f32 v60, v60, v61
        v_add_f32 v58, v58, v60""")
        for i in range(4): a(f"v_mul_f32 v{8+i}, v{8+i}, v4")
        for k in range(1, 8):
            for i in range(4): a(f"v_fmac_f32 v{8+i}, v{oregs[k]+i}, {lam[k]}")
        for r in ["v58", "v8", "v9", "v10", "v11"]:
            self.xgroup_add(r, "v59")
        a(f"""v_rcp_f32 v58, v58
        s_nop 0
        v_mul_f32 v8, v8, v58
        v_mul_f32 v9, v9, v58
        v_mul_f32 v10, v10, v58
        v_mul_f32 v11, v11, v58
        v_cvt_pk_bf16_f32 v8, v8, v9
        v_cvt_pk_bf16_f32 v9, v10, v11
        s_nop 0""")
        for k in range(8): a(f"v_dot2_f32_bf16 v{40+k}, v{24+k}, v8, 0")
        for k in range(8): a(f"v_dot2_f32_bf16 v{40+k}, v{32+k}, v9, v{40+k}")
        a("s_nop 2")
        for k in range(4):
            a(f"v_add_f32_dpp v{40+k}, v{40+k}, v{40+k} row_ror:8 row_mask:0xf bank_mask:0x3")
            a(f"v_add_f32_dpp v{40+k}, v{44+k}, v{44+k} row_ror:8 row_mask:0xf bank_mask:0xc")
        a("s_nop 1")
        for k in range(2):
            a(f"v_add_f32_dpp v{40+k}, v{40+k}, v{40+k} row_shl:4 row_mask:0xf bank_mask:0x5")
            a(f"v_add_f32_dpp v{40+k}, v{42+k}, v{42+k} row_shr:4 row_mask:0xf bank_mask:0xa")
        a("s_nop 1")
        for k in range(2): a(f"v_add_f32_dpp v{40+k}, v{40+k}, v{40+k} quad_perm:[2,3,0,1] row_mask:0xf bank_mask:0xf")
        a("s_nop 1")
        for k in range(2): a(f"v_add_f32_dpp v{40+k}, v{40+k}, v{40+k} quad_perm:[1,0,3,2] row_mask:0xf bank_mask:0xf")
        a(f"""v_lshrrev_b32 v42, 6, v1
        v_lshlrev_b32 v42, 3, v42
        s_lshl_b32 {sT}, {sWAVE}, 7
        s_add_u32 {sT}, {sT}, {L_YP}
        v_add_u32 v42, {sT}, v42
        ds_write_b64 v42, v[40:41]
        s_waitcnt lgkmcnt(0)
        s_barrier
        s_cmp_lg_u32 {sWAVE}, 0
        s_cbranch_scc1 .Ls1_done
        v_and_b32 v42, 0x70, v1              ; piece*16
        v_add_u32 v43, {L_YP}, v42
        ds_read_b128 v[8:11], v43
        ds_read_b128 v[12:15], v43 offset:128
        ds_read_b128 v[16:19], v43 offset:256
        ds_read_b128 v[20:23], v43 offset:384
        v_lshrrev_b32 v43, 7, v1             ; copy
        v_lshl_add_u32 v42, v43, 15, v42
        s_mul_i32 {sT}, {sG}, 28
        s_add_u32 {sT}, {sT}, {sC}
        s_lshl_b32 {sT}, {sT}, 7
        s_lshl_b32 {sT2}, {sL}, 18
        s_add_u32 {sT}, {sT}, {sT2}
        s_add_u32 {sT}, {sT}, {YX}
        s_waitcnt lgkmcnt(0)""")
        for i in range(4):
            a(f"v_add_f32 v{8+i}, v{8+i}, v{12+i}\nv_add_f32 v{16+i}, v{16+i}, v{20+i}")
        for i in range(4):
            a(f"v_add_f32 v{8+i}, v{8+i}, v{16+i}")
        for i in range(4):
            a(f"v_min_u32 v{8+i}, -2, v{8+i}")
        a(f"buffer_store_dwordx4 v[8:11], v42, {WS}, {sT} offen sc1")
        a.label(".Ls1_done")
        self.consts()
        self.ret()
    def consts(self):
        self.a(f"""v_bfe_u32 v58, v1, 4, 4              ; i
        v_bfe_u32 v59, v1, 8, 2              ; gq
        v_lshlrev_b32 v2, 9, v58
        v_lshl_add_u32 v2, v59, 4, v2
        v_lshlrev_b32 v3, 11, v59
        v_lshl_add_u32 v3, v58, 4, v3
        v_and_b32 v59, 1, v58
        v_lshlrev_b32 v59, 4, v59
        v_mov_b32 v60, 0xffff
        v_lshlrev_b32 v60, v59, v60
        v_bfe_u32 v59, v58, 1, 2             ; (j%8)/2
        v_cmp_eq_u32 vcc, 0, v59
        s_nop 1
        v_cndmask_b32 v4, 0, v60, vcc
        v_cmp_eq_u32 vcc, 1, v59
        s_nop 1
        v_cndmask_b32 v5, 0, v60, vcc
        v_cmp_eq_u32 vcc, 2, v59
        s_nop 1
        v_cndmask_b32 v6, 0, v60, vcc
        v_cmp_eq_u32 vcc, 3, v59
        s_nop 1
        v_cndmask_b32 v7, 0, v60, vcc""")
    def sub_s2(self):
        a = self.a
        a.label("sub_s2")
        a(f"""v_lshrrev_b32 v56, 7, v1             ; hq
        v_mul_u32_u24 v56, 1792, v56
        v_and_b32 v57, 0x70, v1
        v_add_u32 v56, v56, v57
        s_lshl_b32 {sT}, {sL}, 3
        s_add_u32 {sT}, {sT}, {sG}
        s_lshl_b32 {sT}, {sT}, 15
        s_lshl_b32 {sT2}, {sC}, 7
        s_add_u32 {sT}, {sT}, {sT2}
        s_add_u32 {sT}, {sT}, {YX}
        s_add_u32 {sT3}, {sT}, {8*1792}
        v_lshrrev_b32 v42, 1, v57            ; piece*8
        s_lshl_b32 {sT2}, {sC}, 6
        v_add_u32 v42, {sT2}, v42
        buffer_load_dwordx2 v[52:53], v42, {XI}, 0 offen sc1""")
        self.poll([f"buffer_load_dwordx4 v[44:47], v56, {WS}, {sT} offen sc1",
                   f"buffer_load_dwordx4 v[48:51], v56, {WS}, {sT3} offen sc1"],
                  [f"v{44+i}" for i in range(8)], "v58")
        for i in range(4): a(f"v_add_f32 v{44+i}, v{44+i}, v{48+i}")
        a("s_nop 1")
        for i in range(4): a(f"v_add_f32_dpp v{44+i}, v{44+i}, v{44+i} row_ror:8 row_mask:0xf bank_mask:0xf")
        for i in range(4): self.xgroup_add(f"v{44+i}", "v58")
        a(f"""v_cvt_pk_bf16_f32 v44, v44, v45
        v_cvt_pk_bf16_f32 v46, v46, v47
        v_and_b32 v45, 0xffff0000, v44
        v_lshlrev_b32 v44, 16, v44
        v_and_b32 v47, 0xffff0000, v46
        v_lshlrev_b32 v46, 16, v46
        v_lshlrev_b32 v48, 16, v52
        v_and_b32 v49, 0xffff0000, v52
        v_lshlrev_b32 v50, 16, v53
        v_and_b32 v51, 0xffff0000, v53
        v_add_f32 v44, v44, v48
        v_add_f32 v45, v45, v49
        v_add_f32 v46, v46, v50
        v_add_f32 v47, v47, v51
        v_cvt_pk_bf16_f32 v40, v44, v45
        v_cvt_pk_bf16_f32 v41, v46, v47""")
        self.ret()
    def sub_ldwq(self):
        a = self.a
        a.label("sub_ldwq")
        a(f"""v_lshrrev_b32 v24, 1, v0
        v_lshlrev_b32 v24, 14, v24
        v_and_b32 v25, 1, v0
        v_lshl_add_u32 v24, v25, 4, v24
        s_lshl_b32 {sT}, {sG}, 10
        s_lshl_b32 {sT2}, {sC}, 5
        s_add_u32 {sT}, {sT}, {sT2}
        s_add_u32 {sT2}, {sT}, 8192
        s_add_u32 {sT3}, {sT}, {128*16384}
        s_add_u32 {sT4}, {sT3}, 8192
        buffer_load_dwordx4 v[8:11], v24, {WQ}, {sT} offen
        buffer_load_dwordx4 v[12:15], v24, {WQ}, {sT2} offen
        buffer_load_dwordx4 v[16:19], v24, {WQ}, {sT3} offen
        buffer_load_dwordx4 v[20:23], v24, {WQ}, {sT4} offen""")
        self.ret()
    def sub_s3(self):
        a = self.a
        a.label("sub_s3")
        a("s_waitcnt vmcnt(0)")
        self.perm16(8, 24)
        self.poll([f"buffer_load_dwordx4 v[40:43], v1, {XI}, 0 offen sc1"], ["v40", "v41", "v42", "v43"], "v44")
        a.label("sub_s3b")
        for i in range(4):
            a(f"v_lshlrev_b32 v{8+2*i}, 16, v{40+i}\nv_and_b32 v{9+2*i}, 0xffff0000, v{40+i}")
        a(f"""v_readfirstlane_b32 {sT}, v8
        v_mov_b32 v16, 0
        v_mov_b32 v17, 0
        v_cmp_gt_u32 vcc, 896, v1
        s_and_saveexec_b64 {EXS}, vcc""")
        for i in range(8): a(f"v_subrev_f32 v{8+i}, {sT}, v{8+i}")
        a("v_add_f32 v16, v8, v9\nv_mul_f32 v17, v8, v8\nv_fmac_f32 v17, v9, v9")
        for i in range(2, 8): a(f"v_add_f32 v16, v16, v{8+i}\nv_fmac_f32 v17, v{8+i}, v{8+i}")
        a(f"s_mov_b64 exec, {EXS}\ns_nop 4")
        for ctl in ["row_ror:8", "row_ror:4", "row_ror:2", "row_ror:1"]:
            a(f"v_add_f32_dpp v16, v16, v16 {ctl} row_mask:0xf bank_mask:0xf")
            a(f"v_add_f32_dpp v17, v17, v17 {ctl} row_mask:0xf bank_mask:0xf")
            a("s_nop 0")
        self.xgroup_add("v16", "v18")
        self.xgroup_add("v17", "v19")
        a(f"""v_mul_f32 v16, {hex(f2u(1.0/448))}, v16      ; mean - r
        v_mul_f32 v17, {hex(f2u(1.0/448))}, v17
        v_fma_f32 v17, -v16, v16, v17        ; var
        v_max_f32 v17, 0, v17
        v_add_f32 v17, {hex(f2u(1e-5))}, v17
        v_rsq_f32 v17, v17
        s_nop 0
        v_mul_f32 v16, v16, v17
        v_sub_f32 v16, 0, v16""")
        for i in range(8): a(f"v_fma_f32 v{8+i}, v{8+i}, v17, v16")
        for i in range(4): a(f"v_cvt_pk_bf16_f32 v{8+i}, v{8+2*i}, v{9+2*i}")
        a(f"""s_lshl_b32 {sT}, {sWAVE}, 10
        s_add_u32 {sT}, {sT}, {L_XN}
        v_add_u32 v18, {sT}, v1
        ds_write_b128 v18, v[8:11]
        v_lshrrev_b32 v19, 1, v0
        v_lshlrev_b32 v19, 2, v19
        v_add_u32 v19, {sT}, v19
        s_waitcnt lgkmcnt(0)
        ds_read2_b32 v[12:13], v19 offset0:0 offset1:128
        s_waitcnt lgkmcnt(0)""")
        for k in range(8): a(f"v_dot2_f32_bf16 v{40+k}, v{24+k}, v12, 0")
        for k in range(8): a(f"v_dot2_f32_bf16 v{40+k}, v{32+k}, v13, v{40+k}")
        a("s_nop 2")
        for k in range(4):
            a(f"v_add_f32_dpp v{40+k}, v{40+k}, v{40+k} row_ror:8 row_mask:0xf bank_mask:0x3")
            a(f"v_add_f32_dpp v{40+k}, v{44+k}, v{44+k} row_ror:8 row_mask:0xf bank_mask:0xc")
        a("s_nop 1")
        for k in range(2):
            a(f"v_add_f32_dpp v{40+k}, v{40+k}, v{40+k} row_shl:4 row_mask:0xf bank_mask:0x5")
            a(f"v_add_f32_dpp v{40+k}, v{42+k}, v{42+k} row_shr:4 row_mask:0xf bank_mask:0xa")
        a("s_nop 1")
        for k in range(2): a(f"v_add_f32_dpp v{40+k}, v{40+k}, v{40+k} quad_perm:[2,3,0,1] row_mask:0xf bank_mask:0xf")
        a(f"""s_nop 1
        v_permlane16_swap_b32 v40, v41
        v_add_f32 v40, v40, v41
        v_mov_b32 v41, v40
        s_nop 1
        v_permlane32_swap_b32 v40, v41
        v_add_f32 v40, v40, v41
        v_bfe_u32 v42, v1, 4, 1
        v_lshlrev_b32 v42, 5, v42
        v_bfe_u32 v43, v1, 6, 2              ; b2 + 2*b3
        v_lshl_add_u32 v42, v43, 3, v42
        v_bfe_u32 v43, v1, 8, 1
        v_lshl_add_u32 v42, v43, 2, v42
        s_lshl_b32 {sT}, {sWAVE}, 6
        s_add_u32 {sT}, {sT}, {L_QP}
        v_add_u32 v42, {sT}, v42
        ds_write_b32 v42, v40
        v_lshrrev_b32 v43, 1, v1             ; lane*8
        v_and_b32 v43, 63, v43
        v_add_u32 v43, {L_QP}, v43
        s_waitcnt lgkmcnt(0)
        s_barrier
        ds_read_b64 v[44:45], v43
        ds_read_b64 v[46:47], v43 offset:64
        ds_read_b64 v[48:49], v43 offset:128
        ds_read_b64 v[50:51], v43 offset:192
        s_waitcnt lgkmcnt(0)
        v_add_f32 v44, v44, v46
        v_add_f32 v45, v45, v47
        v_add_f32 v48, v48, v50
        v_add_f32 v49, v49, v51
        v_add_f32 v44, v44, v48
        v_add_f32 v45, v45, v49
        v_cvt_pk_bf16_f32 v40, v44, v45
        v_min_u32 v40, -2, v40""")
        self.ret()
    def pub_q(self, layer_expr_sgpr, force_sc1=False):
        a = self.a
        Ls = a.newlabel("pq")
        a(f"""s_cmp_lg_u32 {sWAVE}, 0
        s_cbranch_scc1 {Ls}
        s_lshl_b32 {sT}, {layer_expr_sgpr}, 3
        s_add_u32 {sT}, {sT}, {sG}
        s_lshl_b32 {sT}, {sT}, 10
        s_lshl_b32 {sT2}, {sC}, 5
        s_add_u32 {sT}, {sT}, {sT2}
        s_add_u32 {sT}, {sT}, {QS}
        v_lshrrev_b32 v41, 2, v1
        s_mov_b64 {EXS}, exec
        s_mov_b64 exec, 0xff""")
        if force_sc1: a(f"buffer_store_dword v40, v41, {WS}, {sT} offen sc1")
        else: self.local_store(f"buffer_store_dword v40, v41, {WS}, {sT} offen")
        a(f"s_mov_b64 exec, {EXS}")
        a.label(Ls)

    def chain(self):
        pass

    def build(self):
        a = self.a
        a(f"""s_cmp_ge_u32 s2, 256
        s_cbranch_scc1 .Lend""")
        a(f"""s_load_dwordx16 s[64:79], s[0:1], 0
        s_load_dwordx8 s[80:87], s[0:1], 64
        s_load_dwordx2 s[88:89], s[0:1], 96
        v_lshrrev_b32 v1, 6, v0
        s_and_b32 {sG}, s2, 7
        v_readfirstlane_b32 {sWAVE}, v1
        s_lshr_b32 {sC}, s2, 3
        v_and_b32 v1, 63, v0
        v_lshlrev_b32 v1, 4, v1
        s_mov_b32 {sSELLO}, 0x05040100
        s_mov_b32 {sSELHI}, 0x07060302
        s_mov_b32 {sSC}, {hex(f2u(SCALE))}
        s_mov_b32 {sSPIN}, 0x40000
        s_mov_b32 {sFAST}, 0
        s_mov_b32 {sL}, 0
        s_lshl_b32 {sLDSW}, {sWAVE}, 14
        s_lshl_b32 {sAoff}, {sG}, 23
        s_lshl_b32 {sT}, {sC}, 15
        s_add_u32 {sAoff}, {sAoff}, {sT}
        s_lshl_b32 {sT}, {sWAVE}, 13
        s_add_u32 {sAoff}, {sAoff}, {sT}
        s_add_u32 {sBoff}, {sAoff}, {12288*512}""")
        self.consts()
        a("s_waitcnt lgkmcnt(0)")
        def srd(d, lo, size):
            a(f"s_mov_b32 s{d}, s{lo}\ns_mov_b32 s{d+1}, s{lo+1}\ns_mov_b32 s{d+2}, {hex(size)}\ns_mov_b32 s{d+3}, 0x20000")
        srd(8, 66, 0x4000000); srd(12, 68, 0x4000000); srd(16, 76, 0x4000000); srd(20, 78, 0x4000000)
        srd(24, 88, WS_SIZE); srd(28, 70, 3670016); srd(32, 72, 3670016); srd(36, 64, 896); srd(40, 86, 256)
        a("s_mov_b64 s[44:45], s[70:71]\ns_mov_b64 s[46:47], s[72:73]\ns_mov_b64 s[48:49], s[80:81]\ns_mov_b64 s[50:51], s[82:83]\ns_mov_b64 s[52:53], s[84:85]")
        self.stamp()
        self.call("sub_ldwq"); self.vm += 4
        tokx = self.vmem(f"buffer_load_dwordx4 v[40:43], v1, {XI}, 0 offen")
        a(f"""s_cmp_lg_u32 {sWAVE}, 3
        s_cbranch_scc1 .Lnoclean
        v_mov_b32 v44, -1
        v_mov_b32 v45, -1
        v_mov_b32 v46, -1
        v_mov_b32 v47, -1
        s_mul_i32 {sT}, s2, {CLEAN_PER_WG}""")
        for k in range(13):
            if k % 4 == 0 and k: a(f"s_add_u32 {sT}, {sT}, 4096")
            a(f"buffer_store_dwordx4 v[44:47], v1, {WS}, {sT} offen offset:{(k%4)*1024} sc1")
        a(f"""s_getreg_b32 {sT2}, hwreg(HW_REG_XCC_ID, 0, 4)
        s_mul_i32 {sT3}, {sT2}, {sT2}
        s_lshl_b32 {sT3}, {sT3}, 10
        s_add_u32 {sT2}, {sT2}, {sT3}
        s_add_u32 {sT2}, {sT2}, 0x1000000
        v_mov_b32 v44, {sT2}
        s_lshl_b32 {sT}, {sG}, 5
        v_mov_b32 v45, {sT}
        s_waitcnt vmcnt(0)
        s_mov_b64 {EXS}, exec
        s_mov_b64 exec, 1
        buffer_atomic_add v44, v45, {DBG}, 0 offen sc1
        s_mov_b64 exec, {EXS}""")
        a.label(".Lnoclean")
        self.vm += 1
        self.vm -= 1
        self.loadK_reg(0); self.loadK_reg(1)
        self.waitvm(tokx)
        self.perm16(8, 24)
        self.call("sub_s3b")
        self.stamp()
        self.loadK_reg(2)
        a("v_lshlrev_b32 v44, 1, v1")
        tokc = self.vmem(f"buffer_load_dword v45, v44, {DBG}, 0 offen sc1")
        self.loadK_reg(3); self.loadK_reg(4)
        self.waitvm(tokc)
        Lchk, Lok, Lre = ".Lchk", ".Lchkok", ".Lchkre"
        a.label(Lchk)
        a(f"""v_lshrrev_b32 v46, 24, v45
        v_cmp_eq_u32 vcc, 32, v46
        s_nop 1
        s_cmp_eq_u64 vcc, 0xff
        s_cbranch_scc1 {Lok}
        s_cmp_eq_u32 {sSPIN}, 0
        s_cbranch_scc1 {Lok}
        s_sub_u32 {sSPIN}, {sSPIN}, 1
        buffer_load_dword v45, v44, {DBG}, 0 offen sc1
        s_waitcnt vmcnt(0)
        s_branch {Lchk}""")
        a.label(Lok)
        a(f"""v_readlane_b32 {sT}, v45, {sG}
        s_getreg_b32 {sT2}, hwreg(HW_REG_XCC_ID, 0, 4)
        s_mul_i32 {sT3}, {sT2}, {sT2}
        s_lshl_b32 {sT3}, {sT3}, 10
        s_add_u32 {sT2}, {sT2}, {sT3}
        s_add_u32 {sT2}, {sT2}, 0x1000000
        s_lshl_b32 {sT2}, {sT2}, 5
        s_cmp_eq_u32 {sT}, {sT2}
        s_cselect_b32 {sFAST}, 1, 0""")
        self.stamp()
        self.pub_q(sL, force_sc1=True)
        tokK5 = self.loadK_reg(5); self.loadK_reg(6); tokK = self.loadK_reg(7)
        a(f"""s_lshl_b32 {sT2}, {sG}, 10
        s_add_u32 {sT2}, {sT2}, {QS}""")
        tokq = self.vmem(f"buffer_load_dwordx4 v[40:43], v1, {WS}, {sT2} offen sc1")
        self.loadV_reg(0); self.loadV_reg(1)
        self.waitvm(tokq)
        self.validate(["v40", "v41", "v42", "v43"], "v44")
        a("s_cbranch_vccnz .Lq0slow")
        self.call("sub_s4b")
        a("s_branch .Lq0ok")
        a.label(".Lq0slow")
        self.call("sub_s4")
        a.label(".Lq0ok")
        self.stamp()
        self.loadV_reg(2)
        self.call("sub_qka")
        self.stamp()
        tokV3 = self.loadV_reg(3)
        self.loadV_reg(4); tokV5 = self.loadV_reg(5)
        self.dma("V", VA, sAoff, 6, L_VX); tokXY = self.dma("V", VA, sAoff, 7, L_VX + 8192)
        self.waitvm(tokV3)
        self.call("sub_pvreg03")
        self.dma("K", KBs, sBoff, 0, L_KB); self.dma("K", KBs, sBoff, 1, L_KB + 8192)
        self.waitvm(tokV5)
        self.call("sub_pvreg45")
        self.waitvm(tokXY)
        self.call("sub_pvlds")
        self.stamp()
        a("s_waitcnt lgkmcnt(0)")
        self.dma("V", VBs, sBoff, 0, L_VX); self.dma("V", VBs, sBoff, 1, L_VX + 8192)
        a.label(".Lchain")
        a(f"s_cmp_ge_u32 {sC}, 28\ns_cbranch_scc1 .Lno_wo")
        self.call("sub_ldwo")
        a.label(".Lno_wo")
        self.call("sub_s0")
        a(f"s_cmp_ge_u32 {sC}, 28\ns_cbranch_scc1 .Lno_s1")
        self.call("sub_s1")
        a.label(".Lno_s1")
        a(f"""s_cmp_eq_u32 {sL}, 3
        s_cbranch_scc1 .Lfinal
        s_bitcmp1_b32 {sL}, 0
        s_cselect_b32 s28, s44, s48
        s_cselect_b32 s29, s45, s49
        s_cselect_b32 s32, s46, s50
        s_cselect_b32 s33, s47, s51""")
        self.call("sub_ldwq")
        a(f"""s_cmp_ge_u32 {sC}, 14
        s_cbranch_scc1 .Lno_s2
        s_cmp_lg_u32 {sWAVE}, 0
        s_cbranch_scc1 .Lno_s2""")
        self.call("sub_s2")
        a(f"""v_min_u32 v40, -2, v40
        v_min_u32 v41, -2, v41
        s_lshl_b32 {sT}, {sL}, 3
        s_add_u32 {sT}, {sT}, {sG}
        s_lshl_b32 {sT}, {sT}, 10
        s_add_u32 {sT}, {sT}, {XS}
        s_mov_b64 {EXS}, exec
        s_mov_b64 exec, 0xff""")
        self.local_store(f"buffer_store_dwordx2 v[40:41], v42, {WS}, {sT} offen")
        a(f"s_mov_b64 exec, {EXS}")
        a.label(".Lno_s2")
        a(f"""s_lshl_b32 {sT}, {sL}, 3
        s_add_u32 {sT}, {sT}, {sG}
        s_lshl_b32 {sT}, {sT}, 10
        s_add_u32 {sT}, {sT}, {XS}
        s_add_u32 s36, s24, {sT}
        s_addc_u32 s37, s25, 0
        s_add_u32 {sL}, {sL}, 1""")
        self.call("sub_s3")
        self.pub_q(sL)
        self.call("sub_s4")
        a(f"s_bitcmp1_b32 {sL}, 0\ns_cbranch_scc0 .LlayerA")
        a("s_waitcnt vmcnt(0)")
        self.call("sub_qkb")
        self.call("sub_pvlds")
        a(f"s_waitcnt lgkmcnt(0)\ns_cmp_eq_u32 {sL}, 3\ns_cbranch_scc1 .Lchain")
        self.dma("V", VA, sAoff, 6, L_VX); self.dma("V", VA, sAoff, 7, L_VX + 8192)
        a("s_branch .Lchain")
        a.label(".LlayerA")
        self.call("sub_qka")
        self.call("sub_pvreg03")
        self.call("sub_pvreg45")
        a("s_waitcnt vmcnt(0)")
        self.call("sub_pvlds")
        a("s_waitcnt lgkmcnt(0)")
        self.dma("V", VBs, sBoff, 0, L_VX); self.dma("V", VBs, sBoff, 1, L_VX + 8192)
        a("s_branch .Lchain")
        a.label(".Lfinal")
        a(f"""s_cmp_lg_u32 {sG}, 0
        s_cbranch_scc1 .Lfin
        s_cmp_ge_u32 {sC}, 14
        s_cbranch_scc1 .Lfin
        s_cmp_lg_u32 {sWAVE}, 0
        s_cbranch_scc1 .Lfin""")
        self.call("sub_s2")
        a(f"""s_mov_b32 s36, s52
        s_mov_b32 s37, s53
        s_mov_b64 exec, 0xff
        buffer_store_dwordx2 v[40:41], v42, {XI}, 0 offen
        s_mov_b64 exec, -1""")
        a.label(".Lfin")
        if self.stamps:
            self.stamp()
            n = self.nst
            a(f"""s_lshl_b32 {sT}, s2, 2
            s_add_u32 {sT}, {sT}, {sWAVE}
            s_mul_i32 {sT}, {sT}, {n*8}
            s_add_u32 {sT}, {sT}, {STAMP}
            v_mov_b32 v8, 0""")
            for i in range(n):
                a(f"v_mov_b32 v10, s{64+2*i}\nv_mov_b32 v11, s{65+2*i}\nbuffer_store_dwordx2 v[10:11], v8, {WS}, {sT} offen offset:{i*8}\ns_nop 1")
        a.label(".Lend")
        a("s_endpgm")
        self.sub_s4(); self.sub_qka(); self.sub_qkb()
        self.sub_pvreg("sub_pvreg03", [0, 1, 2, 3]); self.sub_pvreg("sub_pvreg45", [4, 5])
        self.sub_pvlds(); self.sub_ldwo(); self.sub_s0(); self.sub_s1(); self.sub_s2(); self.sub_ldwq(); self.sub_s3()
        return wrap(a.text())

if __name__ == "__main__":
    k = K(stamps=True); open("k1s.s", "w").write(k.build()); print("stamps", k.nst)
    open("k1.s", "w").write(K().build())
```

```python
import sys, struct
from asmlib import *

BLK = 0x100000
REC = 0
YX  = 0x80000
LAM = 0xC0000
XS  = 0xC2000
QS  = 0xC8000
STAMP = 0x600000
WS_SIZE = 0x800000
L_KB = 0
L_BB = 65536
L_WQA = 131072
L_WQB = L_WQA + 14336
L_ML = L_WQB + 14336
L_Q = L_ML + 128
L_YP = L_Q + 1024
L_SCR = L_YP + 512
L_XO = L_SCR + 256
LDS_TOTAL = 163840
assert L_XO + 256 <= LDS_TOTAL
SCALE = 0.0625 * 1.4426950408889634
def f2u(x): return struct.unpack("<I", struct.pack("<f", x))[0]

sWAVE, sG, sC = "s3", "s4", "s5"
sSELLO, sSELHI = "s6", "s7"
KA, VA, KBs, VBs, WS, RL, WO, XI, DBG = "s[8:11]", "s[12:15]", "s[16:19]", "s[20:23]", "s[24:27]", "s[28:31]", "s[32:35]", "s[36:39]", "s[40:43]"
sRS, sRL, sWQ, sWOT = "s50", "s51", "s52", "s53"
sAoff, sBoff, sT, sSC, sFAST, sL = "s54", "s55", "s56", "s57", "s58", "s59"
sT2, sT3, sSPIN, sLDSW = "s60", "s61", "s62", "s63"
RET = "s[64:65]"
sPV, sT4, sT5 = "s66", "s67", "s68"
sRECP, sLAMP, sLAMG, sYXP, sYXG, sYXG2, sXSo, sQSG, sQSP = ["s%d" % i for i in range(69, 78)]
sRECG = ["s78", "s79", "s80", "s81"]
sWOr = ["s82", "s83", "s84", "s85"]
sTG = ["s86", "s87", "s88", "s89"]
sN, sH0, sH1 = "s90", "s91", "s92"
ST0 = 93
NSTAMP = 9
EPOCH = 0xD0000
XCCS = 0xCC000
TILE = 1048576

class K:
    def __init__(self, stamps=None, nt="nt", **opt):
        self.a = Asm()
        self.stamps = stamps
        self.nt = nt
        self.vm = 0
        self.o = dict(pace=6, ycopies=8)
        self.o.update(opt)
    def stamp(self, always=False):
        if not self.stamps: return
        a = self.a
        L = a.newlabel("st")
        if not always:
            a(f"s_cmp_lt_u32 {sL}, {self.stamps[0]}\ns_cbranch_scc1 {L}\ns_cmp_gt_u32 {sL}, {self.stamps[1]}\ns_cbranch_scc1 {L}")
        a(f"s_cmp_ge_u32 {sT5}, {NSTAMP}\ns_cbranch_scc1 {L}")
        a(f"s_memrealtime s[0:1]\ns_mov_b32 m0, {sT5}\ns_waitcnt lgkmcnt(0)\ns_movreld_b32 s{ST0}, s0\ns_add_u32 {sT5}, {sT5}, 1")
        a.label(L)
    def vmem(self, ins):
        self.a(ins); self.vm += 1
        return self.vm
    def waitvm(self, tok):
        n = self.vm - tok
        if n <= 63: self.a(f"s_waitcnt vmcnt({n})")
    def call(self, name): self.a(f"s_call_b64 {RET}, {name}")
    def ret(self): self.a(f"s_setpc_b64 {RET}")
    def only_wave(self, w):
        L = self.a.newlabel("ow")
        self.a(f"s_cmp_lg_u32 {sWAVE}, {w}\ns_cbranch_scc1 {L}")
        return L

    def aoff(self, t, dst):
        self.a(f"s_add_u32 {dst}, {sG}, {t}\ns_and_b32 {dst}, {dst}, 7\ns_lshl_b32 {dst}, {dst}, 18\ns_add_u32 {dst}, {dst}, {sAoff}")
    def dmaA(self, t, loff):
        self.aoff(t, sRS)
        self.a(f"s_add_u32 {sRL}, {sLDSW}, {loff}")
        self.call("sub_dmaV")
        self.vm += 8
        return self.vm
    def loadK_reg(self, t, srd=KA):
        slot = t
        self.aoff(t, sT)
        for cc in range(8):
            tok = self.vmem(f"buffer_load_dwordx4 a[{slot*32+cc*4}:{slot*32+cc*4+3}], v2, {srd}, {sT} offen offset:{cc*64} {self.nt}")
        return tok
    def loadV_reg(self, t):
        self.aoff(t, sT)
        for n in range(8):
            b = 64 + t * 32 + n * 4
            tok = self.vmem(f"buffer_load_dwordx4 v[{b}:{b+3}], v3, {VA}, {sT} offen offset:{(n>>1)*512+(n&1)*256} {self.nt}")
        return tok
    def sub_dma(self, kind, paced=False):
        a = self.a
        a.label(f"sub_dma{kind}{'p' if paced else ''}")
        for n in range(8):
            imm = n * 64 if kind == "K" else (n >> 1) * 512 + (n & 1) * 256
            a(f"s_add_u32 m0, {sRL}, {n*1024 - imm}")
            a(f"s_waitcnt vmcnt({self.o['pace']})" if paced else "s_nop 0")
            a(f"buffer_load_dwordx4 {'v2' if kind=='K' else 'v3'}, {KBs if kind=='K' else RL}, {sRS} offen offset:{imm} {self.nt} lds")
        self.ret()
    def dma(self, kind, base, goff, ldsbase, loff, paced=False):
        a = self.a
        if goff >= 0: a(f"s_add_u32 {sRS}, {base}, {goff}")
        else: a(f"s_sub_u32 {sRS}, {base}, {-goff}")
        if ldsbase: a(f"s_add_u32 {sRL}, {ldsbase}, {loff}")
        else: a(f"s_mov_b32 {sRL}, {loff}")
        self.call(f"sub_dma{kind}{'p' if paced else ''}")
        self.vm += 8
        return self.vm
    def sub_wq(self):
        a = self.a
        a.label("sub_wq")
        a(f"""v_lshrrev_b32 v60, 5, v1
        v_lshlrev_b32 v60, 13, v60
        v_and_b32 v61, 16, v1
        v_add_u32 v60, v60, v61
        s_lshl_b32 {sT}, {sG}, 10
        s_lshl_b32 {sT2}, {sC}, 5
        s_add_u32 {sT}, {sT}, {sT2}
        s_lshl_b32 {sT2}, {sWAVE}, 18
        s_add_u32 {sT}, {sT}, {sT2}
        s_lshl_b32 {sT2}, {sWAVE}, 10
        s_add_u32 m0, {sRL}, {sT2}""")
        for n in range(4):
            if n == 3: a(f"s_cmp_ge_u32 {sWAVE}, 2\ns_cbranch_scc1 .Lwq_end")
            a(f"s_nop 0\nbuffer_load_dwordx4 v60, {RL}, {sT} offen {self.nt} lds")
            if n < 3: a(f"s_add_u32 {sT}, {sT}, {4*262144}\ns_add_u32 m0, m0, 4096")
        a.label(".Lwq_end")
        self.ret()
    def sub_twq(self):
        a = self.a
        a.label("sub_twq")
        a(f"""v_lshrrev_b32 v60, 7, v1
        v_lshlrev_b32 v60, 13, v60
        v_and_b32 v61, 0x70, v1
        v_lshl_add_u32 v60, v61, 3, v60
        s_lshl_b32 {sT}, {sG}, 10
        s_mul_i32 {sT2}, {sC}, {14*8192}
        s_add_u32 {sT}, {sT}, {sT2}
        s_add_u32 {sT2}, {sT}, {6*8192}
        s_mov_b32 m0, {L_SCR}
        s_nop 0
        buffer_load_dword v60, {RL}, {sT} offen {self.nt} lds
        buffer_load_dword v60, {RL}, {sT2} offen {self.nt} lds""")
        self.ret()

    def validate(self, groups, tmp, lanemask=None):
        a = self.a
        accs = []
        for gi, (mask, items) in enumerate(groups):
            t = tmp[gi]
            for r, tg in items: a(f"v_xor_b32 {r}, {tg}, {r}")
            rs = [r for r, _ in items]
            if len(rs) == 1:
                if mask == 0xffffffff:
                    accs.append(rs[0]); continue
                a(f"v_mov_b32 {t}, {rs[0]}")
            elif len(rs) == 2: a(f"v_or_b32 {t}, {rs[0]}, {rs[1]}")
            else:
                a(f"v_or3_b32 {t}, {rs[0]}, {rs[1]}, {rs[2]}")
                k = 3
                while k < len(rs):
                    if k + 1 < len(rs): a(f"v_or3_b32 {t}, {t}, {rs[k]}, {rs[k+1]}"); k += 2
                    else: a(f"v_or_b32 {t}, {t}, {rs[k]}"); k += 1
            if mask != 0xffffffff: a(f"v_and_b32 {t}, {hex(mask)}, {t}")
            accs.append(t)
        for t in accs[1:]: a(f"v_or_b32 {accs[0]}, {accs[0]}, {t}")
        a(f"v_cmp_ne_u32 vcc, 0, {accs[0]}")
        if lanemask is not None:
            a(f"s_nop 0\ns_and_b32 vcc_lo, vcc_lo, {hex(lanemask)}\ns_and_b32 vcc_hi, vcc_hi, {hex(lanemask)}\ns_or_b32 {sT4}, vcc_lo, vcc_hi")
    def poll(self, loads, groups, tmp, shadow=None, lanemask=None):
        a = self.a
        Lp, Ld, Lw = a.newlabel("poll"), a.newlabel("pdone"), a.newlabel("pw")
        if shadow:
            for l in loads: a(l)
            shadow()
            a(f"s_branch {Lw}")
        a.label(Lp)
        for l in loads: a(l)
        a.label(Lw)
        a("s_waitcnt vmcnt(0)")
        self.validate(groups, tmp, lanemask)
        a(f"s_cbranch_vccz {Ld}" if lanemask is None else f"s_cbranch_scc0 {Ld}")
        a(f"""s_cmp_eq_u32 {sSPIN}, 0
        s_cbranch_scc1 {Ld}
        s_sub_u32 {sSPIN}, {sSPIN}, 1
        s_branch {Lp}""")
        a.label(Ld)
    def t16(self, base, n):
        return (0xffff, [(f"v{base+i}", sH0 if i % 2 == 0 else sH1) for i in range(n)])
    def t8(self, regs):
        return (0xff, [(r, sTG[i % 4]) for i, r in enumerate(regs)])
    def local_store(self, *ins):
        a = self.a
        Lf, Ld = a.newlabel("fs"), a.newlabel("fd")
        a(f"s_cmp_eq_u32 {sFAST}, 1\ns_cbranch_scc1 {Lf}")
        for i in ins: a(i + " sc1")
        a(f"s_branch {Ld}")
        a.label(Lf)
        for i in ins: a(i)
        a.label(Ld)
    def xgroup(self, op, xs, ts):
        a = self.a
        n = len(xs)
        for sw in ("v_permlane16_swap_b32", "v_permlane32_swap_b32"):
            for x, t in zip(xs, ts): a(f"v_mov_b32 {t}, {x}")
            if n < 3: a(f"s_nop {2-n}")
            for x, t in zip(xs, ts): a(f"{sw} {x}, {t}")
            for x, t in zip(xs, ts): a(f"{op} {x}, {x}, {t}")

    def q_loads(self):
        return [f"buffer_load_dwordx4 v[40:43], v49, {WS}, {sQSG} offen sc1", f"buffer_load_dwordx4 v[44:47], v49, {WS}, {sQSG} offen offset:16 sc1"]
    def sub_s4(self):
        a = self.a
        a.label("sub_s4")
        a("v_lshlrev_b32 v49, 1, v1")
        self.poll(self.q_loads(), [self.t16(40, 8)], ["v48"], shadow=self.consts)
        a.label("sub_s4b")
        for i in range(4): a(f"v_perm_b32 v{40+i}, v{41+2*i}, v{40+2*i}, {sSELHI}")
        a(f"""v_add_u32 v48, {L_Q}, v1
        ds_write_b128 v48, v[40:43]
        s_waitcnt lgkmcnt(0)""")
        self.ret()
    def qaddr(self, dst):
        self.a(f"""v_bfe_u32 {dst}, v1, 7, 1
        v_lshlrev_b32 {dst}, 9, {dst}
        v_bfe_u32 v63, v1, 8, 2
        v_lshl_add_u32 {dst}, v63, 4, {dst}
        v_add_u32 {dst}, {L_Q}, {dst}""")
    def softmax_prep(self, sregs):
        a = self.a
        for i in range(8): a(f"v_mov_b32 v{40+i}, 0")
        n = len(sregs)
        h = n // 2
        for acc, rs in (("v56", sregs[:h]), ("v57", sregs[h:])):
            pass
        A, B = sregs[:h], sregs[h:]
        a(f"v_max3_f32 v56, {A[0]}, {A[1]}, {A[2]}\nv_max3_f32 v57, {B[0]}, {B[1]}, {B[2]}")
        k = 3
        while k + 1 < h:
            a(f"v_max3_f32 v56, v56, {A[k]}, {A[k+1]}\nv_max3_f32 v57, v57, {B[k]}, {B[k+1]}"); k += 2
        a(f"v_max3_f32 v56, v56, {A[k]}, {B[k]}\nv_max_f32 v56, v56, v57")
        self.xgroup("v_max_f32", ["v56"], ["v58"])
        a(f"v_mul_f32 v56, {sSC}, v56\nv_sub_f32 v56, 0, v56")
        G = 8
        for g0 in range(0, n, G):
            rs = sregs[g0:g0+G]
            for r in rs: a(f"v_fma_f32 {r}, {r}, {sSC}, v56")
            for r in rs: a(f"v_exp_f32 {r}, {r}")
            for i, r in enumerate(rs):
                acc = "v57" if i % 2 == 0 else "v58"
                if g0 == 0 and i < 2: a(f"v_mov_b32 {acc}, {r}")
                else: a(f"v_add_f32 {acc}, {acc}, {r}")
                a(f"v_cvt_pk_bf16_f32 {r}, {r}, {r}")
        a("v_add_f32 v57, v57, v58")
    def sub_qka(self):
        a = self.a
        for part in range(2):
            a.label(f"sub_qka{part}")
            for k in range(4):
                a(f"ds_read_b128 v[{40+4*k}:{43+4*k}], v62 offset:{(part*4+k)*64}")
            for k in range(4):
                cc = part * 4 + k
                a(f"s_waitcnt lgkmcnt({3-k})")
                for t in range(8):
                    c = "0" if cc == 0 else f"v[{8+4*t}:{11+4*t}]"
                    a(f"v_mfma_f32_16x16x32_bf16 v[{8+4*t}:{11+4*t}], a[{t*32+cc*4}:{t*32+cc*4+3}], v[{40+4*k}:{43+4*k}], {c}")
            if part == 1:
                self.softmax_prep([f"v{8+i}" for i in range(32)])
            self.ret()
    def sub_qk2(self):
        a = self.a
        a.label("sub_qk2")
        for k in range(8):
            a(f"ds_read_b128 v[{16+4*k}:{19+4*k}], v62 offset:{k*64}")
        for cc in range(8):
            a(f"s_waitcnt lgkmcnt({7-cc})")
            for t in range(2):
                c = "0" if cc == 0 else f"v[{8+4*t}:{11+4*t}]"
                a(f"v_mfma_f32_16x16x32_bf16 v[{8+4*t}:{11+4*t}], a[{64+t*32+cc*4}:{64+t*32+cc*4+3}], v[{16+4*cc}:{19+4*cc}], {c}")
        self.softmax_prep([f"v{8+i}" for i in range(8)])
        self.ret()
    def sub_qkb(self):
        a = self.a
        a.label("sub_qkb")
        a(f"v_add_u32 v61, {sLDSW}, v1")
        def rd(cc):
            b = cc % 3
            a(f"ds_read_b128 v[{40+4*b}:{43+4*b}], v62 offset:{cc*64}")
            a(f"ds_read_b128 v[{8+8*b}:{11+8*b}], v61 offset:{cc*1024}")
            a(f"ds_read_b128 v[{12+8*b}:{15+8*b}], v61 offset:{8192 + cc*1024}")
        rd(0); rd(1)
        for cc in range(8):
            if cc + 2 < 8: rd(cc + 2)
            rem = min(8, cc + 3) - cc - 1
            a(f"s_waitcnt lgkmcnt({rem*3})")
            b = cc % 3
            for t in range(2):
                c = "0" if cc == 0 else f"v[{32+4*t}:{35+4*t}]"
                a(f"v_mfma_f32_16x16x32_bf16 v[{32+4*t}:{35+4*t}], v[{8+8*b+4*t}:{11+8*b+4*t}], v[{40+4*b}:{43+4*b}], {c}")
            a("s_nop 1")
        self.softmax_prep([f"v{32+i}" for i in range(8)])
        self.ret()
    def pstep(self, s, bb):
        self.a(f"""v_and_b32 v{bb}, v4, {s}
        v_and_b32 v{bb+1}, v5, {s}
        v_and_b32 v{bb+2}, v6, {s}
        v_and_b32 v{bb+3}, v7, {s}""")
    def sub_pvreg(self, name, tiles, agpr=False):
        a = self.a
        a.label(name)
        steps = [(t, r) for t in tiles for r in range(4)]
        self.pstep(f"v{8+4*steps[0][0]+steps[0][1]}", 48)
        for k, (t, r) in enumerate(steps):
            bb = 48 + 4 * (k & 1)
            nb = 48 + 4 * ((k + 1) & 1)
            nxt = f"v{8+4*steps[k+1][0]+steps[k+1][1]}" if k + 1 < len(steps) else None
            if k == 0: a("s_nop 1")
            for hf in range(2):
                if agpr:
                    vb = (t - 6) * 32 + (r * 2 + hf) * 4; src = f"a[{vb}:{vb+3}]"
                else:
                    vb = 64 + t * 32 + (r * 2 + hf) * 4; src = f"v[{vb}:{vb+3}]"
                a(f"v_mfma_f32_16x16x32_bf16 v[{40+4*hf}:{43+4*hf}], {src}, v[{bb}:{bb+3}], v[{40+4*hf}:{43+4*hf}]")
                if hf == 0 and nxt: self.pstep(nxt, nb)
            if nxt: a("s_nop 0")
        self.ret()
    def sub_pvlds(self):
        a = self.a
        a.label("sub_pvlds")
        a(f"v_add_u32 v61, {sPV}, v1")
        steps = [(t, r) for t in range(2) for r in range(4)]
        def rd(k):
            t, r = steps[k]; b = 8 + 8 * (k % 3)
            for hf in range(2):
                a(f"ds_read_b128 v[{b+4*hf}:{b+4*hf+3}], v61 offset:{t*8192 + (r*2+hf)*1024}")
        rd(0); rd(1); rd(2)
        self.pstep("v32", 48)
        for k, (t, r) in enumerate(steps):
            bb = 48 + 4 * (k & 1)
            if k + 1 < 8: self.pstep(f"v{32+k+1}", 48 + 4 * ((k + 1) & 1))
            issued = min(8, k + 3) if k == 0 else min(8, k + 2)
            a(f"s_waitcnt lgkmcnt({(issued - k - 1)*2})")
            b = 8 + 8 * (k % 3)
            if k + 1 >= 8: a("s_nop 0")
            for hf in range(2):
                a(f"v_mfma_f32_16x16x32_bf16 v[{40+4*hf}:{43+4*hf}], v[{b+4*hf}:{b+4*hf+3}], v[{bb}:{bb+3}], v[{40+4*hf}:{43+4*hf}]")
            if k >= 1 and k + 2 < 8: rd(k + 2)
        self.ret()
    def ldwo(self):
        a = self.a
        a(f"""v_bfe_u32 v60, v1, 4, 3
        v_bfe_u32 v61, v1, 7, 1
        v_lshl_add_u32 v60, v61, 5, v60
        v_mul_u32_u24 v60, 896, v60
        v_bfe_u32 v61, v1, 8, 2
        v_lshl_add_u32 v60, v61, 4, v60""")
        for k in range(4):
            a(f"buffer_load_dwordx4 v[{24+4*k}:{27+4*k}], v60, {WO}, {sWOr[k]} offen")
    def sub_pfwo(self):
        a = self.a
        a.label("sub_pfwo")
        a(f"""v_lshlrev_b32 v60, 3, v1
        s_mov_b32 m0, {L_SCR}
        s_lshl_b32 {sT2}, {sG}, 5
        s_add_u32 {sT2}, {sT2}, {sC}
        s_mul_i32 {sT2}, {sT2}, 14336
        s_add_u32 {sT3}, {sT2}, 6144
        buffer_load_dword v60, {WO}, {sT2} offen {self.nt} lds
        buffer_load_dword v60, {WO}, {sT3} offen {self.nt} lds
        """)
        if self.o.get("pinwo", 1): a(f"""buffer_load_dword v60, {WO}, {sT2} offen sc1 lds
        buffer_load_dword v60, {WO}, {sT3} offen sc1 lds""")
        self.ret()
    def perm_inplace(self):
        a = self.a
        free = 59
        m = [[None] * 8, [None] * 8]
        for p in range(2):
            for w in range(4):
                A = 24 + p * 8 + w; B = A + 4
                a(f"v_perm_b32 v{free}, v{B}, v{A}, {sSELLO}")
                a(f"v_perm_b32 v{A}, v{B}, v{A}, {sSELHI}")
                m[p][2 * w] = free; m[p][2 * w + 1] = A
                free = B
        return m
    def sub_s0(self):
        a = self.a
        a.label("sub_s0")
        self.xgroup("v_add_f32", ["v57"], ["v58"])
        a(f"""s_add_u32 {sT}, {sLDSW}, {L_BB + 8192}
        v_add_u32 v58, {sT}, v1
        v_sub_f32 v60, 0, v56
        v_mov_b32 v61, v57
        v_bfe_u32 v59, v1, 7, 1
        v_lshlrev_b32 v59, 5, v59
        s_lshl_b32 {sT}, {sWAVE}, 3
        s_add_u32 {sT}, {sT}, {L_ML}
        v_add_u32 v59, {sT}, v59
        ds_write_b128 v58, v[40:43]
        ds_write_b128 v58, v[44:47] offset:1024
        ds_write_b64 v59, v[60:61]
        v_lshlrev_b32 v58, 3, v0
        v_add_u32 v58, {L_BB + 8192}, v58
        v_bfe_u32 v62, v0, 4, 1
        v_lshlrev_b32 v59, 5, v62
        v_add_u32 v59, {L_ML}, v59
        v_and_b32 v60, 15, v0
        v_lshlrev_b32 v60, 3, v60
        v_lshrrev_b32 v61, 5, v0
        v_lshl_add_u32 v60, v61, 7, v60
        v_lshl_add_u32 v60, v62, 10, v60
        v_lshlrev_b32 v62, 8, v62
        v_and_b32 v61, 1, v0
        v_lshlrev_b32 v61, 4, v61
        v_lshrrev_b32 v8, v61, {sN}
        v_lshrrev_b32 v9, 8, v8
        v_mov_b32 v10, 0xff
        s_waitcnt lgkmcnt(0)
        s_barrier
        ds_read_b128 v[40:43], v59
        ds_read_b128 v[44:47], v59 offset:16
        ds_read_b64 v[48:49], v58
        ds_read_b64 v[50:51], v58 offset:16384
        ds_read_b64 v[52:53], v58 offset:32768
        ds_read_b64 v[54:55], v58 offset:49152
        s_waitcnt lgkmcnt(4)
        v_max3_f32 v56, v40, v42, v44
        v_max_f32 v56, v56, v46
        v_sub_f32 v40, v40, v56
        v_sub_f32 v42, v42, v56
        v_sub_f32 v44, v44, v56
        v_sub_f32 v46, v46, v56
        v_exp_f32 v40, v40
        v_exp_f32 v42, v42
        v_exp_f32 v44, v44
        v_exp_f32 v46, v46
        v_mul_f32 v57, v40, v41
        v_fmac_f32 v57, v42, v43
        v_fmac_f32 v57, v44, v45
        v_fmac_f32 v57, v46, v47
        v_rcp_f32 v61, v57
        s_waitcnt lgkmcnt(0)
        v_mul_f32 v48, v48, v40
        v_mul_f32 v49, v49, v40
        v_fmac_f32 v48, v50, v42
        v_fmac_f32 v49, v51, v42
        v_fmac_f32 v48, v52, v44
        v_fmac_f32 v49, v53, v44
        v_fmac_f32 v48, v54, v46
        v_fmac_f32 v49, v55, v46
        v_mul_f32 v48, v48, v61
        v_mul_f32 v49, v49, v61
        v_log_f32 v57, v57
        v_bfi_b32 v48, v10, v8, v48
        v_bfi_b32 v49, v10, v9, v49""")
        self.local_store(f"buffer_store_dwordx2 v[48:49], v60, {WS}, {sRECP} offen")
        Ls = self.only_wave(0)
        a(f"""v_add_f32 v56, v57, v56
        v_mov_b32 v57, {sN}
        s_mov_b64 exec, 0x10001""")
        self.local_store(f"buffer_store_dwordx2 v[56:57], v62, {WS}, {sLAMP} offen")
        a("s_mov_b64 exec, -1")
        a.label(Ls)
        self.ret()
    def sub_s1(self):
        a = self.a
        a.label("sub_s1")
        a(f"""v_bfe_u32 v62, v1, 8, 2
        v_lshlrev_b32 v63, 6, v62
        v_bfe_u32 v61, v1, 4, 3
        v_lshl_add_u32 v63, v61, 3, v63
        v_lshlrev_b32 v62, 14, v62
        v_and_b32 v61, 0xf0, v1
        v_add_u32 v62, v62, v61""")
        loads = []
        oregs = [8, 12, 16, 20, 40, 44, 48, 52]
        loads.append(f"buffer_load_dwordx2 v[56:57], v63, {WS}, {sLAMG} offen sc1")
        for k in range(8):
            loads.append(f"buffer_load_dwordx4 v[{oregs[k]}:{oregs[k]+3}], v62, {WS}, {sRECG[k>>1]} offen offset:{(k&1)*2048} sc1")
        regs = [f"v{o+i}" for o in oregs for i in range(4)]
        pm = []
        def shadow():
            a("s_waitcnt vmcnt(9)")
            pm.append(self.perm_inplace())
        self.poll(loads, [self.t8(regs), (0xffffffff, [("v57", sN)])], ["v58", "v60"], shadow=shadow)
        m = pm[0]
        a(f"""v_max_f32_dpp v58, v56, v56 row_ror:1 row_mask:0xf bank_mask:0xf
        s_nop 1
        v_max_f32_dpp v58, v58, v58 row_ror:2 row_mask:0xf bank_mask:0xf
        s_nop 1
        v_max_f32_dpp v58, v58, v58 row_ror:4 row_mask:0xf bank_mask:0xf""")
        self.xgroup("v_max_f32", ["v58"], ["v60"])
        a(f"""v_sub_f32 v56, v56, v58
        v_exp_f32 v56, v56
        s_nop 1""")
        for i in range(4): a(f"v_mul_f32_dpp v{8+i}, v56, v{8+i} row_newbcast:0 row_mask:0xf bank_mask:0xf")
        a("v_add_f32_dpp v58, v56, v56 row_ror:1 row_mask:0xf bank_mask:0xf")
        for k in range(1, 8):
            for i in range(4): a(f"v_fmac_f32_dpp v{8+i}, v56, v{oregs[k]+i} row_newbcast:{k} row_mask:0xf bank_mask:0xf")
            if k == 1: a("v_add_f32_dpp v58, v58, v58 row_ror:2 row_mask:0xf bank_mask:0xf")
            if k == 2: a("v_add_f32_dpp v58, v58, v58 row_ror:4 row_mask:0xf bank_mask:0xf")
        self.xgroup("v_add_f32", ["v58", "v8", "v9", "v10", "v11"], ["v60", "v12", "v13", "v14", "v15"])
        a(f"""v_rcp_f32 v58, v58
        v_lshrrev_b32 v62, 6, v1
        v_mul_f32 v8, v8, v58
        v_mul_f32 v9, v9, v58
        v_mul_f32 v10, v10, v58
        v_mul_f32 v11, v11, v58
        v_cvt_pk_bf16_f32 v8, v8, v9
        v_cvt_pk_bf16_f32 v9, v10, v11
        v_lshlrev_b32 v62, 3, v62""")
        for k in range(8): a(f"v_dot2_f32_bf16 v{40+k}, v{m[0][k]}, v8, 0")
        for k in range(8): a(f"v_dot2_f32_bf16 v{40+k}, v{m[1][k]}, v9, v{40+k}")
        a(f"""s_lshl_b32 {sT}, {sWAVE}, 7
        s_add_u32 {sT}, {sT}, {L_YP}
        v_add_u32 v62, {sT}, v62""")
        for k in range(4):
            a(f"v_add_f32_dpp v{40+k}, v{40+k}, v{40+k} row_ror:8 row_mask:0xf bank_mask:0x3")
        for k in range(4):
            a(f"v_add_f32_dpp v{40+k}, v{44+k}, v{44+k} row_ror:8 row_mask:0xf bank_mask:0xc")
        for k in range(2):
            a(f"v_add_f32_dpp v{40+k}, v{40+k}, v{40+k} row_shl:4 row_mask:0xf bank_mask:0x5")
        for k in range(2):
            a(f"v_add_f32_dpp v{40+k}, v{42+k}, v{42+k} row_shr:4 row_mask:0xf bank_mask:0xa")
        a("s_nop 0")
        for k in range(2): a(f"v_add_f32_dpp v{40+k}, v{40+k}, v{40+k} quad_perm:[2,3,0,1] row_mask:0xf bank_mask:0xf")
        a("s_nop 0")
        for k in range(2): a(f"v_add_f32_dpp v{40+k}, v{40+k}, v{40+k} quad_perm:[1,0,3,2] row_mask:0xf bank_mask:0xf")
        a(f"""ds_write_b64 v62, v[40:41]
        v_and_b32 v42, 0x70, v1
        v_add_u32 v43, {L_YP}, v42
        v_lshrrev_b32 v44, 7, v1
        v_lshl_add_u32 v42, v44, 15, v42
        v_mov_b32 v45, 0xff
        s_cmp_lg_u32 {sWAVE}, 0
        s_waitcnt lgkmcnt(0)
        s_barrier
        s_cbranch_scc1 .Ls1_done
        ds_read_b128 v[8:11], v43
        ds_read_b128 v[12:15], v43 offset:128
        ds_read_b128 v[16:19], v43 offset:256
        ds_read_b128 v[20:23], v43 offset:384
        s_waitcnt lgkmcnt(2)""")
        for i in range(4): a(f"v_add_f32 v{8+i}, v{8+i}, v{12+i}")
        a("s_waitcnt lgkmcnt(0)")
        for i in range(4): a(f"v_add_f32 v{16+i}, v{16+i}, v{20+i}")
        for i in range(4): a(f"v_add_f32 v{8+i}, v{8+i}, v{16+i}")
        for i in range(4): a(f"v_bfi_b32 v{8+i}, v45, {sTG[i]}, v{8+i}")
        if self.o["ycopies"] == 1: a("s_mov_b64 exec, 0xff")
        a(f"buffer_store_dwordx4 v[8:11], v42, {WS}, {sYXP} offen sc1\ns_mov_b64 exec, -1\ns_nop 0")
        a.label(".Ls1_done")
        self.ret()
    def consts(self):
        self.a(f"""v_bfe_u32 v58, v1, 4, 4
        v_bfe_u32 v59, v1, 8, 2
        v_lshlrev_b32 v2, 9, v58
        v_lshl_add_u32 v2, v59, 4, v2
        v_lshlrev_b32 v3, 11, v59
        v_lshl_add_u32 v3, v58, 4, v3
        v_and_b32 v59, 1, v58
        v_lshlrev_b32 v59, 4, v59
        v_mov_b32 v60, 0xffff
        v_lshlrev_b32 v60, v59, v60
        v_bfe_u32 v59, v58, 1, 2
        v_cmp_eq_u32 vcc, 0, v59
        s_nop 1
        v_cndmask_b32 v4, 0, v60, vcc
        v_cmp_eq_u32 vcc, 1, v59
        s_nop 1
        v_cndmask_b32 v5, 0, v60, vcc
        v_cmp_eq_u32 vcc, 2, v59
        s_nop 1
        v_cndmask_b32 v6, 0, v60, vcc
        v_cmp_eq_u32 vcc, 3, v59
        s_nop 1
        v_cndmask_b32 v7, 0, v60, vcc""")
        self.qaddr("v62")
    def sub_s2(self):
        a = self.a
        a.label("sub_s2")
        a(f"""v_lshrrev_b32 v2, 7, v1
        v_mul_u32_u24 v2, 1792, v2
        v_and_b32 v3, 0x70, v1
        v_add_u32 v2, v2, v3
        v_lshrrev_b32 v42, 1, v3
        v_lshrrev_b32 v3, 9, v1
        v_lshl_add_u32 v42, v3, 2, v42
        s_lshl_b32 {sT2}, {sC}, 6
        v_add_u32 v42, {sT2}, v42
        v_lshrrev_b32 v3, 2, v1
        v_add_u32 v3, {L_XO}, v3
        ds_read_b32 v52, v3""")
        self.poll([f"buffer_load_dwordx4 v[44:47], v2, {WS}, {sYXG} offen sc1",
                   f"buffer_load_dwordx4 v[48:51], v2, {WS}, {sYXG2} offen sc1"],
                  [self.t8([f"v{44+i}" for i in range(8)])], ["v4"])
        for i in range(4): a(f"v_add_f32 v{44+i}, v{44+i}, v{48+i}")
        a(f"""s_waitcnt lgkmcnt(0)
        v_lshlrev_b32 v53, 16, v52
        v_permlane32_swap_b32 v44, v46
        v_permlane32_swap_b32 v45, v47
        v_add_f32 v44, v44, v46
        v_add_f32 v45, v45, v47
        v_and_b32 v52, 0xffff0000, v52
        v_add_f32_dpp v44, v44, v44 row_ror:8 row_mask:0xf bank_mask:0xf
        v_add_f32_dpp v45, v45, v45 row_ror:8 row_mask:0xf bank_mask:0xf
        v_mov_b32 v46, v44
        v_mov_b32 v47, v45
        s_nop 0
        v_permlane16_swap_b32 v44, v46
        v_permlane16_swap_b32 v45, v47
        v_add_f32 v44, v44, v46
        v_add_f32 v45, v45, v47
        v_cvt_pk_bf16_f32 v44, v44, v45
        v_and_b32 v45, 0xffff0000, v44
        v_lshlrev_b32 v44, 16, v44
        v_add_f32 v44, v44, v53
        v_add_f32 v45, v45, v52
        v_cvt_pk_bf16_f32 v40, v44, v45""")
        self.ret()
    def wbuf(self, kk):
        if kk < 8: return 8 + 4 * kk
        if kk < 10: return 56 + 4 * (kk - 8)
        return 8 + 4 * (kk - 10)
    def sub_s3pre(self):
        a = self.a
        a.label("sub_s3pre")
        a(f"""v_bfe_u32 v6, v1, 8, 2
        v_mul_u32_u24 v7, 448, v6
        v_mul_u32_u24 v6, 3584, v6
        v_bfe_u32 v5, v1, 4, 4
        v_lshl_add_u32 v6, v5, 3, v6
        v_add_u32 v6, {sWQ}, v6
        v_lshl_add_u32 v7, v5, 5, v7
        v_cmp_gt_u32 vcc, 14, v5
        v_mov_b32 v5, 0x1000
        s_nop 0
        v_cndmask_b32 v7, v5, v7, vcc""")
        self.ret()
        a.label("sub_s3w")
        for kk in range(10):
            b = self.wbuf(kk)
            a(f"ds_read_b64_tr_b16 v[{b}:{b+1}], v6 offset:{kk*256}")
            a(f"ds_read_b64_tr_b16 v[{b+2}:{b+3}], v6 offset:{kk*256+128}")
        self.ret()
    def sub_s3(self):
        a = self.a
        a.label("sub_s3")
        self.poll([f"buffer_load_dwordx4 v[44:47], v7, {XI}, 0 offen sc1", f"buffer_load_dwordx4 v[48:51], v7, {XI}, 0 offen offset:16 sc1"],
                  [self.t16(44, 8)], ["v40"], lanemask=0x3fff3fff)
        a.label("sub_s3b")
        a(f"""v_readfirstlane_b32 {sT}, v44
        v_mov_b32 v52, 0
        v_mov_b32 v53, 0
        s_mov_b32 exec_lo, 0x3fff3fff
        s_mov_b32 exec_hi, 0x3fff3fff""")
        for i in range(8): a(f"v_subrev_f32 v{44+i}, {sT}, v{44+i}")
        a("v_add_f32 v52, v44, v45\nv_mul_f32 v53, v44, v44\nv_fmac_f32 v53, v45, v45")
        for i in range(2, 8): a(f"v_add_f32 v52, v52, v{44+i}\nv_fmac_f32 v53, v{44+i}, v{44+i}")
        a(f"s_mov_b64 exec, -1\ns_nop 0")
        for ctl in ["row_ror:8", "row_ror:4", "row_ror:2", "row_ror:1"]:
            a(f"v_add_f32_dpp v52, v52, v52 {ctl} row_mask:0xf bank_mask:0xf")
            a(f"v_add_f32_dpp v53, v53, v53 {ctl} row_mask:0xf bank_mask:0xf")
            a("s_nop 0")
        self.xgroup("v_add_f32", ["v52", "v53"], ["v54", "v55"])
        a(f"""v_mul_f32 v52, {hex(f2u(1.0/448))}, v52
        v_mul_f32 v53, {hex(f2u(1.0/448))}, v53
        v_fma_f32 v53, -v52, v52, v53
        v_max_f32 v53, 0, v53
        v_add_f32 v53, {hex(f2u(1e-5))}, v53
        v_rsq_f32 v53, v53
        s_nop 0
        v_mul_f32 v52, v52, v53
        v_sub_f32 v52, 0, v52""")
        for i in range(8): a(f"v_fma_f32 v{44+i}, v{44+i}, v53, v52")
        for i in range(4): a(f"v_cvt_pk_bf16_f32 v{40+i}, v{44+2*i}, v{45+2*i}")
        a("s_waitcnt lgkmcnt(0)\ns_nop 0")
        def bc(kk):
            bb = 44 + 4 * (kk & 1)
            for i in range(4): a(f"v_mov_b32_dpp v{bb+i}, v{40+i} row_newbcast:{kk} row_mask:0xf bank_mask:0xf")
        bc(0)
        for kk in range(14):
            if kk + 1 < 14: bc(kk + 1)
            else: a("s_nop 1")
            if kk >= 10: a(f"s_waitcnt lgkmcnt({(13-kk)*2})")
            b = self.wbuf(kk); bb = 44 + 4 * (kk & 1)
            c = "0" if kk == 0 else "v[52:55]"
            a(f"v_mfma_f32_16x16x32_bf16 v[52:55], v[{b}:{b+3}], v[{bb}:{bb+3}], {c}")
            if 1 <= kk <= 4:
                k2 = kk + 9; b2 = self.wbuf(k2)
                a(f"ds_read_b64_tr_b16 v[{b2}:{b2+1}], v6 offset:{k2*256}")
                a(f"ds_read_b64_tr_b16 v[{b2+2}:{b2+3}], v6 offset:{k2*256+128}")
        a(f"""v_lshrrev_b32 v48, 4, v1
        s_nop 6
        v_cvt_pk_bf16_f32 v52, v52, v53
        v_cvt_pk_bf16_f32 v53, v54, v55""")
        self.ret()
    def pub_q(self):
        a = self.a
        a(f"""v_mov_b32 v49, {sN}
        s_mov_b32 exec_lo, 0x10001
        s_mov_b32 exec_hi, 0x10001
        v_perm_b32 v40, v52, v49, {sSELLO}
        v_perm_b32 v41, v52, v49, {sSELHI}
        v_perm_b32 v42, v53, v49, {sSELLO}
        v_perm_b32 v43, v53, v49, {sSELHI}""")
        self.local_store(f"buffer_store_dwordx4 v[40:43], v48, {WS}, {sQSP} offen")
        a("s_mov_b64 exec, -1")
    def xccval(self, dst, tmp):
        self.a(f"""s_getreg_b32 {dst}, hwreg(HW_REG_XCC_ID, 0, 4)
        s_mul_i32 {tmp}, {dst}, {dst}
        s_lshl_b32 {tmp}, {tmp}, 10
        s_add_u32 {dst}, {dst}, {tmp}
        s_add_u32 {dst}, {dst}, 0x1000000""")

    def sub_g0(self):
        a = self.a
        a.label("sub_g0issue")
        a(f"""s_add_u32 {sT4}, {sQSG}, {XCCS - QS}
        v_and_b32 v52, 0x1ff, v1
        v_lshlrev_b32 v49, 1, v1
        buffer_load_dwordx2 v[50:51], v52, {WS}, {sT4} offen sc1""")
        for l in self.q_loads(): a(l)
        self.ret()
        a.label("sub_g0check")
        self.validate([self.t16(40, 8), (0xffffffff, [("v51", sN)])], ["v48", "v53"])
        a(f"""s_cbranch_vccz .Lg0ok
        s_cmp_eq_u32 {sSPIN}, 0
        s_cbranch_scc1 .Lg0bail
        s_sub_u32 {sSPIN}, {sSPIN}, 1""")
        self.ret()
        a.label(".Lg0ok")
        a(f"""s_getreg_b32 {sT2}, hwreg(HW_REG_XCC_ID, 0, 4)
        v_cmp_ne_u32 vcc, {sT2}, v50
        s_nop 1
        s_cmp_eq_u64 vcc, 0
        s_cselect_b32 {sFAST}, 1, 0""")
        a.label(".Lg0bail")
        for i in range(4): a(f"v_perm_b32 v{40+i}, v{41+2*i}, v{40+2*i}, {sSELHI}")
        a(f"""v_add_u32 v48, {L_Q}, v1
        ds_write_b128 v48, v[40:43]
        s_add_u32 {sT}, {sFAST}, 1
        v_mov_b32 v50, {sT}
        v_mov_b32 v53, {L_ML + 64}
        s_waitcnt lgkmcnt(0)
        ds_write_b32 v53, v50
        s_mov_b32 s2, 1""")
        self.ret()
    def set_tags(self):
        self.a(f"""s_and_b32 {sTG[0]}, {sN}, 0xff
        s_bfe_u32 {sTG[1]}, {sN}, 0x80008
        s_bfe_u32 {sTG[2]}, {sN}, 0x80010
        s_lshr_b32 {sTG[3]}, {sN}, 24
        s_and_b32 {sH0}, {sN}, 0xffff
        s_lshr_b32 {sH1}, {sN}, 16""")
    def touch(self, srd, soff, n, pol):
        for k in range(n):
            self.a(f"buffer_load_dword v60, {srd}, {soff} offen {pol} lds\ns_add_u32 {soff}, {soff}, 8192")
    def build(self):
        a = self.a
        o = self.o
        a(f"""s_cmp_ge_u32 s2, 256
        s_cbranch_scc1 .Lend
        s_load_dwordx16 s[64:79], s[0:1], 0
        s_load_dwordx8 s[80:87], s[0:1], 64
        s_load_dwordx2 s[88:89], s[0:1], 96
        {"s_memrealtime s[94:95]" if self.stamps else ""}
        v_lshrrev_b32 v1, 6, v0
        s_and_b32 {sG}, s2, 7
        v_readfirstlane_b32 {sWAVE}, v1
        s_lshr_b32 {sC}, s2, 3
        v_and_b32 v1, 63, v0
        v_lshlrev_b32 v1, 4, v1
        v_mov_b32 v52, 0
        s_mov_b32 {sSELLO}, 0x05040100
        s_mov_b32 {sSELHI}, 0x07060302
        s_mov_b32 {sSC}, {hex(f2u(SCALE))}
        s_mov_b32 {sSPIN}, 0x40000
        s_mov_b32 {sFAST}, 0
        s_mov_b32 {sL}, 0
        s_mov_b32 {sWQ}, {L_WQA}
        s_lshl_b32 {sLDSW}, {sWAVE}, 14
        s_lshl_b32 {sAoff}, {sG}, 23
        s_lshl_b32 {sT}, {sC}, 13
        s_add_u32 {sAoff}, {sAoff}, {sT}
        s_add_u32 {sBoff}, {sAoff}, {12288*512}
        s_lshl_b32 {sT}, {sWAVE}, 21
        s_add_u32 {sAoff}, {sAoff}, {sT}
        s_lshl_b32 {sT}, {sWAVE}, 18
        s_add_u32 {sBoff}, {sBoff}, {sT}""")
        self.consts()
        a("s_waitcnt lgkmcnt(0)")
        def srd(d, lo, size):
            a(f"s_mov_b32 s{d}, s{lo}\ns_mov_b32 s{d+1}, s{lo+1}\ns_mov_b32 s{d+2}, {hex(size)}\ns_mov_b32 s{d+3}, 0x20000")
        a(f"s_load_dword {sN}, s[88:89], {EPOCH}")
        srd(28, 70, 3670016); srd(32, 72, 3670016); srd(36, 64, 896)
        a(f"""s_cmp_eq_u32 {sWAVE}, 1
        s_cselect_b32 s28, s80, s28
        s_cselect_b32 s29, s81, s29
        s_cmp_eq_u32 {sWAVE}, 3
        s_cselect_b32 s32, s82, s32
        s_cselect_b32 s33, s83, s33
        s_cmp_ge_u32 {sWAVE}, 2
        s_cbranch_scc1 .Lst_wo""")
        self.call("sub_twq")
        a("s_branch .Lst_j")
        a.label(".Lst_wo")
        self.call("sub_pfwo")
        a.label(".Lst_j")
        a(f"s_mov_b64 s[28:29], s[70:71]\ns_mov_b32 {sRL}, {L_WQA}")
        self.call("sub_wq")
        L = self.only_wave(0)
        self.call("sub_s3pre")
        a(f"""v_lshrrev_b32 v47, 1, v7
        buffer_load_dwordx4 v[40:43], v47, {XI}, 0 offen {self.nt}
        v_and_b32 v48, 0x70, v1
        v_lshrrev_b32 v48, 1, v48
        v_lshrrev_b32 v49, 9, v1
        v_lshl_add_u32 v48, v49, 2, v48
        s_lshl_b32 {sT2}, {sC}, 6
        v_add_u32 v48, {sT2}, v48
        buffer_load_dword v53, v48, {XI}, 0 offen {self.nt}""")
        a.label(L)
        tok0 = self.vm
        srd(8, 66, 0x4000000); srd(12, 68, 0x4000000)
        a("s_mov_b32 s28, s12\ns_mov_b32 s29, s13\ns_mov_b32 s30, 0x4000000")
        self.dmaA(6, L_BB)
        a(f"v_lshlrev_b32 v60, 3, v1\ns_mov_b32 m0, {L_SCR}\ns_nop 0")
        if o.get("pinxy", 1): self.touch(VA, sRS, 1, "sc1"); self.vm += 1
        srd(24, 88, WS_SIZE)
        srd(16, 76, 0x4000000); srd(20, 78, 0x4000000)
        a(f"""s_mov_b64 s[44:45], s[72:73]
        s_mov_b64 s[46:47], s[82:83]
        s_mov_b64 s[48:49], s[84:85]
        s_mov_b64 s[32:33], s[72:73]
        s_mov_b64 s[42:43], s[80:81]
        s_mov_b32 s2, 0
        s_mov_b32 {sT5}, 1""")
        if self.stamps: a(f"s_mov_b32 s{ST0}, s94")
        a(f"""s_cmp_ge_u32 {sC}, 14
        s_cselect_b32 {sT2}, 1, 0
        s_mul_i32 {sT3}, {sT2}, 14
        s_sub_u32 {sT3}, {sC}, {sT3}
        s_lshl_b32 {sWOT}, {sG}, 1
        s_add_u32 {sWOT}, {sWOT}, {sT2}
        s_mul_i32 {sWOT}, {sWOT}, {256*896}
        s_lshl_b32 {sT3}, {sT3}, 6
        s_add_u32 {sWOT}, {sWOT}, {sT3}
        s_mul_i32 {sT}, {sWAVE}, {64*896}
        s_add_u32 {sWOr[0]}, {sWOT}, {sT}
        s_add_u32 {sWOr[1]}, {sWOr[0]}, {8*896}
        s_add_u32 {sWOr[2]}, {sWOr[0]}, {16*896}
        s_add_u32 {sWOr[3]}, {sWOr[0]}, {24*896}
        s_lshl_b32 {sT}, {sG}, 16
        s_lshl_b32 {sT3}, {sC}, 11
        s_add_u32 {sRECP}, {sT}, {sT3}
        s_lshl_b32 {sT3}, {sT2}, 10
        s_add_u32 {sT}, {sT}, {sT3}
        s_lshl_b32 {sT3}, {sWAVE}, 8
        s_add_u32 {sRECG[0]}, {sT}, {sT3}
        s_add_u32 {sRECG[1]}, {sRECG[0]}, 4096
        s_add_u32 {sRECG[2]}, {sRECG[0]}, 8192
        s_add_u32 {sRECG[3]}, {sRECG[0]}, 12288
        s_lshl_b32 {sT}, {sG}, 9
        s_add_u32 {sT}, {sT}, {LAM}
        s_lshl_b32 {sT3}, {sC}, 3
        s_add_u32 {sLAMP}, {sT}, {sT3}
        s_lshl_b32 {sT3}, {sT2}, 8
        s_add_u32 {sLAMG}, {sT}, {sT3}
        s_mul_i32 {sT}, {sG}, 28
        s_add_u32 {sT}, {sT}, {sC}
        s_lshl_b32 {sT}, {sT}, 7
        s_add_u32 {sYXP}, {sT}, {YX}
        s_lshl_b32 {sT}, {sG}, 15
        {"s_mov_b32 " + sT + ", 0" if o["ycopies"] == 1 else "s_nop 0"}
        s_lshl_b32 {sT3}, {sC}, 7
        s_add_u32 {sT}, {sT}, {sT3}
        s_add_u32 {sYXG}, {sT}, {YX}
        s_add_u32 {sYXG2}, {sYXG}, {8*1792}
        s_lshl_b32 {sT}, {sG}, 11
        s_add_u32 {sXSo}, {sT}, {XS}
        s_add_u32 {sQSG}, {sT}, {QS}
        s_lshl_b32 {sT3}, {sC}, 6
        s_add_u32 {sQSP}, {sQSG}, {sT3}""")
        a(f"s_waitcnt lgkmcnt(0)\ns_add_u32 {sN}, {sN}, 1")
        self.set_tags()
        self.dmaA(7, L_BB + 8192)
        a(f"v_lshlrev_b32 v60, 3, v1\ns_mov_b32 m0, {L_SCR}\ns_nop 0")
        if o.get("pinxy", 1): self.touch(VA, sRS, 1, "sc1"); self.vm += 1
        a(f"s_mov_b64 s[28:29], s[42:43]\ns_mov_b32 s30, 3670016\ns_mov_b32 {sRL}, {L_WQB}")
        self.call("sub_wq")
        a("s_mov_b32 s28, s20\ns_mov_b32 s29, s21\ns_mov_b32 s30, 0x4000000")
        a(f"v_mov_b32 v46, 0\nv_mov_b32 v47, 0\nv_mov_b32 v45, {L_ML + 64}\nds_write_b64 v45, v[46:47]\ns_waitcnt lgkmcnt(0)")
        self.waitvm(tok0)
        a("s_barrier")
        L = self.only_wave(0)
        a(f"""v_lshrrev_b32 v48, 2, v1
        v_add_u32 v48, {L_XO}, v48
        ds_write_b32 v48, v53""")
        self.call("sub_s3w")
        for i in range(4):
            a(f"v_lshlrev_b32 v{44+2*i}, 16, v{40+i}\nv_and_b32 v{45+2*i}, 0xffff0000, v{40+i}")
        self.call("sub_s3b")
        a(f"""v_mov_b32 v49, {sN}
        v_perm_b32 v40, v52, v49, {sSELLO}
        v_perm_b32 v41, v52, v49, {sSELHI}
        v_perm_b32 v42, v53, v49, {sSELLO}
        v_perm_b32 v43, v53, v49, {sSELHI}
        s_getreg_b32 {sT2}, hwreg(HW_REG_XCC_ID, 0, 4)
        s_mul_i32 {sT3}, {sC}, 48
        s_sub_u32 {sT3}, {XCCS - QS}, {sT3}
        v_writelane_b32 v40, {sT2}, 1
        v_writelane_b32 v41, {sN}, 1
        v_writelane_b32 v48, {sT3}, 1
        s_mov_b32 exec_lo, 0x10003
        s_mov_b32 exec_hi, 0x10001
        buffer_store_dwordx4 v[40:43], v48, {WS}, {sQSP} offen sc1
        s_mov_b64 exec, -1""")
        self.consts()
        a.label(L)
        if o.get("ss"): self.stamp()
        g0 = o.get("g0", 4)
        for t in range(g0): self.loadK_reg(t)
        L = self.only_wave(0)
        self.call("sub_g0issue")
        a.label(L)
        for t in range(g0, 8):
            self.loadK_reg(t)
            L = self.only_wave(0)
            a(f"s_cmp_lg_u32 s2, 0\ns_cbranch_scc1 {L}\ns_waitcnt vmcnt(8)")
            if t == 7: a.label(".Lg0loop")
            self.call("sub_g0check")
            a(f"s_cmp_lg_u32 s2, 0\ns_cbranch_scc1 {L}")
            self.call("sub_g0issue")
            if t == 7: a("s_waitcnt vmcnt(0)\ns_branch .Lg0loop")
            a.label(L)
        tokK = self.vm
        if o.get("ss"): self.stamp()
        a(f"s_add_u32 s24, s24, {BLK}\ns_addc_u32 s25, s25, 0")
        toks = []
        for t in range(4):
            toks.append(self.loadV_reg(t))
            L = self.only_wave((t + 1) % 4 if o.get("stag", 1) else 99)
            if not o.get("stag", 1) and t == 1: a.label(L); L = a.newlabel("x")
            Lq = a.newlabel("qf")
            a(f"v_mov_b32 v46, {L_ML + 64}")
            a.label(Lq)
            a(f"""ds_read_b32 v44, v46
            s_waitcnt lgkmcnt(0)
            v_readfirstlane_b32 {sFAST}, v44
            s_nop 3
            s_cmp_eq_u32 {sFAST}, 0
            s_cbranch_scc1 {Lq}
            s_sub_u32 {sFAST}, {sFAST}, 1""")
            self.waitvm(tokK)
            self.call("sub_qka0")
            self.call("sub_qka1")
            a.label(L)
        if o.get("ss"): self.stamp()
        tokV1, tokV3 = toks[1], toks[3]
        self.waitvm(tokV1)
        self.call("sub_pv01")
        vm0 = self.vm
        a(f"s_cmp_eq_u32 {sWAVE}, 0\ns_cbranch_scc1 .Lkb_done")
        self.dma("K", sBoff, 0, sLDSW, L_KB)
        self.dma("K", sBoff, TILE, sLDSW, L_KB + 8192)
        a(f"""s_cmp_eq_u32 {sWAVE}, 3
        s_cbranch_scc1 .Lkb_done
        s_lshl_b32 {sT}, {sWAVE}, 18
        s_sub_u32 {sRS}, {sBoff}, {sT}
        s_sub_u32 {sT2}, {sWAVE}, 1
        s_lshl_b32 {sT3}, {sT2}, 20
        s_add_u32 {sRS}, {sRS}, {sT3}
        s_lshl_b32 {sRL}, {sT2}, 13""")
        self.call("sub_dmaK")
        a.label(".Lkb_done")
        self.vm = vm0
        self.loadV_reg(4)
        self.waitvm(tokV3)
        self.call("sub_pv23")
        tokV5 = self.loadV_reg(5)
        if o.get("ss"): self.stamp()
        self.waitvm(tokV5)
        if o.get("ss"): self.stamp()
        self.call("sub_pv45")
        a(f"s_add_u32 {sPV}, {sLDSW}, {L_BB}")
        self.call("sub_pvlds")
        a.label(".Lchain")
        a(f"s_cmp_ge_u32 {sC}, 28\ns_cbranch_scc1 .Lno_wo")
        self.ldwo()
        a.label(".Lno_wo")
        self.stamp()
        self.call("sub_s0")
        self.stamp()
        a(f"s_cmp_ge_u32 {sC}, 28\ns_cbranch_scc1 .Lno_s1")
        self.call("sub_s1")
        a("s_branch .Ls1_end")
        a.label(".Lno_s1")
        a("s_barrier")
        a.label(".Ls1_end")
        self.stamp()
        a(f"""s_cmp_eq_u32 {sL}, 3
        s_cbranch_scc1 .Lfinal
        s_bitcmp1_b32 {sL}, 0
        s_cselect_b32 s32, s44, s46
        s_cselect_b32 s33, s45, s47
        s_cselect_b32 {sWQ}, {L_WQA}, {sWQ}
        s_cbranch_scc1 .Lwqset
        s_mov_b32 {sWQ}, {L_WQB}""")
        a.label(".Lwqset")
        a(f"s_cmp_lg_u32 {sWAVE}, 0\ns_cbranch_scc1 .Lloader")
        self.call("sub_s3pre")
        self.call("sub_s3w")
        a(f"s_cmp_ge_u32 {sC}, 14\ns_cbranch_scc1 .Lno_s2")
        self.call("sub_s2")
        a(f"""v_mov_b32 v41, {sN}
        v_lshlrev_b32 v42, 1, v42
        v_perm_b32 v44, v40, v41, {sSELLO}
        v_perm_b32 v45, v40, v41, {sSELHI}
        s_mov_b32 exec_lo, 0xff
        s_mov_b32 exec_hi, 0xff""")
        self.local_store(f"buffer_store_dwordx2 v[44:45], v42, {WS}, {sXSo} offen")
        a("s_mov_b64 exec, -1\nds_write_b32 v3, v40")
        a.label(".Lno_s2")
        self.stamp()
        a(f"""s_add_u32 s36, s24, {sXSo}
        s_addc_u32 s37, s25, 0
        s_mov_b32 s38, 1792""")
        self.call("sub_s3")
        self.pub_q()
        self.stamp()
        self.call("sub_s4")
        a(f"v_mov_b32 v44, {L_ML + 68}\nv_mov_b32 v45, 1\nds_write_b32 v44, v45\ns_branch .Lqready")
        a.label(".Lloader")
        self.consts()
        a(f"s_cmp_lg_u32 {sL}, 0\ns_cbranch_scc1 .Lld_n0")
        def job(kind):
            Lu, Le = a.newlabel("ju"), a.newlabel("je")
            a(f"""v_mov_b32 v44, {L_ML + 68}
            ds_read_b32 v45, v44
            s_waitcnt lgkmcnt(0)
            v_readfirstlane_b32 {sT}, v45
            s_nop 3
            s_cmp_eq_u32 {sT}, 1
            s_cbranch_scc1 {Lu}""")
            self.call(f"sub_dma{kind}p")
            a(f"s_branch {Le}")
            a.label(Lu)
            self.call(f"sub_dma{kind}")
            a.label(Le)
        a(f"s_cmp_eq_u32 {sWAVE}, 1\ns_cbranch_scc1 .Lld_own")
        a(f"""s_lshl_b32 {sT}, {sWAVE}, 18
        s_sub_u32 {sRS}, {sBoff}, {sT}
        s_sub_u32 {sT2}, {sWAVE}, 2
        s_lshl_b32 {sT3}, {sT2}, 20
        s_add_u32 {sRS}, {sRS}, {sT3}
        s_lshl_b32 {sRL}, {sT2}, 13
        s_add_u32 {sRL}, {sRL}, {L_BB}""")
        job("V")
        a.label(".Lld_own")
        a(f"s_mov_b32 {sRS}, {sBoff}\ns_add_u32 {sRL}, {sLDSW}, {L_BB}")
        job("V")
        a(f"s_add_u32 {sRS}, {sBoff}, {TILE}\ns_add_u32 {sRL}, {sLDSW}, {L_BB + 8192}")
        job("V")
        a("s_branch .Lld_done")
        a.label(".Lld_n0")
        a(f"s_cmp_lg_u32 {sL}, 1\ns_cbranch_scc1 .Lld_done")
        L = self.only_wave(1)
        for w in range(4):
            a(f"s_add_u32 {sRS}, {sBoff}, {TILE + (w-1)*262144}")
            for n in range(2):
                a(f"s_mov_b32 m0, {L_BB + w*16384 + 8192 + n*1024 - n*256}\ns_nop 0")
                a(f"buffer_load_dwordx4 v3, {VBs}, {sRS} offen offset:{n*256} {self.nt} lds")
        a("s_waitcnt vmcnt(0)")
        a.label(L)
        L = self.only_wave(2)
        self.call("sub_qk2")
        self.call("sub_pv67a")
        a.label(L)
        a.label(".Lld_done")
        self.stamp(); self.stamp()
        a.label(".Lqready")
        a(f"""s_add_u32 {sL}, {sL}, 1
        s_add_u32 s24, s24, {BLK}
        s_addc_u32 s25, s25, 0
        s_barrier""")
        self.stamp()
        a(f"s_cmp_eq_u32 {sL}, 2\ns_cbranch_scc1 .LlayerA\ns_cmp_eq_u32 {sL}, 3\ns_cbranch_scc1 .Llayer3")
        self.call("sub_qkb")
        if o.get("fine"): self.stamp()
        a("s_waitcnt vmcnt(0)\ns_barrier")
        if o.get("fine"): self.stamp()
        self.call("sub_pvlds")
        a("s_branch .Lchain")
        a.label(".LlayerA")
        self.call("sub_qka0"); self.call("sub_qka1")
        if o.get("fine"): self.stamp()
        for t in range(2):
            self.aoff(6 + t, sT)
            for n in range(8):
                a(f"buffer_load_dwordx4 a[{t*32+n*4}:{t*32+n*4+3}], v3, {VA}, {sT} offen offset:{(n>>1)*512+(n&1)*256} {self.nt}")
        if o.get("fine"): self.stamp()
        self.call("sub_pv01")
        if o.get("fine"): self.stamp()
        a(f"v_add_u32 v61, {sLDSW}, v1\nv_add_u32 v60, {sPV}, v1")
        for n in range(8): a(f"ds_read_b128 a[{64+4*n}:{67+4*n}], v61 offset:{n*1024}")
        self.call("sub_pv23")
        for n in range(8, 16): a(f"ds_read_b128 a[{64+4*n}:{67+4*n}], v61 offset:{n*1024}")
        for n in range(6): a(f"ds_read_b128 v[{64+4*n}:{67+4*n}], v60 offset:{n*1024}")
        self.call("sub_pv45")
        for n in range(6, 16): a(f"ds_read_b128 v[{64+4*n}:{67+4*n}], v60 offset:{n*1024}")
        if o.get("fine"): self.stamp()
        a("s_waitcnt vmcnt(0)")
        if o.get("fine"): self.stamp()
        self.call("sub_pv67a")
        a("s_waitcnt lgkmcnt(0)\ns_branch .Lchain")
        a.label(".Llayer3")
        self.call("sub_qk2")
        self.call("sub_pv01")
        a("s_branch .Lchain")
        a.label(".Lfinal")
        a(f"""s_cmp_lg_u32 {sG}, 0
        s_cbranch_scc1 .Lfin
        s_cmp_ge_u32 {sC}, 14
        s_cbranch_scc1 .Lfin
        s_cmp_lg_u32 {sWAVE}, 0
        s_cbranch_scc1 .Lfin""")
        self.call("sub_s2")
        a(f"""s_mov_b32 s36, s48
        s_mov_b32 s37, s49
        s_mov_b32 s38, 896
        s_mov_b32 exec_lo, 0xff
        s_mov_b32 exec_hi, 0xff
        buffer_store_dword v40, v42, {XI}, 0 offen
        s_mov_b64 exec, 1
        s_cmp_lg_u32 {sC}, 0
        s_cbranch_scc1 .Lnoep
        s_sub_u32 s24, s24, {4*BLK}
        s_subb_u32 s25, s25, 0
        v_mov_b32 v41, {sN}
        v_mov_b32 v43, {EPOCH}
        buffer_store_dword v41, v43, {WS}, 0 offen
        s_add_u32 s24, s24, {4*BLK}
        s_addc_u32 s25, s25, 0
.Lnoep:
        s_mov_b64 exec, -1""")
        a.label(".Lfin")
        if self.stamps:
            a(f"s_mov_b32 {sT5}, {NSTAMP-1}")
            self.stamp(True)
            n = NSTAMP
            a(f"""s_lshl_b32 {sT}, {sC}, 3
            s_add_u32 {sT}, {sT}, {sG}
            s_lshl_b32 {sT}, {sT}, 2
            s_add_u32 {sT}, {sT}, {sWAVE}
            s_mul_i32 {sT}, {sT}, {n*8}
            s_add_u32 {sT}, {sT}, {STAMP - 4*BLK}
            v_mov_b32 v8, 0""")
            for i in range(n):
                a(f"v_mov_b32 v10, s{ST0+i}\nv_mov_b32 v11, 0\nbuffer_store_dwordx2 v[10:11], v8, {WS}, {sT} offen offset:{i*8}\ns_nop 1")
        a.label(".Lend")
        a("s_endpgm")
        self.sub_s4(); self.sub_qka(); self.sub_qkb(); self.sub_qk2()
        self.sub_pvreg("sub_pv01", [0, 1]); self.sub_pvreg("sub_pv23", [2, 3]); self.sub_pvreg("sub_pv45", [4, 5]); self.sub_pvreg("sub_pv67a", [6, 7], agpr=True)
        self.sub_pvlds(); self.sub_pfwo(); self.sub_s0(); self.sub_s1(); self.sub_s2(); self.sub_s3pre(); self.sub_s3()
        self.sub_dma("K"); self.sub_dma("V"); self.sub_dma("K", True); self.sub_dma("V", True); self.sub_wq(); self.sub_twq(); self.sub_g0()
        return wrap(a.text())

if __name__ == "__main__":
    open(f"k5a_1.s", "w").write(K(stamps=(0, 0), g0=3, pace=8, ss=1).build())
    open(f"k5a_2.s", "w").write(K(stamps=(0, 0), g0=3, pace=8, ss=1, pinxy=0).build())
    open(f"k5a_3.s", "w").write(K(stamps=(0, 0), g0=3, pace=8, ss=1, pinxy=0, pinwo=0).build())
    open("k5.s", "w").write(K(g0=3, pace=8).build())
```

```python
import sys, struct
from asmlib import *

BLK = 0x100000
REC = 0
YX  = 0x80000
LAM = 0xC0000
XS  = 0xC2000
QS  = 0xC8000
STAMP = 0x600000
WS_SIZE = 0x800000
L_KB = 0
L_BB = 65536
L_WQA = 131072
L_WQB = L_WQA + 14336
L_ML = L_WQB + 14336
L_Q = L_ML + 128
L_YP = L_Q + 1024
L_SCR = L_YP + 512
L_XO = L_SCR + 256
LDS_TOTAL = 163840
assert L_XO + 256 <= LDS_TOTAL
SCALE = 0.0625 * 1.4426950408889634
def f2u(x): return struct.unpack("<I", struct.pack("<f", x))[0]

sWAVE, sG, sC = "s3", "s4", "s5"
sSELLO, sSELHI = "s6", "s7"
KA, VA, KBs, VBs, WS, RL, WO, XI, DBG = "s[8:11]", "s[12:15]", "s[16:19]", "s[20:23]", "s[24:27]", "s[28:31]", "s[32:35]", "s[36:39]", "s[40:43]"
sRS, sRL, sWQ, sWOT = "s50", "s51", "s52", "s53"
sAoff, sBoff, sT, sSC, sFAST, sL = "s54", "s55", "s56", "s57", "s58", "s59"
sT2, sT3, sSPIN, sLDSW = "s60", "s61", "s62", "s63"
RET = "s[64:65]"
sPV, sT4, sT5 = "s66", "s67", "s68"
sRECP, sLAMP, sLAMG, sYXP, sYXG, sYXG2, sXSo, sQSG, sQSP = ["s%d" % i for i in range(69, 78)]
sRECG = ["s78", "s79", "s80", "s81"]
sWOr = ["s82", "s83", "s84", "s85"]
sTG = ["s86", "s87", "s88", "s89"]
sN, sH0, sH1 = "s90", "s91", "s92"
ST0 = 93
NSTAMP = 9
EPOCH = 0xD0000
XCCS = 0xCC000
TILE = 1048576

class K:
    def __init__(self, stamps=None, nt="nt", **opt):
        self.a = Asm()
        self.stamps = stamps
        self.nt = nt
        self.vm = 0
        self.o = dict(pace=6, ycopies=8)
        self.o.update(opt)
    def stamp(self, always=False):
        if not self.stamps: return
        a = self.a
        L = a.newlabel("st")
        if not always:
            a(f"s_cmp_lt_u32 {sL}, {self.stamps[0]}\ns_cbranch_scc1 {L}\ns_cmp_gt_u32 {sL}, {self.stamps[1]}\ns_cbranch_scc1 {L}")
        a(f"s_cmp_ge_u32 {sT5}, {NSTAMP}\ns_cbranch_scc1 {L}")
        a(f"s_memrealtime s[0:1]\ns_mov_b32 m0, {sT5}\ns_waitcnt lgkmcnt(0)\ns_movreld_b32 s{ST0}, s0\ns_add_u32 {sT5}, {sT5}, 1")
        a.label(L)
    def vmem(self, ins):
        self.a(ins); self.vm += 1
        return self.vm
    def waitvm(self, tok):
        n = self.vm - tok
        if n <= 63: self.a(f"s_waitcnt vmcnt({n})")
    def call(self, name): self.a(f"s_call_b64 {RET}, {name}")
    def ret(self): self.a(f"s_setpc_b64 {RET}")
    def only_wave(self, w):
        L = self.a.newlabel("ow")
        self.a(f"s_cmp_lg_u32 {sWAVE}, {w}\ns_cbranch_scc1 {L}")
        return L

    def aoff(self, t, dst):
        self.a(f"s_add_u32 {dst}, {sG}, {t}\ns_and_b32 {dst}, {dst}, 7\ns_lshl_b32 {dst}, {dst}, 18\ns_add_u32 {dst}, {dst}, {sAoff}")
    def dmaA(self, t, loff):
        self.aoff(t, sRS)
        self.a(f"s_add_u32 {sRL}, {sLDSW}, {loff}")
        self.call("sub_dmaV")
        self.vm += 8
        return self.vm
    def loadK_reg(self, t, srd=KA):
        slot = t
        self.aoff(t, sT)
        for cc in range(8):
            tok = self.vmem(f"buffer_load_dwordx4 a[{slot*32+cc*4}:{slot*32+cc*4+3}], v2, {srd}, {sT} offen offset:{cc*64} {self.nt}")
        return tok
    def loadV_reg(self, t):
        self.aoff(t, sT)
        for n in range(8):
            b = 64 + t * 32 + n * 4
            tok = self.vmem(f"buffer_load_dwordx4 v[{b}:{b+3}], v3, {VA}, {sT} offen offset:{(n>>1)*512+(n&1)*256} {self.nt}")
        return tok
    def sub_dma(self, kind, paced=False):
        a = self.a
        a.label(f"sub_dma{kind}{'p' if paced else ''}")
        for n in range(8):
            imm = n * 64 if kind == "K" else (n >> 1) * 512 + (n & 1) * 256
            a(f"s_add_u32 m0, {sRL}, {n*1024 - imm}")
            a(f"s_waitcnt vmcnt({self.o['pace']})" if paced else "s_nop 0")
            a(f"buffer_load_dwordx4 {'v2' if kind=='K' else 'v3'}, {KBs if kind=='K' else RL}, {sRS} offen offset:{imm} {self.nt} lds")
        self.ret()
    def dma(self, kind, base, goff, ldsbase, loff, paced=False):
        a = self.a
        if goff >= 0: a(f"s_add_u32 {sRS}, {base}, {goff}")
        else: a(f"s_sub_u32 {sRS}, {base}, {-goff}")
        if ldsbase: a(f"s_add_u32 {sRL}, {ldsbase}, {loff}")
        else: a(f"s_mov_b32 {sRL}, {loff}")
        self.call(f"sub_dma{kind}{'p' if paced else ''}")
        self.vm += 8
        return self.vm
    def sub_wq(self):
        a = self.a
        a.label("sub_wq")
        a(f"""v_lshrrev_b32 v60, 5, v1
        v_lshlrev_b32 v60, 13, v60
        v_and_b32 v61, 16, v1
        v_add_u32 v60, v60, v61
        s_lshl_b32 {sT}, {sG}, 10
        s_lshl_b32 {sT2}, {sC}, 5
        s_add_u32 {sT}, {sT}, {sT2}
        s_lshl_b32 {sT2}, {sWAVE}, 18
        s_add_u32 {sT}, {sT}, {sT2}
        s_lshl_b32 {sT2}, {sWAVE}, 10
        s_add_u32 m0, {sRL}, {sT2}""")
        for n in range(4):
            if n == 3: a(f"s_cmp_ge_u32 {sWAVE}, 2\ns_cbranch_scc1 .Lwq_end")
            a(f"s_nop 0\nbuffer_load_dwordx4 v60, {RL}, {sT} offen {self.nt} lds")
            if n < 3: a(f"s_add_u32 {sT}, {sT}, {4*262144}\ns_add_u32 m0, m0, 4096")
        a.label(".Lwq_end")
        self.ret()
    def sub_twq(self):
        a = self.a
        a.label("sub_twq")
        a(f"""v_lshrrev_b32 v60, 7, v1
        v_lshlrev_b32 v60, 13, v60
        v_and_b32 v61, 0x70, v1
        v_lshl_add_u32 v60, v61, 3, v60
        s_lshl_b32 {sT}, {sG}, 10
        s_mul_i32 {sT2}, {sC}, {14*8192}
        s_add_u32 {sT}, {sT}, {sT2}
        s_add_u32 {sT2}, {sT}, {6*8192}
        s_mov_b32 m0, {L_SCR}
        s_nop 0
        buffer_load_dword v60, {RL}, {sT} offen {self.nt} lds
        buffer_load_dword v60, {RL}, {sT2} offen {self.nt} lds""")
        self.ret()

    def validate(self, groups, tmp, lanemask=None):
        a = self.a
        accs = []
        for gi, (mask, items) in enumerate(groups):
            t = tmp[gi]
            for r, tg in items: a(f"v_xor_b32 {r}, {tg}, {r}")
            rs = [r for r, _ in items]
            if len(rs) == 1:
                if mask == 0xffffffff:
                    accs.append(rs[0]); continue
                a(f"v_mov_b32 {t}, {rs[0]}")
            elif len(rs) == 2: a(f"v_or_b32 {t}, {rs[0]}, {rs[1]}")
            else:
                a(f"v_or3_b32 {t}, {rs[0]}, {rs[1]}, {rs[2]}")
                k = 3
                while k < len(rs):
                    if k + 1 < len(rs): a(f"v_or3_b32 {t}, {t}, {rs[k]}, {rs[k+1]}"); k += 2
                    else: a(f"v_or_b32 {t}, {t}, {rs[k]}"); k += 1
            if mask != 0xffffffff: a(f"v_and_b32 {t}, {hex(mask)}, {t}")
            accs.append(t)
        for t in accs[1:]: a(f"v_or_b32 {accs[0]}, {accs[0]}, {t}")
        a(f"v_cmp_ne_u32 vcc, 0, {accs[0]}")
        if lanemask is not None:
            a(f"s_nop 0\ns_and_b32 vcc_lo, vcc_lo, {hex(lanemask)}\ns_and_b32 vcc_hi, vcc_hi, {hex(lanemask)}\ns_or_b32 {sT4}, vcc_lo, vcc_hi")
    def poll(self, loads, groups, tmp, shadow=None, lanemask=None):
        a = self.a
        Lp, Ld, Lw = a.newlabel("poll"), a.newlabel("pdone"), a.newlabel("pw")
        if shadow:
            for l in loads: a(l)
            shadow()
            a(f"s_branch {Lw}")
        a.label(Lp)
        for l in loads: a(l)
        a.label(Lw)
        a("s_waitcnt vmcnt(0)")
        self.validate(groups, tmp, lanemask)
        a(f"s_cbranch_vccz {Ld}" if lanemask is None else f"s_cbranch_scc0 {Ld}")
        a(f"""s_cmp_eq_u32 {sSPIN}, 0
        s_cbranch_scc1 {Ld}
        s_sub_u32 {sSPIN}, {sSPIN}, 1
        s_branch {Lp}""")
        a.label(Ld)
    def t16(self, base, n):
        return (0xffff, [(f"v{base+i}", sH0 if i % 2 == 0 else sH1) for i in range(n)])
    def t8(self, regs):
        return (0xff, [(r, sTG[i % 4]) for i, r in enumerate(regs)])
    def local_store(self, *ins):
        a = self.a
        Lf, Ld = a.newlabel("fs"), a.newlabel("fd")
        a(f"s_cmp_eq_u32 {sFAST}, 1\ns_cbranch_scc1 {Lf}")
        for i in ins: a(i + " sc1")
        a(f"s_branch {Ld}")
        a.label(Lf)
        for i in ins: a(i)
        a.label(Ld)
    def xgroup(self, op, xs, ts):
        a = self.a
        n = len(xs)
        for sw in ("v_permlane16_swap_b32", "v_permlane32_swap_b32"):
            for x, t in zip(xs, ts): a(f"v_mov_b32 {t}, {x}")
            if n < 3: a(f"s_nop {2-n}")
            for x, t in zip(xs, ts): a(f"{sw} {x}, {t}")
            for x, t in zip(xs, ts): a(f"{op} {x}, {x}, {t}")

    def q_loads(self):
        return [f"buffer_load_dwordx4 v[40:43], v49, {WS}, {sQSG} offen sc1", f"buffer_load_dwordx4 v[44:47], v49, {WS}, {sQSG} offen offset:16 sc1"]
    def sub_s4(self):
        a = self.a
        a.label("sub_s4")
        a("v_lshlrev_b32 v49, 1, v1")
        self.poll(self.q_loads(), [self.t16(40, 8)], ["v48"], shadow=self.consts)
        a.label("sub_s4b")
        for i in range(4): a(f"v_perm_b32 v{40+i}, v{41+2*i}, v{40+2*i}, {sSELHI}")
        a(f"""v_add_u32 v48, {L_Q}, v1
        ds_write_b128 v48, v[40:43]
        s_waitcnt lgkmcnt(0)""")
        self.ret()
    def qaddr(self, dst):
        self.a(f"""v_bfe_u32 {dst}, v1, 7, 1
        v_lshlrev_b32 {dst}, 9, {dst}
        v_bfe_u32 v63, v1, 8, 2
        v_lshl_add_u32 {dst}, v63, 4, {dst}
        v_add_u32 {dst}, {L_Q}, {dst}""")
    def softmax_prep(self, sregs):
        a = self.a
        for i in range(8): a(f"v_mov_b32 v{40+i}, 0")
        n = len(sregs)
        h = n // 2
        for acc, rs in (("v56", sregs[:h]), ("v57", sregs[h:])):
            pass
        A, B = sregs[:h], sregs[h:]
        a(f"v_max3_f32 v56, {A[0]}, {A[1]}, {A[2]}\nv_max3_f32 v57, {B[0]}, {B[1]}, {B[2]}")
        k = 3
        while k + 1 < h:
            a(f"v_max3_f32 v56, v56, {A[k]}, {A[k+1]}\nv_max3_f32 v57, v57, {B[k]}, {B[k+1]}"); k += 2
        a(f"v_max3_f32 v56, v56, {A[k]}, {B[k]}\nv_max_f32 v56, v56, v57")
        self.xgroup("v_max_f32", ["v56"], ["v58"])
        a(f"v_mul_f32 v56, {sSC}, v56\nv_sub_f32 v56, 0, v56")
        G = 8
        for g0 in range(0, n, G):
            rs = sregs[g0:g0+G]
            for r in rs: a(f"v_fma_f32 {r}, {r}, {sSC}, v56")
            for r in rs: a(f"v_exp_f32 {r}, {r}")
            for i, r in enumerate(rs):
                acc = "v57" if i % 2 == 0 else "v58"
                if g0 == 0 and i < 2: a(f"v_mov_b32 {acc}, {r}")
                else: a(f"v_add_f32 {acc}, {acc}, {r}")
                a(f"v_cvt_pk_bf16_f32 {r}, {r}, {r}")
        a("v_add_f32 v57, v57, v58")
    def sub_qka(self):
        a = self.a
        for part in range(2):
            a.label(f"sub_qka{part}")
            for k in range(4):
                a(f"ds_read_b128 v[{40+4*k}:{43+4*k}], v62 offset:{(part*4+k)*64}")
            for k in range(4):
                cc = part * 4 + k
                a(f"s_waitcnt lgkmcnt({3-k})")
                for t in range(8):
                    c = "0" if cc == 0 else f"v[{8+4*t}:{11+4*t}]"
                    a(f"v_mfma_f32_16x16x32_bf16 v[{8+4*t}:{11+4*t}], a[{t*32+cc*4}:{t*32+cc*4+3}], v[{40+4*k}:{43+4*k}], {c}")
            if part == 1:
                self.softmax_prep([f"v{8+i}" for i in range(32)])
            self.ret()
    def sub_qk2(self):
        a = self.a
        a.label("sub_qk2")
        for k in range(8):
            a(f"ds_read_b128 v[{16+4*k}:{19+4*k}], v62 offset:{k*64}")
        for cc in range(8):
            a(f"s_waitcnt lgkmcnt({7-cc})")
            for t in range(2):
                c = "0" if cc == 0 else f"v[{8+4*t}:{11+4*t}]"
                a(f"v_mfma_f32_16x16x32_bf16 v[{8+4*t}:{11+4*t}], a[{64+t*32+cc*4}:{64+t*32+cc*4+3}], v[{16+4*cc}:{19+4*cc}], {c}")
        self.softmax_prep([f"v{8+i}" for i in range(8)])
        self.ret()
    def sub_qkb(self):
        a = self.a
        a.label("sub_qkb")
        a(f"v_add_u32 v61, {sLDSW}, v1")
        def rd(cc):
            b = cc % 3
            a(f"ds_read_b128 v[{40+4*b}:{43+4*b}], v62 offset:{cc*64}")
            a(f"ds_read_b128 v[{8+8*b}:{11+8*b}], v61 offset:{cc*1024}")
            a(f"ds_read_b128 v[{12+8*b}:{15+8*b}], v61 offset:{8192 + cc*1024}")
        rd(0); rd(1)
        for cc in range(8):
            if cc + 2 < 8: rd(cc + 2)
            rem = min(8, cc + 3) - cc - 1
            a(f"s_waitcnt lgkmcnt({rem*3})")
            b = cc % 3
            for t in range(2):
                c = "0" if cc == 0 else f"v[{32+4*t}:{35+4*t}]"
                a(f"v_mfma_f32_16x16x32_bf16 v[{32+4*t}:{35+4*t}], v[{8+8*b+4*t}:{11+8*b+4*t}], v[{40+4*b}:{43+4*b}], {c}")
            a("s_nop 1")
        self.softmax_prep([f"v{32+i}" for i in range(8)])
        self.ret()
    def pstep(self, s, bb):
        self.a(f"""v_and_b32 v{bb}, v4, {s}
        v_and_b32 v{bb+1}, v5, {s}
        v_and_b32 v{bb+2}, v6, {s}
        v_and_b32 v{bb+3}, v7, {s}""")
    def sub_pvreg(self, name, tiles, agpr=False):
        a = self.a
        a.label(name)
        steps = [(t, r) for t in tiles for r in range(4)]
        self.pstep(f"v{8+4*steps[0][0]+steps[0][1]}", 48)
        for k, (t, r) in enumerate(steps):
            bb = 48 + 4 * (k & 1)
            nb = 48 + 4 * ((k + 1) & 1)
            nxt = f"v{8+4*steps[k+1][0]+steps[k+1][1]}" if k + 1 < len(steps) else None
            if k == 0: a("s_nop 1")
            for hf in range(2):
                if agpr:
                    vb = (t - 6) * 32 + (r * 2 + hf) * 4; src = f"a[{vb}:{vb+3}]"
                else:
                    vb = 64 + t * 32 + (r * 2 + hf) * 4; src = f"v[{vb}:{vb+3}]"
                a(f"v_mfma_f32_16x16x32_bf16 v[{40+4*hf}:{43+4*hf}], {src}, v[{bb}:{bb+3}], v[{40+4*hf}:{43+4*hf}]")
                if hf == 0 and nxt: self.pstep(nxt, nb)
            if nxt: a("s_nop 0")
        self.ret()
    def sub_pvlds(self):
        a = self.a
        a.label("sub_pvlds")
        a(f"v_add_u32 v61, {sPV}, v1")
        steps = [(t, r) for t in range(2) for r in range(4)]
        def rd(k):
            t, r = steps[k]; b = 8 + 8 * (k % 3)
            for hf in range(2):
                a(f"ds_read_b128 v[{b+4*hf}:{b+4*hf+3}], v61 offset:{t*8192 + (r*2+hf)*1024}")
        rd(0); rd(1); rd(2)
        self.pstep("v32", 48)
        for k, (t, r) in enumerate(steps):
            bb = 48 + 4 * (k & 1)
            if k + 1 < 8: self.pstep(f"v{32+k+1}", 48 + 4 * ((k + 1) & 1))
            issued = min(8, k + 3) if k == 0 else min(8, k + 2)
            a(f"s_waitcnt lgkmcnt({(issued - k - 1)*2})")
            b = 8 + 8 * (k % 3)
            if k + 1 >= 8: a("s_nop 0")
            for hf in range(2):
                a(f"v_mfma_f32_16x16x32_bf16 v[{40+4*hf}:{43+4*hf}], v[{b+4*hf}:{b+4*hf+3}], v[{bb}:{bb+3}], v[{40+4*hf}:{43+4*hf}]")
            if k >= 1 and k + 2 < 8: rd(k + 2)
        self.ret()
    def ldwo(self):
        a = self.a
        a(f"""v_bfe_u32 v60, v1, 4, 3
        v_bfe_u32 v61, v1, 7, 1
        v_lshl_add_u32 v60, v61, 5, v60
        v_mul_u32_u24 v60, 896, v60
        v_bfe_u32 v61, v1, 8, 2
        v_lshl_add_u32 v60, v61, 4, v60""")
        for k in range(4):
            a(f"buffer_load_dwordx4 v[{24+4*k}:{27+4*k}], v60, {WO}, {sWOr[k]} offen")
    def sub_pfwo(self):
        a = self.a
        a.label("sub_pfwo")
        a(f"""v_lshlrev_b32 v60, 3, v1
        s_mov_b32 m0, {L_SCR}
        s_lshl_b32 {sT2}, {sG}, 5
        s_add_u32 {sT2}, {sT2}, {sC}
        s_mul_i32 {sT2}, {sT2}, 14336
        s_add_u32 {sT3}, {sT2}, 6144
        buffer_load_dword v60, {WO}, {sT2} offen {self.nt} lds
        buffer_load_dword v60, {WO}, {sT3} offen {self.nt} lds
        """)
        if self.o.get("pinwo", 1): a(f"""buffer_load_dword v60, {WO}, {sT2} offen sc1 lds
        buffer_load_dword v60, {WO}, {sT3} offen sc1 lds""")
        self.ret()
    def perm_inplace(self):
        a = self.a
        free = 59
        m = [[None] * 8, [None] * 8]
        for p in range(2):
            for w in range(4):
                A = 24 + p * 8 + w; B = A + 4
                a(f"v_perm_b32 v{free}, v{B}, v{A}, {sSELLO}")
                a(f"v_perm_b32 v{A}, v{B}, v{A}, {sSELHI}")
                m[p][2 * w] = free; m[p][2 * w + 1] = A
                free = B
        return m
    def sub_s0(self):
        a = self.a
        a.label("sub_s0")
        self.xgroup("v_add_f32", ["v57"], ["v58"])
        a(f"""s_add_u32 {sT}, {sLDSW}, {L_BB + 8192}
        v_add_u32 v58, {sT}, v1
        v_sub_f32 v60, 0, v56
        v_mov_b32 v61, v57
        v_bfe_u32 v59, v1, 7, 1
        v_lshlrev_b32 v59, 5, v59
        s_lshl_b32 {sT}, {sWAVE}, 3
        s_add_u32 {sT}, {sT}, {L_ML}
        v_add_u32 v59, {sT}, v59
        ds_write_b128 v58, v[40:43]
        ds_write_b128 v58, v[44:47] offset:1024
        ds_write_b64 v59, v[60:61]
        v_lshlrev_b32 v58, 3, v0
        v_add_u32 v58, {L_BB + 8192}, v58
        v_bfe_u32 v62, v0, 4, 1
        v_lshlrev_b32 v59, 5, v62
        v_add_u32 v59, {L_ML}, v59
        v_and_b32 v60, 15, v0
        v_lshlrev_b32 v60, 3, v60
        v_lshrrev_b32 v61, 5, v0
        v_lshl_add_u32 v60, v61, 7, v60
        v_lshl_add_u32 v60, v62, 10, v60
        v_lshlrev_b32 v62, 8, v62
        v_and_b32 v61, 1, v0
        v_lshlrev_b32 v61, 4, v61
        v_lshrrev_b32 v8, v61, {sN}
        v_lshrrev_b32 v9, 8, v8
        v_mov_b32 v10, 0xff
        s_waitcnt lgkmcnt(0)
        s_barrier
        ds_read_b128 v[40:43], v59
        ds_read_b128 v[44:47], v59 offset:16
        ds_read_b64 v[48:49], v58
        ds_read_b64 v[50:51], v58 offset:16384
        ds_read_b64 v[52:53], v58 offset:32768
        ds_read_b64 v[54:55], v58 offset:49152
        s_waitcnt lgkmcnt(4)
        v_max3_f32 v56, v40, v42, v44
        v_max_f32 v56, v56, v46
        v_sub_f32 v40, v40, v56
        v_sub_f32 v42, v42, v56
        v_sub_f32 v44, v44, v56
        v_sub_f32 v46, v46, v56
        v_exp_f32 v40, v40
        v_exp_f32 v42, v42
        v_exp_f32 v44, v44
        v_exp_f32 v46, v46
        v_mul_f32 v57, v40, v41
        v_fmac_f32 v57, v42, v43
        v_fmac_f32 v57, v44, v45
        v_fmac_f32 v57, v46, v47
        v_rcp_f32 v61, v57
        s_waitcnt lgkmcnt(0)
        v_mul_f32 v48, v48, v40
        v_mul_f32 v49, v49, v40
        v_fmac_f32 v48, v50, v42
        v_fmac_f32 v49, v51, v42
        v_fmac_f32 v48, v52, v44
        v_fmac_f32 v49, v53, v44
        v_fmac_f32 v48, v54, v46
        v_fmac_f32 v49, v55, v46
        v_mul_f32 v48, v48, v61
        v_mul_f32 v49, v49, v61
        v_log_f32 v57, v57
        v_bfi_b32 v48, v10, v8, v48
        v_bfi_b32 v49, v10, v9, v49""")
        self.local_store(f"buffer_store_dwordx2 v[48:49], v60, {WS}, {sRECP} offen")
        Ls = self.only_wave(0)
        a(f"""v_add_f32 v56, v57, v56
        v_mov_b32 v57, {sN}
        s_mov_b64 exec, 0x10001""")
        self.local_store(f"buffer_store_dwordx2 v[56:57], v62, {WS}, {sLAMP} offen")
        a("s_mov_b64 exec, -1")
        a.label(Ls)
        self.ret()
    def sub_s1(self):
        a = self.a
        a.label("sub_s1")
        a(f"""v_bfe_u32 v62, v1, 8, 2
        v_lshlrev_b32 v63, 6, v62
        v_bfe_u32 v61, v1, 4, 3
        v_lshl_add_u32 v63, v61, 3, v63
        v_lshlrev_b32 v62, 14, v62
        v_and_b32 v61, 0xf0, v1
        v_add_u32 v62, v62, v61""")
        loads = []
        oregs = [8, 12, 16, 20, 40, 44, 48, 52]
        loads.append(f"buffer_load_dwordx2 v[56:57], v63, {WS}, {sLAMG} offen sc1")
        for k in range(8):
            loads.append(f"buffer_load_dwordx4 v[{oregs[k]}:{oregs[k]+3}], v62, {WS}, {sRECG[k>>1]} offen offset:{(k&1)*2048} sc1")
        regs = [f"v{o+i}" for o in oregs for i in range(4)]
        pm = []
        def shadow():
            a("s_waitcnt vmcnt(9)")
            pm.append(self.perm_inplace())
        self.poll(loads, [self.t8(regs), (0xffffffff, [("v57", sN)])], ["v58", "v60"], shadow=shadow)
        m = pm[0]
        a(f"""v_max_f32_dpp v58, v56, v56 row_ror:1 row_mask:0xf bank_mask:0xf
        s_nop 1
        v_max_f32_dpp v58, v58, v58 row_ror:2 row_mask:0xf bank_mask:0xf
        s_nop 1
        v_max_f32_dpp v58, v58, v58 row_ror:4 row_mask:0xf bank_mask:0xf""")
        self.xgroup("v_max_f32", ["v58"], ["v60"])
        a(f"""v_sub_f32 v56, v56, v58
        v_exp_f32 v56, v56
        s_nop 1""")
        for i in range(4): a(f"v_mul_f32_dpp v{8+i}, v56, v{8+i} row_newbcast:0 row_mask:0xf bank_mask:0xf")
        a("v_add_f32_dpp v58, v56, v56 row_ror:1 row_mask:0xf bank_mask:0xf")
        for k in range(1, 8):
            for i in range(4): a(f"v_fmac_f32_dpp v{8+i}, v56, v{oregs[k]+i} row_newbcast:{k} row_mask:0xf bank_mask:0xf")
            if k == 1: a("v_add_f32_dpp v58, v58, v58 row_ror:2 row_mask:0xf bank_mask:0xf")
            if k == 2: a("v_add_f32_dpp v58, v58, v58 row_ror:4 row_mask:0xf bank_mask:0xf")
        self.xgroup("v_add_f32", ["v58", "v8", "v9", "v10", "v11"], ["v60", "v12", "v13", "v14", "v15"])
        a(f"""v_rcp_f32 v58, v58
        v_lshrrev_b32 v62, 6, v1
        v_mul_f32 v8, v8, v58
        v_mul_f32 v9, v9, v58
        v_mul_f32 v10, v10, v58
        v_mul_f32 v11, v11, v58
        v_cvt_pk_bf16_f32 v8, v8, v9
        v_cvt_pk_bf16_f32 v9, v10, v11
        v_lshlrev_b32 v62, 3, v62""")
        for k in range(8): a(f"v_dot2_f32_bf16 v{40+k}, v{m[0][k]}, v8, 0")
        for k in range(8): a(f"v_dot2_f32_bf16 v{40+k}, v{m[1][k]}, v9, v{40+k}")
        a(f"""s_lshl_b32 {sT}, {sWAVE}, 7
        s_add_u32 {sT}, {sT}, {L_YP}
        v_add_u32 v62, {sT}, v62""")
        for k in range(4):
            a(f"v_add_f32_dpp v{40+k}, v{40+k}, v{40+k} row_ror:8 row_mask:0xf bank_mask:0x3")
        for k in range(4):
            a(f"v_add_f32_dpp v{40+k}, v{44+k}, v{44+k} row_ror:8 row_mask:0xf bank_mask:0xc")
        for k in range(2):
            a(f"v_add_f32_dpp v{40+k}, v{40+k}, v{40+k} row_shl:4 row_mask:0xf bank_mask:0x5")
        for k in range(2):
            a(f"v_add_f32_dpp v{40+k}, v{42+k}, v{42+k} row_shr:4 row_mask:0xf bank_mask:0xa")
        a("s_nop 0")
        for k in range(2): a(f"v_add_f32_dpp v{40+k}, v{40+k}, v{40+k} quad_perm:[2,3,0,1] row_mask:0xf bank_mask:0xf")
        a("s_nop 0")
        for k in range(2): a(f"v_add_f32_dpp v{40+k}, v{40+k}, v{40+k} quad_perm:[1,0,3,2] row_mask:0xf bank_mask:0xf")
        a(f"""ds_write_b64 v62, v[40:41]
        v_and_b32 v42, 0x70, v1
        v_add_u32 v43, {L_YP}, v42
        v_lshrrev_b32 v44, 7, v1
        v_lshl_add_u32 v42, v44, 15, v42
        v_mov_b32 v45, 0xff
        s_cmp_lg_u32 {sWAVE}, 0
        s_waitcnt lgkmcnt(0)
        s_barrier
        s_cbranch_scc1 .Ls1_done
        ds_read_b128 v[8:11], v43
        ds_read_b128 v[12:15], v43 offset:128
        ds_read_b128 v[16:19], v43 offset:256
        ds_read_b128 v[20:23], v43 offset:384
        s_waitcnt lgkmcnt(2)""")
        for i in range(4): a(f"v_add_f32 v{8+i}, v{8+i}, v{12+i}")
        a("s_waitcnt lgkmcnt(0)")
        for i in range(4): a(f"v_add_f32 v{16+i}, v{16+i}, v{20+i}")
        for i in range(4): a(f"v_add_f32 v{8+i}, v{8+i}, v{16+i}")
        for i in range(4): a(f"v_bfi_b32 v{8+i}, v45, {sTG[i]}, v{8+i}")
        if self.o["ycopies"] == 1: a("s_mov_b64 exec, 0xff")
        a(f"buffer_store_dwordx4 v[8:11], v42, {WS}, {sYXP} offen sc1\ns_mov_b64 exec, -1\ns_nop 0")
        a.label(".Ls1_done")
        self.ret()
    def consts(self):
        self.a(f"""v_bfe_u32 v58, v1, 4, 4
        v_bfe_u32 v59, v1, 8, 2
        v_lshlrev_b32 v2, 9, v58
        v_lshl_add_u32 v2, v59, 4, v2
        v_lshlrev_b32 v3, 11, v59
        v_lshl_add_u32 v3, v58, 4, v3
        v_and_b32 v59, 1, v58
        v_lshlrev_b32 v59, 4, v59
        v_mov_b32 v60, 0xffff
        v_lshlrev_b32 v60, v59, v60
        v_bfe_u32 v59, v58, 1, 2
        v_cmp_eq_u32 vcc, 0, v59
        s_nop 1
        v_cndmask_b32 v4, 0, v60, vcc
        v_cmp_eq_u32 vcc, 1, v59
        s_nop 1
        v_cndmask_b32 v5, 0, v60, vcc
        v_cmp_eq_u32 vcc, 2, v59
        s_nop 1
        v_cndmask_b32 v6, 0, v60, vcc
        v_cmp_eq_u32 vcc, 3, v59
        s_nop 1
        v_cndmask_b32 v7, 0, v60, vcc""")
        self.qaddr("v62")
    def sub_s2(self):
        a = self.a
        a.label("sub_s2")
        a(f"""v_lshrrev_b32 v2, 7, v1
        v_mul_u32_u24 v2, 1792, v2
        v_and_b32 v3, 0x70, v1
        v_add_u32 v2, v2, v3
        v_lshrrev_b32 v42, 1, v3
        v_lshrrev_b32 v3, 9, v1
        v_lshl_add_u32 v42, v3, 2, v42
        s_lshl_b32 {sT2}, {sC}, 6
        v_add_u32 v42, {sT2}, v42
        v_lshrrev_b32 v3, 2, v1
        v_add_u32 v3, {L_XO}, v3
        ds_read_b32 v52, v3""")
        self.poll([f"buffer_load_dwordx4 v[44:47], v2, {WS}, {sYXG} offen sc1",
                   f"buffer_load_dwordx4 v[48:51], v2, {WS}, {sYXG2} offen sc1"],
                  [self.t8([f"v{44+i}" for i in range(8)])], ["v4"])
        for i in range(4): a(f"v_add_f32 v{44+i}, v{44+i}, v{48+i}")
        a(f"""s_waitcnt lgkmcnt(0)
        v_lshlrev_b32 v53, 16, v52
        v_permlane32_swap_b32 v44, v46
        v_permlane32_swap_b32 v45, v47
        v_add_f32 v44, v44, v46
        v_add_f32 v45, v45, v47
        v_and_b32 v52, 0xffff0000, v52
        v_add_f32_dpp v44, v44, v44 row_ror:8 row_mask:0xf bank_mask:0xf
        v_add_f32_dpp v45, v45, v45 row_ror:8 row_mask:0xf bank_mask:0xf
        v_mov_b32 v46, v44
        v_mov_b32 v47, v45
        s_nop 0
        v_permlane16_swap_b32 v44, v46
        v_permlane16_swap_b32 v45, v47
        v_add_f32 v44, v44, v46
        v_add_f32 v45, v45, v47
        v_cvt_pk_bf16_f32 v44, v44, v45
        v_and_b32 v45, 0xffff0000, v44
        v_lshlrev_b32 v44, 16, v44
        v_add_f32 v44, v44, v53
        v_add_f32 v45, v45, v52
        v_cvt_pk_bf16_f32 v40, v44, v45""")
        self.ret()
    def wbuf(self, kk):
        if kk < 8: return 8 + 4 * kk
        if kk < 10: return 56 + 4 * (kk - 8)
        return 8 + 4 * (kk - 10)
    def sub_s3pre(self):
        a = self.a
        a.label("sub_s3pre")
        a(f"""v_bfe_u32 v6, v1, 8, 2
        v_mul_u32_u24 v7, 448, v6
        v_mul_u32_u24 v6, 3584, v6
        v_bfe_u32 v5, v1, 4, 4
        v_lshl_add_u32 v6, v5, 3, v6
        v_add_u32 v6, {sWQ}, v6
        v_lshl_add_u32 v7, v5, 5, v7
        v_cmp_gt_u32 vcc, 14, v5
        v_mov_b32 v5, 0x1000
        s_nop 0
        v_cndmask_b32 v7, v5, v7, vcc""")
        self.ret()
        a.label("sub_s3w")
        for kk in range(10):
            b = self.wbuf(kk)
            a(f"ds_read_b64_tr_b16 v[{b}:{b+1}], v6 offset:{kk*256}")
            a(f"ds_read_b64_tr_b16 v[{b+2}:{b+3}], v6 offset:{kk*256+128}")
        self.ret()
    def sub_s3(self):
        a = self.a
        a.label("sub_s3")
        self.poll([f"buffer_load_dwordx4 v[44:47], v7, {XI}, 0 offen sc1", f"buffer_load_dwordx4 v[48:51], v7, {XI}, 0 offen offset:16 sc1"],
                  [self.t16(44, 8)], ["v40"], lanemask=0x3fff3fff)
        a.label("sub_s3b")
        a(f"""v_readfirstlane_b32 {sT}, v44
        v_mov_b32 v52, 0
        v_mov_b32 v53, 0
        s_mov_b32 exec_lo, 0x3fff3fff
        s_mov_b32 exec_hi, 0x3fff3fff""")
        for i in range(8): a(f"v_subrev_f32 v{44+i}, {sT}, v{44+i}")
        a("v_add_f32 v52, v44, v45\nv_mul_f32 v53, v44, v44\nv_fmac_f32 v53, v45, v45")
        for i in range(2, 8): a(f"v_add_f32 v52, v52, v{44+i}\nv_fmac_f32 v53, v{44+i}, v{44+i}")
        a(f"s_mov_b64 exec, -1\ns_nop 0")
        for ctl in ["row_ror:8", "row_ror:4", "row_ror:2", "row_ror:1"]:
            a(f"v_add_f32_dpp v52, v52, v52 {ctl} row_mask:0xf bank_mask:0xf")
            a(f"v_add_f32_dpp v53, v53, v53 {ctl} row_mask:0xf bank_mask:0xf")
            a("s_nop 0")
        self.xgroup("v_add_f32", ["v52", "v53"], ["v54", "v55"])
        a(f"""v_mul_f32 v52, {hex(f2u(1.0/448))}, v52
        v_mul_f32 v53, {hex(f2u(1.0/448))}, v53
        v_fma_f32 v53, -v52, v52, v53
        v_max_f32 v53, 0, v53
        v_add_f32 v53, {hex(f2u(1e-5))}, v53
        v_rsq_f32 v53, v53
        s_nop 0
        v_mul_f32 v52, v52, v53
        v_sub_f32 v52, 0, v52""")
        for i in range(8): a(f"v_fma_f32 v{44+i}, v{44+i}, v53, v52")
        for i in range(4): a(f"v_cvt_pk_bf16_f32 v{40+i}, v{44+2*i}, v{45+2*i}")
        a("s_waitcnt lgkmcnt(0)\ns_nop 0")
        def bc(kk):
            bb = 44 + 4 * (kk & 1)
            for i in range(4): a(f"v_mov_b32_dpp v{bb+i}, v{40+i} row_newbcast:{kk} row_mask:0xf bank_mask:0xf")
        bc(0)
        for kk in range(14):
            if kk + 1 < 14: bc(kk + 1)
            else: a("s_nop 1")
            if kk >= 10: a(f"s_waitcnt lgkmcnt({(13-kk)*2})")
            b = self.wbuf(kk); bb = 44 + 4 * (kk & 1)
            c = "0" if kk == 0 else "v[52:55]"
            a(f"v_mfma_f32_16x16x32_bf16 v[52:55], v[{b}:{b+3}], v[{bb}:{bb+3}], {c}")
            if 1 <= kk <= 4:
                k2 = kk + 9; b2 = self.wbuf(k2)
                a(f"ds_read_b64_tr_b16 v[{b2}:{b2+1}], v6 offset:{k2*256}")
                a(f"ds_read_b64_tr_b16 v[{b2+2}:{b2+3}], v6 offset:{k2*256+128}")
        a(f"""v_lshrrev_b32 v48, 4, v1
        s_nop 6
        v_cvt_pk_bf16_f32 v52, v52, v53
        v_cvt_pk_bf16_f32 v53, v54, v55""")
        self.ret()
    def pub_q(self):
        a = self.a
        a(f"""v_mov_b32 v49, {sN}
        s_mov_b32 exec_lo, 0x10001
        s_mov_b32 exec_hi, 0x10001
        v_perm_b32 v40, v52, v49, {sSELLO}
        v_perm_b32 v41, v52, v49, {sSELHI}
        v_perm_b32 v42, v53, v49, {sSELLO}
        v_perm_b32 v43, v53, v49, {sSELHI}""")
        self.local_store(f"buffer_store_dwordx4 v[40:43], v48, {WS}, {sQSP} offen")
        a("s_mov_b64 exec, -1")
    def xccval(self, dst, tmp):
        self.a(f"""s_getreg_b32 {dst}, hwreg(HW_REG_XCC_ID, 0, 4)
        s_mul_i32 {tmp}, {dst}, {dst}
        s_lshl_b32 {tmp}, {tmp}, 10
        s_add_u32 {dst}, {dst}, {tmp}
        s_add_u32 {dst}, {dst}, 0x1000000""")

    def sub_g0(self):
        a = self.a
        a.label("sub_g0issue")
        a(f"""s_add_u32 {sT4}, {sQSG}, {XCCS - QS}
        v_and_b32 v52, 0x1ff, v1
        v_lshlrev_b32 v49, 1, v1
        buffer_load_dwordx2 v[50:51], v52, {WS}, {sT4} offen sc1""")
        for l in self.q_loads(): a(l)
        self.ret()
        a.label("sub_g0check")
        self.validate([self.t16(40, 8), (0xffffffff, [("v51", sN)])], ["v48", "v53"])
        a(f"""s_cbranch_vccz .Lg0ok
        s_cmp_eq_u32 {sSPIN}, 0
        s_cbranch_scc1 .Lg0bail
        s_sub_u32 {sSPIN}, {sSPIN}, 1""")
        self.ret()
        a.label(".Lg0ok")
        a(f"""s_getreg_b32 {sT2}, hwreg(HW_REG_XCC_ID, 0, 4)
        v_cmp_ne_u32 vcc, {sT2}, v50
        s_nop 1
        s_cmp_eq_u64 vcc, 0
        s_cselect_b32 {sFAST}, 1, 0""")
        a.label(".Lg0bail")
        for i in range(4): a(f"v_perm_b32 v{40+i}, v{41+2*i}, v{40+2*i}, {sSELHI}")
        a(f"""v_add_u32 v48, {L_Q}, v1
        ds_write_b128 v48, v[40:43]
        s_add_u32 {sT}, {sFAST}, 1
        v_mov_b32 v50, {sT}
        v_mov_b32 v53, {L_ML + 64}
        s_waitcnt lgkmcnt(0)
        ds_write_b32 v53, v50
        s_mov_b32 s2, 1""")
        self.ret()
    def set_tags(self):
        self.a(f"""s_and_b32 {sTG[0]}, {sN}, 0xff
        s_bfe_u32 {sTG[1]}, {sN}, 0x80008
        s_bfe_u32 {sTG[2]}, {sN}, 0x80010
        s_lshr_b32 {sTG[3]}, {sN}, 24
        s_and_b32 {sH0}, {sN}, 0xffff
        s_lshr_b32 {sH1}, {sN}, 16""")
    def touch(self, srd, soff, n, pol):
        for k in range(n):
            self.a(f"buffer_load_dword v60, {srd}, {soff} offen {pol} lds\ns_add_u32 {soff}, {soff}, 8192")
    def build(self):
        a = self.a
        o = self.o
        a(f"""s_cmp_ge_u32 s2, 256
        s_cbranch_scc1 .Lend
        s_load_dwordx16 s[64:79], s[0:1], 0
        s_load_dwordx8 s[80:87], s[0:1], 64
        s_load_dwordx2 s[88:89], s[0:1], 96
        {"s_memrealtime s[94:95]" if self.stamps else ""}
        v_lshrrev_b32 v1, 6, v0
        s_and_b32 {sG}, s2, 7
        v_readfirstlane_b32 {sWAVE}, v1
        s_lshr_b32 {sC}, s2, 3
        v_and_b32 v1, 63, v0
        v_lshlrev_b32 v1, 4, v1
        v_mov_b32 v52, 0
        s_mov_b32 {sSELLO}, 0x05040100
        s_mov_b32 {sSELHI}, 0x07060302
        s_mov_b32 {sSC}, {hex(f2u(SCALE))}
        s_mov_b32 {sSPIN}, 0x40000
        s_mov_b32 {sFAST}, 0
        s_mov_b32 {sL}, 0
        s_mov_b32 {sWQ}, {L_WQA}
        s_lshl_b32 {sLDSW}, {sWAVE}, 14
        s_lshl_b32 {sAoff}, {sG}, 23
        s_lshl_b32 {sT}, {sC}, 13
        s_add_u32 {sAoff}, {sAoff}, {sT}
        s_add_u32 {sBoff}, {sAoff}, {12288*512}
        s_lshl_b32 {sT}, {sWAVE}, 21
        s_add_u32 {sAoff}, {sAoff}, {sT}
        s_lshl_b32 {sT}, {sWAVE}, 18
        s_add_u32 {sBoff}, {sBoff}, {sT}""")
        self.consts()
        a("s_waitcnt lgkmcnt(0)")
        def srd(d, lo, size):
            a(f"s_mov_b32 s{d}, s{lo}\ns_mov_b32 s{d+1}, s{lo+1}\ns_mov_b32 s{d+2}, {hex(size)}\ns_mov_b32 s{d+3}, 0x20000")
        a(f"s_load_dword {sN}, s[88:89], {EPOCH}")
        srd(28, 70, 3670016); srd(32, 72, 3670016); srd(36, 64, 896)
        a(f"""s_cmp_eq_u32 {sWAVE}, 1
        s_cselect_b32 s28, s80, s28
        s_cselect_b32 s29, s81, s29
        s_cmp_eq_u32 {sWAVE}, 3
        s_cselect_b32 s32, s82, s32
        s_cselect_b32 s33, s83, s33
        s_cmp_ge_u32 {sWAVE}, 2
        s_cbranch_scc1 .Lst_wo""")
        self.call("sub_twq")
        a("s_branch .Lst_j")
        a.label(".Lst_wo")
        self.call("sub_pfwo")
        a.label(".Lst_j")
        a(f"s_mov_b64 s[28:29], s[70:71]\ns_mov_b32 {sRL}, {L_WQA}")
        self.call("sub_wq")
        L = self.only_wave(0)
        self.call("sub_s3pre")
        a(f"""v_lshrrev_b32 v47, 1, v7
        buffer_load_dwordx4 v[40:43], v47, {XI}, 0 offen {self.nt}
        v_and_b32 v48, 0x70, v1
        v_lshrrev_b32 v48, 1, v48
        v_lshrrev_b32 v49, 9, v1
        v_lshl_add_u32 v48, v49, 2, v48
        s_lshl_b32 {sT2}, {sC}, 6
        v_add_u32 v48, {sT2}, v48
        buffer_load_dword v53, v48, {XI}, 0 offen {self.nt}""")
        a.label(L)
        tok0 = self.vm
        srd(8, 66, 0x4000000); srd(12, 68, 0x4000000)
        a("s_mov_b32 s28, s12\ns_mov_b32 s29, s13\ns_mov_b32 s30, 0x4000000")
        self.dmaA(6, L_BB)
        a(f"v_lshlrev_b32 v60, 3, v1\ns_mov_b32 m0, {L_SCR}\ns_nop 0")
        if o.get("pinxy", 1): self.touch(VA, sRS, 1, "sc1"); self.vm += 1
        srd(24, 88, WS_SIZE)
        srd(16, 76, 0x4000000); srd(20, 78, 0x4000000)
        a(f"""s_mov_b64 s[44:45], s[72:73]
        s_mov_b64 s[46:47], s[82:83]
        s_mov_b64 s[48:49], s[84:85]
        s_mov_b64 s[32:33], s[72:73]
        s_mov_b64 s[42:43], s[80:81]
        s_mov_b64 s[40:41], s[86:87]
        s_mov_b32 s2, 0
        s_mov_b32 {sT5}, 1""")
        if self.stamps: a(f"s_mov_b32 s{ST0}, s94")
        a(f"""s_cmp_ge_u32 {sC}, 14
        s_cselect_b32 {sT2}, 1, 0
        s_mul_i32 {sT3}, {sT2}, 14
        s_sub_u32 {sT3}, {sC}, {sT3}
        s_lshl_b32 {sWOT}, {sG}, 1
        s_add_u32 {sWOT}, {sWOT}, {sT2}
        s_mul_i32 {sWOT}, {sWOT}, {256*896}
        s_lshl_b32 {sT3}, {sT3}, 6
        s_add_u32 {sWOT}, {sWOT}, {sT3}
        s_mul_i32 {sT}, {sWAVE}, {64*896}
        s_add_u32 {sWOr[0]}, {sWOT}, {sT}
        s_add_u32 {sWOr[1]}, {sWOr[0]}, {8*896}
        s_add_u32 {sWOr[2]}, {sWOr[0]}, {16*896}
        s_add_u32 {sWOr[3]}, {sWOr[0]}, {24*896}
        s_lshl_b32 {sT}, {sG}, 16
        s_lshl_b32 {sT3}, {sC}, 11
        s_add_u32 {sRECP}, {sT}, {sT3}
        s_lshl_b32 {sT3}, {sT2}, 10
        s_add_u32 {sT}, {sT}, {sT3}
        s_lshl_b32 {sT3}, {sWAVE}, 8
        s_add_u32 {sRECG[0]}, {sT}, {sT3}
        s_add_u32 {sRECG[1]}, {sRECG[0]}, 4096
        s_add_u32 {sRECG[2]}, {sRECG[0]}, 8192
        s_add_u32 {sRECG[3]}, {sRECG[0]}, 12288
        s_lshl_b32 {sT}, {sG}, 9
        s_add_u32 {sT}, {sT}, {LAM}
        s_lshl_b32 {sT3}, {sC}, 3
        s_add_u32 {sLAMP}, {sT}, {sT3}
        s_lshl_b32 {sT3}, {sT2}, 8
        s_add_u32 {sLAMG}, {sT}, {sT3}
        s_mul_i32 {sT}, {sG}, 28
        s_add_u32 {sT}, {sT}, {sC}
        s_lshl_b32 {sT}, {sT}, 7
        s_add_u32 {sYXP}, {sT}, {YX}
        s_lshl_b32 {sT}, {sG}, 15
        {"s_mov_b32 " + sT + ", 0" if o["ycopies"] == 1 else "s_nop 0"}
        s_lshl_b32 {sT3}, {sC}, 7
        s_add_u32 {sT}, {sT}, {sT3}
        s_add_u32 {sYXG}, {sT}, {YX}
        s_add_u32 {sYXG2}, {sYXG}, {8*1792}
        s_lshl_b32 {sT}, {sG}, 11
        s_add_u32 {sXSo}, {sT}, {XS}
        s_add_u32 {sQSG}, {sT}, {QS}
        s_lshl_b32 {sT3}, {sC}, 6
        s_add_u32 {sQSP}, {sQSG}, {sT3}""")
        a(f"s_waitcnt lgkmcnt(0)\ns_add_u32 {sN}, {sN}, 1")
        self.set_tags()
        self.dmaA(7, L_BB + 8192)
        a(f"v_lshlrev_b32 v60, 3, v1\ns_mov_b32 m0, {L_SCR}\ns_nop 0")
        if o.get("pinxy", 1): self.touch(VA, sRS, 1, "sc1"); self.vm += 1
        a(f"s_mov_b64 s[28:29], s[42:43]\ns_mov_b32 s30, 3670016\ns_mov_b32 {sRL}, {L_WQB}")
        self.call("sub_wq")
        a("s_mov_b32 s28, s20\ns_mov_b32 s29, s21\ns_mov_b32 s30, 0x4000000")
        a(f"v_mov_b32 v46, 0\nv_mov_b32 v47, 0\nv_mov_b32 v45, {L_ML + 64}\nds_write_b64 v45, v[46:47]\ns_waitcnt lgkmcnt(0)")
        self.waitvm(tok0)
        a("s_barrier")
        L = self.only_wave(0)
        a(f"""v_lshrrev_b32 v48, 2, v1
        v_add_u32 v48, {L_XO}, v48
        ds_write_b32 v48, v53""")
        self.call("sub_s3w")
        for i in range(4):
            a(f"v_lshlrev_b32 v{44+2*i}, 16, v{40+i}\nv_and_b32 v{45+2*i}, 0xffff0000, v{40+i}")
        self.call("sub_s3b")
        a(f"""v_mov_b32 v49, {sN}
        v_perm_b32 v40, v52, v49, {sSELLO}
        v_perm_b32 v41, v52, v49, {sSELHI}
        v_perm_b32 v42, v53, v49, {sSELLO}
        v_perm_b32 v43, v53, v49, {sSELHI}
        s_getreg_b32 {sT2}, hwreg(HW_REG_XCC_ID, 0, 4)
        s_mul_i32 {sT3}, {sC}, 48
        s_sub_u32 {sT3}, {XCCS - QS}, {sT3}
        v_writelane_b32 v40, {sT2}, 1
        v_writelane_b32 v41, {sN}, 1
        v_writelane_b32 v48, {sT3}, 1
        s_mov_b32 exec_lo, 0x10003
        s_mov_b32 exec_hi, 0x10001
        buffer_store_dwordx4 v[40:43], v48, {WS}, {sQSP} offen sc1
        s_mov_b64 exec, -1""")
        self.consts()
        a.label(L)
        if o.get("ss"): self.stamp()
        g0 = o.get("g0", 4)
        for t in range(g0): self.loadK_reg(t)
        L = self.only_wave(0)
        self.call("sub_g0issue")
        a.label(L)
        for t in range(g0, 8):
            self.loadK_reg(t)
            L = self.only_wave(0)
            a(f"s_cmp_lg_u32 s2, 0\ns_cbranch_scc1 {L}\ns_waitcnt vmcnt(8)")
            if t == 7: a.label(".Lg0loop")
            self.call("sub_g0check")
            a(f"s_cmp_lg_u32 s2, 0\ns_cbranch_scc1 {L}")
            self.call("sub_g0issue")
            if t == 7: a("s_waitcnt vmcnt(0)\ns_branch .Lg0loop")
            a.label(L)
        tokK = self.vm
        if o.get("ss"): self.stamp()
        a(f"s_add_u32 s24, s24, {BLK}\ns_addc_u32 s25, s25, 0")
        toks = []
        for t in range(4):
            toks.append(self.loadV_reg(t))
            L = self.only_wave((t + 1) % 4 if o.get("stag", 1) else 99)
            if not o.get("stag", 1) and t == 1: a.label(L); L = a.newlabel("x")
            Lq = a.newlabel("qf")
            a(f"v_mov_b32 v46, {L_ML + 64}")
            a.label(Lq)
            a(f"""ds_read_b32 v44, v46
            s_waitcnt lgkmcnt(0)
            v_readfirstlane_b32 {sFAST}, v44
            s_nop 3
            s_cmp_eq_u32 {sFAST}, 0
            s_cbranch_scc1 {Lq}
            s_sub_u32 {sFAST}, {sFAST}, 1""")
            self.waitvm(tokK)
            self.call("sub_qka0")
            self.call("sub_qka1")
            a.label(L)
        if o.get("ss"): self.stamp()
        tokV1, tokV3 = toks[1], toks[3]
        self.waitvm(tokV1)
        self.call("sub_pv01")
        vm0 = self.vm
        a(f"s_cmp_eq_u32 {sWAVE}, 0\ns_cbranch_scc1 .Lkb_done")
        self.dma("K", sBoff, 0, sLDSW, L_KB)
        self.dma("K", sBoff, TILE, sLDSW, L_KB + 8192)
        a(f"""s_cmp_eq_u32 {sWAVE}, 3
        s_cbranch_scc1 .Lkb_done
        s_lshl_b32 {sT}, {sWAVE}, 18
        s_sub_u32 {sRS}, {sBoff}, {sT}
        s_sub_u32 {sT2}, {sWAVE}, 1
        s_lshl_b32 {sT3}, {sT2}, 20
        s_add_u32 {sRS}, {sRS}, {sT3}
        s_lshl_b32 {sRL}, {sT2}, 13""")
        self.call("sub_dmaK")
        a.label(".Lkb_done")
        self.vm = vm0
        self.loadV_reg(4)
        self.waitvm(tokV3)
        self.call("sub_pv23")
        tokV5 = self.loadV_reg(5)
        if o.get("ss"): self.stamp()
        self.waitvm(tokV5)
        if o.get("ss"): self.stamp()
        self.call("sub_pv45")
        a(f"s_add_u32 {sPV}, {sLDSW}, {L_BB}")
        self.call("sub_pvlds")
        a.label(".Lchain")
        a(f"s_cmp_ge_u32 {sC}, 28\ns_cbranch_scc1 .Lno_wo")
        self.ldwo()
        a.label(".Lno_wo")
        self.stamp()
        self.call("sub_s0")
        self.stamp()
        a(f"s_cmp_ge_u32 {sC}, 28\ns_cbranch_scc1 .Lno_s1")
        self.call("sub_s1")
        a("s_branch .Ls1_end")
        a.label(".Lno_s1")
        a("s_barrier")
        a.label(".Ls1_end")
        self.stamp()
        a(f"""s_cmp_eq_u32 {sL}, 3
        s_cbranch_scc1 .Lfinal
        s_bitcmp1_b32 {sL}, 0
        s_cselect_b32 s32, s44, s46
        s_cselect_b32 s33, s45, s47
        s_cselect_b32 {sWQ}, {L_WQA}, {sWQ}
        s_cbranch_scc1 .Lwqset
        s_mov_b32 {sWQ}, {L_WQB}""")
        a.label(".Lwqset")
        a(f"s_cmp_lg_u32 {sWAVE}, 0\ns_cbranch_scc1 .Lloader")
        self.call("sub_s3pre")
        self.call("sub_s3w")
        a(f"s_cmp_ge_u32 {sC}, 14\ns_cbranch_scc1 .Lno_s2")
        self.call("sub_s2")
        a(f"""v_mov_b32 v41, {sN}
        v_lshlrev_b32 v42, 1, v42
        v_perm_b32 v44, v40, v41, {sSELLO}
        v_perm_b32 v45, v40, v41, {sSELHI}
        s_mov_b32 exec_lo, 0xff
        s_mov_b32 exec_hi, 0xff""")
        self.local_store(f"buffer_store_dwordx2 v[44:45], v42, {WS}, {sXSo} offen")
        a("s_mov_b64 exec, -1\nds_write_b32 v3, v40")
        a.label(".Lno_s2")
        self.stamp()
        a(f"""s_add_u32 s36, s24, {sXSo}
        s_addc_u32 s37, s25, 0
        s_mov_b32 s38, 1792""")
        self.call("sub_s3")
        self.pub_q()
        self.stamp()
        self.call("sub_s4")
        a(f"v_mov_b32 v44, {L_ML + 68}\nv_mov_b32 v45, 1\nds_write_b32 v44, v45\ns_branch .Lqready")
        a.label(".Lloader")
        self.consts()
        a(f"s_cmp_lg_u32 {sL}, 0\ns_cbranch_scc1 .Lld_n0")
        def job(kind):
            Lu, Le = a.newlabel("ju"), a.newlabel("je")
            a(f"""v_mov_b32 v44, {L_ML + 68}
            ds_read_b32 v45, v44
            s_waitcnt lgkmcnt(0)
            v_readfirstlane_b32 {sT}, v45
            s_nop 3
            s_cmp_eq_u32 {sT}, 1
            s_cbranch_scc1 {Lu}""")
            self.call(f"sub_dma{kind}p")
            a(f"s_branch {Le}")
            a.label(Lu)
            self.call(f"sub_dma{kind}")
            a.label(Le)
        a(f"s_cmp_eq_u32 {sWAVE}, 1\ns_cbranch_scc1 .Lld_own")
        a(f"""s_lshl_b32 {sT}, {sWAVE}, 18
        s_sub_u32 {sRS}, {sBoff}, {sT}
        s_sub_u32 {sT2}, {sWAVE}, 2
        s_lshl_b32 {sT3}, {sT2}, 20
        s_add_u32 {sRS}, {sRS}, {sT3}
        s_lshl_b32 {sRL}, {sT2}, 13
        s_add_u32 {sRL}, {sRL}, {L_BB}""")
        job("V")
        a.label(".Lld_own")
        a(f"s_mov_b32 {sRS}, {sBoff}\ns_add_u32 {sRL}, {sLDSW}, {L_BB}")
        job("V")
        a(f"s_add_u32 {sRS}, {sBoff}, {TILE}\ns_add_u32 {sRL}, {sLDSW}, {L_BB + 8192}")
        job("V")
        a("s_branch .Lld_done")
        a.label(".Lld_n0")
        a(f"s_cmp_lg_u32 {sL}, 1\ns_cbranch_scc1 .Lld_done")
        L = self.only_wave(1)
        for w in range(4):
            a(f"s_add_u32 {sRS}, {sBoff}, {TILE + (w-1)*262144}")
            for n in range(2):
                a(f"s_mov_b32 m0, {L_BB + w*16384 + 8192 + n*1024 - n*256}\ns_nop 0")
                a(f"buffer_load_dwordx4 v3, {VBs}, {sRS} offen offset:{n*256} {self.nt} lds")
        a("s_waitcnt vmcnt(0)")
        a.label(L)
        L = self.only_wave(2)
        self.call("sub_qk2")
        self.call("sub_pv67a")
        a.label(L)
        a.label(".Lld_done")
        self.stamp(); self.stamp()
        a.label(".Lqready")
        a(f"""s_add_u32 {sL}, {sL}, 1
        s_add_u32 s24, s24, {BLK}
        s_addc_u32 s25, s25, 0
        s_barrier""")
        self.stamp()
        a(f"s_cmp_eq_u32 {sL}, 2\ns_cbranch_scc1 .LlayerA\ns_cmp_eq_u32 {sL}, 3\ns_cbranch_scc1 .Llayer3")
        self.call("sub_qkb")
        if o.get("fine"): self.stamp()
        a("s_waitcnt vmcnt(0)\ns_barrier")
        if o.get("fine"): self.stamp()
        self.call("sub_pvlds")
        a("s_branch .Lchain")
        a.label(".LlayerA")
        self.call("sub_qka0"); self.call("sub_qka1")
        if o.get("fine"): self.stamp()
        for t in range(2):
            self.aoff(6 + t, sT)
            for n in range(8):
                a(f"buffer_load_dwordx4 a[{t*32+n*4}:{t*32+n*4+3}], v3, {VA}, {sT} offen offset:{(n>>1)*512+(n&1)*256} {self.nt}")
        if o.get("fine"): self.stamp()
        self.call("sub_pv01")
        if o.get("fine"): self.stamp()
        a(f"v_add_u32 v61, {sLDSW}, v1\nv_add_u32 v60, {sPV}, v1")
        for n in range(8): a(f"ds_read_b128 a[{64+4*n}:{67+4*n}], v61 offset:{n*1024}")
        self.call("sub_pv23")
        for n in range(8, 16): a(f"ds_read_b128 a[{64+4*n}:{67+4*n}], v61 offset:{n*1024}")
        for n in range(6): a(f"ds_read_b128 v[{64+4*n}:{67+4*n}], v60 offset:{n*1024}")
        self.call("sub_pv45")
        for n in range(6, 16): a(f"ds_read_b128 v[{64+4*n}:{67+4*n}], v60 offset:{n*1024}")
        if o.get("fine"): self.stamp()
        a("s_waitcnt vmcnt(0)")
        if o.get("fine"): self.stamp()
        self.call("sub_pv67a")
        a("s_waitcnt lgkmcnt(0)\ns_branch .Lchain")
        a.label(".Llayer3")
        self.call("sub_qk2")
        self.call("sub_pv01")
        a("s_branch .Lchain")
        a.label(".Lfinal")
        a(f"""s_cmp_lg_u32 {sG}, 0
        s_cbranch_scc1 .Lfin
        s_cmp_ge_u32 {sC}, 14
        s_cbranch_scc1 .Lfin
        s_cmp_lg_u32 {sWAVE}, 0
        s_cbranch_scc1 .Lfin""")
        self.call("sub_s2")
        a(f"""s_mov_b32 s36, s48
        s_mov_b32 s37, s49
        s_mov_b32 s38, 896
        s_mov_b32 exec_lo, 0xff
        s_mov_b32 exec_hi, 0xff
        buffer_store_dword v40, v42, {XI}, 0 offen
        s_mov_b64 exec, 1
        s_cmp_lg_u32 {sC}, 0
        s_cbranch_scc1 .Lnoep
        s_sub_u32 s24, s24, {4*BLK}
        s_subb_u32 s25, s25, 0
        v_mov_b32 v41, {sN}
        v_mov_b32 v43, {EPOCH}
        buffer_store_dword v41, v43, {WS}, 0 offen
        s_add_u32 s24, s24, {4*BLK}
        s_addc_u32 s25, s25, 0
.Lnoep:
        s_mov_b64 exec, -1""")
        a.label(".Lfin")
        if self.stamps:
            a(f"s_mov_b32 {sT5}, {NSTAMP-1}")
            self.stamp(True)
            n = NSTAMP
            a(f"""s_lshl_b32 {sT}, {sC}, 3
            s_add_u32 {sT}, {sT}, {sG}
            s_lshl_b32 {sT}, {sT}, 2
            s_add_u32 {sT}, {sT}, {sWAVE}
            s_mul_i32 {sT}, {sT}, {n*8}
            s_add_u32 {sT}, {sT}, {STAMP - 4*BLK}
            v_mov_b32 v8, 0""")
            for i in range(n):
                a(f"v_mov_b32 v10, s{ST0+i}\nv_mov_b32 v11, 0\nbuffer_store_dwordx2 v[10:11], v8, {WS}, {sT} offen offset:{i*8}\ns_nop 1")
        if self.stamps and o.get("dbgout"):
            a(f"""s_cmp_lg_u32 {sG}, 0
            s_cbranch_scc1 .Lend
            s_cmp_lg_u32 {sC}, 0
            s_cbranch_scc1 .Lend
            s_cmp_lg_u32 {sWAVE}, 0
            s_cbranch_scc1 .Lend
            s_mov_b32 s42, 256
            s_mov_b32 s43, 0x20000
            v_mov_b32 v8, 0""")
            for i in range(1, NSTAMP):
                a(f"s_sub_u32 {sT}, s{ST0+i}, s{ST0}\nv_mov_b32 v10, {sT}\nbuffer_store_dword v10, v8, s[40:43], 0 offen offset:{i*4}")
            a(f"v_mov_b32 v10, {sFAST}\nbuffer_store_dword v10, v8, s[40:43], 0 offen")
        a.label(".Lend")
        a("s_endpgm")
        self.sub_s4(); self.sub_qka(); self.sub_qkb(); self.sub_qk2()
        self.sub_pvreg("sub_pv01", [0, 1]); self.sub_pvreg("sub_pv23", [2, 3]); self.sub_pvreg("sub_pv45", [4, 5]); self.sub_pvreg("sub_pv67a", [6, 7], agpr=True)
        self.sub_pvlds(); self.sub_pfwo(); self.sub_s0(); self.sub_s1(); self.sub_s2(); self.sub_s3pre(); self.sub_s3()
        self.sub_dma("K"); self.sub_dma("V"); self.sub_dma("K", True); self.sub_dma("V", True); self.sub_wq(); self.sub_twq(); self.sub_g0()
        return wrap(a.text())

if __name__ == "__main__":
    open(f"k5a_1.s", "w").write(K(stamps=(0, 0), g0=3, pace=8, ss=1).build())
    open(f"k5a_2.s", "w").write(K(stamps=(0, 0), g0=3, pace=8, ss=1, pinxy=0).build())
    open(f"k5a_3.s", "w").write(K(stamps=(0, 0), g0=3, pace=8, ss=1, pinxy=0, pinwo=0).build())
    open("k5.s", "w").write(K(g0=3, pace=8).build())
```

```python
import sys, struct
from asmlib import *

BLK = 0x100000
REC = 0
YX  = 0x80000
LAM = 0xC0000
XS  = 0xC2000
QS  = 0xC8000
XCCS = 0xCC000
EPOCH = 0xD0000
STAMP = 0x600000
WS_SIZE = 0x800000
L_KB = 0
L_BB = 65536
L_WQA = 131072
L_WQB = L_WQA + 14336
L_ML = L_WQB + 14336
L_Q = L_ML + 128
L_YP = L_Q + 1024
L_SCR = L_YP + 512
L_XO = L_SCR + 256
L_Z = L_XO + 256
LDS_TOTAL = 163840
assert L_Z + 512 <= LDS_TOTAL
SCALE = 0.0625 * 1.4426950408889634
def f2u(x): return struct.unpack("<I", struct.pack("<f", x))[0]

sWAVE, sG, sC = "s3", "s4", "s5"
sSELLO, sSELHI = "s6", "s7"
KA, VA, KBs, VBs, WS, RL, WO, XI = "s[8:11]", "s[12:15]", "s[16:19]", "s[20:23]", "s[24:27]", "s[28:31]", "s[32:35]", "s[36:39]"
sRS, sRL, sWQ, sONES = "s50", "s51", "s52", "s53"
sAoff, sBoff, sT, sSC, sFAST, sL = "s54", "s55", "s56", "s57", "s58", "s59"
sT2, sT3, sSPIN, sLDSW = "s60", "s61", "s62", "s63"
RET = "s[64:65]"
sPV, sT4, sT5 = "s66", "s67", "s68"
sRECP, sLAMP, sLAMG, sYXP, sYXG, sYXG2, sXSo, sQSG, sQSP = ["s%d" % i for i in range(69, 78)]
sRECG = ["s78", "s79", "s80", "s81"]
sWOr = ["s82", "s83", "s84", "s85"]
sN, sH0, sH1 = "s90", "s86", "s87"
ST0 = 91
NSTAMP = 11
TILE = 1048576
vNM, vL, vPM = "v60", "v61", "v62"
DPPALL = "row_mask:0xf bank_mask:0xf"

class K:
    def __init__(self, stamps=None, nt="nt", **opt):
        self.a = Asm()
        self.stamps = stamps
        self.nt = nt
        self.vm = 0
        self.o = dict(pace=8, ycopies=8, g0=3, pinxy=0, vbpre=0)
        self.o.update(opt)
    def stamp(self, always=False):
        if not self.stamps: return
        a = self.a
        L = a.newlabel("st")
        if not always:
            a(f"s_cmp_lt_u32 {sL}, {self.stamps[0]}\ns_cbranch_scc1 {L}\ns_cmp_gt_u32 {sL}, {self.stamps[1]}\ns_cbranch_scc1 {L}")
        a(f"s_cmp_ge_u32 {sT5}, {NSTAMP}\ns_cbranch_scc1 {L}")
        a(f"s_memrealtime s[0:1]\ns_mov_b32 m0, {sT5}\ns_waitcnt lgkmcnt(0)\ns_movreld_b32 s{ST0}, s0\ns_add_u32 {sT5}, {sT5}, 1")
        a.label(L)
    def fine(self):
        if self.o.get("fine"): self.stamp()
    def vmem(self, ins):
        self.a(ins); self.vm += 1
        return self.vm
    def waitvm(self, tok):
        n = self.vm - tok
        if n <= 63: self.a(f"s_waitcnt vmcnt({n})")
    def call(self, name): self.a(f"s_call_b64 {RET}, {name}")
    def ret(self): self.a(f"s_setpc_b64 {RET}")
    def only_wave(self, w):
        L = self.a.newlabel("ow")
        self.a(f"s_cmp_lg_u32 {sWAVE}, {w}\ns_cbranch_scc1 {L}")
        return L

    def aoff(self, t, dst):
        self.a(f"s_add_u32 {dst}, {sG}, {t}\ns_and_b32 {dst}, {dst}, 7\ns_lshl_b32 {dst}, {dst}, 18\ns_add_u32 {dst}, {dst}, {sAoff}")
    def dmaA(self, t, loff):
        self.aoff(t, sRS)
        self.a(f"s_add_u32 {sRL}, {sLDSW}, {loff}")
        self.call("sub_dmaV")
        self.vm += 8
        return self.vm
    def loadK_reg(self, t):
        self.aoff(t, sT)
        for cc in range(8):
            tok = self.vmem(f"buffer_load_dwordx4 a[{t*32+cc*4}:{t*32+cc*4+3}], v2, {KA}, {sT} offen offset:{cc*64} {self.nt}")
        return tok
    def loadV_reg(self, t):
        self.aoff(t, sT)
        for n in range(8):
            b = 64 + t * 32 + n * 4
            tok = self.vmem(f"buffer_load_dwordx4 v[{b}:{b+3}], v3, {VA}, {sT} offen offset:{(n>>1)*512+(n&1)*256} {self.nt}")
        return tok
    def sub_dma(self, kind, paced=False):
        a = self.a
        a.label(f"sub_dma{kind}{'p' if paced else ''}")
        for n in range(8):
            imm = n * 64 if kind == "K" else (n >> 1) * 512 + (n & 1) * 256
            a(f"s_add_u32 m0, {sRL}, {n*1024 - imm}")
            a(f"s_waitcnt vmcnt({self.o['pace']})" if paced else "s_nop 0")
            a(f"buffer_load_dwordx4 {'v2' if kind=='K' else 'v3'}, {KBs if kind=='K' else RL}, {sRS} offen offset:{imm} {self.nt} lds")
        self.ret()
    def dmaB(self, kind, goff, loff):
        self.a(f"s_add_u32 {sRS}, {sBoff}, {goff}\ns_add_u32 {sRL}, {sLDSW}, {loff}")
        self.call(f"sub_dma{kind}")
    def sub_wq(self):
        a = self.a
        a.label("sub_wq")
        a(f"""v_lshrrev_b32 v58, 5, v1
        v_lshlrev_b32 v58, 13, v58
        v_and_b32 v59, 16, v1
        v_add_u32 v58, v58, v59
        s_lshl_b32 {sT}, {sG}, 10
        s_lshl_b32 {sT2}, {sC}, 5
        s_add_u32 {sT}, {sT}, {sT2}
        s_lshl_b32 {sT2}, {sWAVE}, 18
        s_add_u32 {sT}, {sT}, {sT2}
        s_lshl_b32 {sT2}, {sWAVE}, 10
        s_add_u32 m0, {sRL}, {sT2}""")
        for n in range(4):
            if n == 3: a(f"s_cmp_ge_u32 {sWAVE}, 2\ns_cbranch_scc1 .Lwq_end")
            a(f"s_nop 0\nbuffer_load_dwordx4 v58, {RL}, {sT} offen {self.nt} lds")
            if n < 3: a(f"s_add_u32 {sT}, {sT}, {4*262144}\ns_add_u32 m0, m0, 4096")
        a.label(".Lwq_end")
        self.ret()
    def twq(self):
        self.a(f"""v_lshrrev_b32 v58, 7, v1
        v_lshlrev_b32 v58, 13, v58
        v_and_b32 v59, 0x70, v1
        v_lshl_add_u32 v58, v59, 3, v58
        s_lshl_b32 {sT}, {sG}, 10
        s_mul_i32 {sT2}, {sC}, {14*8192}
        s_add_u32 {sT}, {sT}, {sT2}
        s_add_u32 {sT2}, {sT}, {6*8192}
        s_mov_b32 m0, {L_SCR}
        s_nop 0
        buffer_load_dword v58, {RL}, {sT} offen {self.nt} lds
        buffer_load_dword v58, {RL}, {sT2} offen {self.nt} lds""")
    def pfwo(self):
        self.a(f"""v_lshlrev_b32 v58, 3, v1
        s_mov_b32 m0, {L_SCR}
        s_lshl_b32 {sT2}, {sG}, 5
        s_add_u32 {sT2}, {sT2}, {sC}
        s_mul_i32 {sT2}, {sT2}, 14336
        s_add_u32 {sT3}, {sT2}, 6144
        buffer_load_dword v58, {WO}, {sT2} offen {self.nt} lds
        buffer_load_dword v58, {WO}, {sT3} offen {self.nt} lds
        buffer_load_dword v58, {WO}, {sT2} offen sc1 lds
        buffer_load_dword v58, {WO}, {sT3} offen sc1 lds""")

    def validate(self, groups, tmp, lanemask=None):
        a = self.a
        accs = []
        for gi, (mask, items, inplace) in enumerate(groups):
            t = tmp[gi]
            if inplace:
                for r, tg in items: a(f"v_xor_b32 {r}, {tg}, {r}")
                rs = [r for r, _ in items]
                if len(rs) == 1:
                    assert mask == 0xffffffff
                    accs.append(rs[0]); continue
                if len(rs) == 2: a(f"v_or_b32 {t}, {rs[0]}, {rs[1]}")
                else:
                    a(f"v_or3_b32 {t}, {rs[0]}, {rs[1]}, {rs[2]}")
                    k = 3
                    while k < len(rs):
                        if k + 1 < len(rs): a(f"v_or3_b32 {t}, {t}, {rs[k]}, {rs[k+1]}"); k += 2
                        else: a(f"v_or_b32 {t}, {t}, {rs[k]}"); k += 1
            else:
                a(f"v_xor_b32 {t}, {items[0][1]}, {items[0][0]}")
                for r, tg in items[1:]: a(f"v_bitop3_b32 {t}, {t}, {r}, {tg} bitop3:0xf6")
            if mask != 0xffffffff: a(f"v_and_b32 {t}, {hex(mask)}, {t}")
            accs.append(t)
        for t in accs[1:]: a(f"v_or_b32 {accs[0]}, {accs[0]}, {t}")
        a(f"v_cmp_ne_u32 vcc, 0, {accs[0]}")
        if lanemask is not None:
            a(f"s_nop 0\ns_or_b32 {sT4}, vcc_lo, vcc_hi\ns_and_b32 {sT4}, {sT4}, {hex(lanemask)}")
    def poll(self, loads, groups, tmp, shadow=None, lanemask=None):
        a = self.a
        Lp, Ld, Lw = a.newlabel("poll"), a.newlabel("pdone"), a.newlabel("pw")
        if shadow:
            for l in loads: a(l)
            shadow()
            a(f"s_branch {Lw}")
        a.label(Lp)
        for l in loads: a(l)
        a.label(Lw)
        a("s_waitcnt vmcnt(0)")
        self.validate(groups, tmp, lanemask)
        a(f"s_cbranch_vccz {Ld}" if lanemask is None else f"s_cbranch_scc0 {Ld}")
        a(f"""s_cmp_eq_u32 {sSPIN}, 0
        s_cbranch_scc1 {Ld}
        s_sub_u32 {sSPIN}, {sSPIN}, 1
        s_branch {Lp}""")
        a.label(Ld)
    def t16(self, regs):
        return (0xffff, [(r, sH0 if i % 2 == 0 else sH1) for i, r in enumerate(regs)], False)
    def lanetag(self, dst, idx):
        self.a(f"v_bfe_u32 {dst}, {sN}, {idx}, 8")
    def local_store(self, *ins):
        a = self.a
        Lf, Ld = a.newlabel("fs"), a.newlabel("fd")
        a(f"s_cmp_eq_u32 {sFAST}, 1\ns_cbranch_scc1 {Lf}")
        for i in ins: a(i + " sc1")
        a(f"s_branch {Ld}")
        a.label(Lf)
        for i in ins: a(i)
        a.label(Ld)
    def xgroup(self, op, xs, ts):
        a = self.a
        n = len(xs)
        for sw in ("v_permlane16_swap_b32", "v_permlane32_swap_b32"):
            for x, t in zip(xs, ts): a(f"v_mov_b32 {t}, {x}")
            if n < 3: a(f"s_nop {2-n}")
            for x, t in zip(xs, ts): a(f"{sw} {x}, {t}")
            for x, t in zip(xs, ts): a(f"{op} {x}, {x}, {t}")
    def consts(self):
        a = self.a
        a(f"""v_bfe_u32 v58, v1, 4, 4
        v_bfe_u32 v59, v1, 8, 2
        v_lshlrev_b32 v2, 9, v58
        v_lshl_add_u32 v2, v59, 4, v2
        v_lshlrev_b32 v3, 11, v59
        v_lshl_add_u32 v3, v58, 4, v3
        v_bfe_u32 v63, v1, 5, 1
        v_lshlrev_b32 v63, 9, v63
        v_lshl_add_u32 v63, v59, 4, v63
        v_add_u32 v63, {L_Q}, v63
        v_and_b32 v59, 16, v1
        v_mov_b32 {vPM}, 0xffff
        v_lshlrev_b32 {vPM}, v59, {vPM}""")
        for b in range(4):
            a(f"v_mov_b32 v{4+b}, {L_Z}")
        a("s_nop 0")
        for b in range(4):
            a(f"v_mov_b32_dpp v{4+b}, v63 quad_perm:[0,1,2,3] row_mask:0xf bank_mask:{hex(1<<b)}")

    def softmax(self, sregs):
        a = self.a
        for i in range(8): a(f"v_mov_b32 v{40+i}, 0")
        n = len(sregs)
        a(f"v_max3_f32 {vNM}, {sregs[0]}, {sregs[1]}, {sregs[2]}")
        k = 3
        while k < n:
            if k + 1 < n: a(f"v_max3_f32 {vNM}, {vNM}, {sregs[k]}, {sregs[k+1]}"); k += 2
            else: a(f"v_max_f32 {vNM}, {vNM}, {sregs[k]}"); k += 1
        z = iter(range(48, 60))
        def zz(k):
            for _ in range(k): a(f"v_mov_b32 v{next(z)}, 0")
        zz(2)
        a(f"v_max_f32_dpp {vNM}, {vNM}, {vNM} row_ror:4 {DPPALL}")
        zz(2)
        a(f"v_max_f32_dpp {vNM}, {vNM}, {vNM} row_ror:8 {DPPALL}")
        for sw in ("v_permlane16_swap_b32", "v_permlane32_swap_b32"):
            a(f"v_mov_b32 v63, {vNM}")
            zz(2)
            a(f"{sw} {vNM}, v63\nv_max_f32 {vNM}, {vNM}, v63")
        a(f"v_mul_f32 {vNM}, {sSC}, {vNM}\nv_sub_f32 {vNM}, 0, {vNM}")
        for r in sregs: a(f"v_fma_f32 {r}, {r}, {sSC}, {vNM}")
        for r in sregs: a(f"v_exp_f32 {r}, {r}")
        zz(4)
        a(f"v_add_f32 {vL}, {sregs[0]}, {sregs[1]}\nv_add_f32 v63, {sregs[2]}, {sregs[3]}")
        for i in range(4, n, 2): a(f"v_add_f32 {vL}, {vL}, {sregs[i]}\nv_add_f32 v63, v63, {sregs[i+1]}")
        for r in sregs: a(f"v_cvt_pk_bf16_f32 {r}, {r}, {r}")
        a(f"v_add_f32 {vL}, {vL}, v63")
        for r in sregs: a(f"v_and_b32 {r}, {vPM}, {r}")
    def sub_qka(self):
        a = self.a
        NB = 6
        for part in range(2):
            a.label(f"sub_qka{part}")
            seq = [(cc, 2 * part + bb) for cc in range(8) for bb in range(2)]
            def rd(k):
                cc, b = seq[k]; q = 16 + 4 * (k % NB)
                a(f"ds_read_b128 v[{q}:{q+3}], v{4+b} offset:{cc*64}")
            for k in range(NB): rd(k)
            for k, (cc, b) in enumerate(seq):
                issued = NB if k == 0 else min(16, NB + k - 1)
                a(f"s_waitcnt lgkmcnt({issued - k - 1})")
                q = 16 + 4 * (k % NB)
                for grp in range(2):
                    t = b + 4 * grp
                    c = "0" if (part == 0 and k == 0) else f"v[{8+4*grp}:{11+4*grp}]"
                    a(f"v_mfma_f32_16x16x32_bf16 v[{8+4*grp}:{11+4*grp}], a[{t*32+cc*4}:{t*32+cc*4+3}], v[{q}:{q+3}], {c}")
                if k >= 1 and k - 1 + NB < 16: rd(k - 1 + NB)
            self.ret()
        a.label("sub_sma")
        self.softmax([f"v{8+i}" for i in range(8)])
        self.ret()
    def cinit(self, base, bankmask):
        a = self.a
        a(f"v_mov_b32 v63, {hex(f2u(-1e30))}")
        for i in range(4): a(f"v_mov_b32 v{base+i}, 0")
        for i in range(4): a(f"v_mov_b32_dpp v{base+i}, v63 quad_perm:[0,1,2,3] row_mask:0xf bank_mask:{hex(bankmask)}")
    def sub_qk2(self):
        a = self.a
        a.label("sub_qk2")
        NB = 10
        seq = [(cc, b) for cc in range(8) for b in range(2)]
        def rd(k):
            cc, b = seq[k]; q = 16 + 4 * (k % NB)
            a(f"ds_read_b128 v[{q}:{q+3}], v{4+b} offset:{cc*64}")
        for k in range(NB): rd(k)
        for k, (cc, b) in enumerate(seq):
            issued = NB if k <= 1 else min(16, NB + k - 2)
            a(f"s_waitcnt lgkmcnt({issued - k - 1})")
            q = 16 + 4 * (k % NB)
            a(f"v_mfma_f32_16x16x32_bf16 v[8:11], a[{(4+b)*32+cc*4}:{(4+b)*32+cc*4+3}], v[{q}:{q+3}], v[8:11]")
            if k >= 2 and k - 2 + NB < 16: rd(k - 2 + NB)
        self.softmax([f"v{8+i}" for i in range(4)])
        self.ret()
    def sub_qkb(self):
        a = self.a
        seq = [(cc, b) for cc in range(8) for b in range(2)]
        NK, NQ = 6, 5
        def rk(k):
            cc, b = seq[k]; r = 16 + 4 * (k % NK)
            a(f"ds_read_b128 v[{r}:{r+3}], v61 offset:{b*8192 + cc*1024}")
        def rq(k):
            cc, b = seq[k]; q = 40 + 4 * (k % NQ)
            a(f"ds_read_b128 v[{q}:{q+3}], v{6+b} offset:{cc*64}")
        a.label("sub_qkbpre")
        a(f"v_add_u32 v61, {sLDSW}, v1")
        for k in range(NK): rk(k)
        self.cinit(12, 0x3)
        self.ret()
        a.label("sub_qkb")
        order = []
        for k in range(NQ): rq(k); order.append(("q", k))
        for k in range(16):
            need = max([i for i, x in enumerate(order) if x in (("q", k), ("k", k))])
            a(f"s_waitcnt lgkmcnt({len(order) - need - 1})")
            r = 16 + 4 * (k % NK); q = 40 + 4 * (k % NQ)
            a(f"v_mfma_f32_16x16x32_bf16 v[12:15], v[{r}:{r+3}], v[{q}:{q+3}], v[12:15]")
            if k >= 1:
                if k - 1 + NQ < 16: rq(k - 1 + NQ); order.append(("q", k - 1 + NQ))
                if k - 1 + NK < 16: rk(k - 1 + NK); order.append(("k", k - 1 + NK))
        self.softmax([f"v{12+i}" for i in range(4)])
        self.ret()
    def bop(self, t, r, bb):
        grp, b = t // 4, t % 4
        src = f"v{8+4*grp+r}"
        out = []
        for tt in range(4):
            ctl = "quad_perm:[0,1,2,3]" if tt == b else (f"row_shr:{4*(tt-b)}" if tt > b else f"row_shl:{4*(b-tt)}")
            out.append(f"v_mov_b32_dpp v{bb+tt}, {src} {ctl} row_mask:0xf bank_mask:{hex(1<<tt)}")
        return out
    def sub_pvreg(self, name, tiles, agpr=False):
        a = self.a
        a.label(name)
        steps = [(t, r) for t in tiles for r in range(4)]
        n = len(steps)
        bb = lambda k: 48 + 4 * (k % 3)
        for k in range(2):
            for i in self.bop(*steps[k], bb(k)): a(i)
        for k, (t, r) in enumerate(steps):
            nx = self.bop(*steps[k + 2], bb(k + 2)) if k + 2 < n else []
            for hf in range(2):
                if agpr:
                    vb = (t - 6) * 32 + (r * 2 + hf) * 4; src = f"a[{vb}:{vb+3}]"
                else:
                    vb = 64 + t * 32 + (r * 2 + hf) * 4; src = f"v[{vb}:{vb+3}]"
                a(f"v_mfma_f32_16x16x32_bf16 v[{40+4*hf}:{43+4*hf}], {src}, v[{bb(k)}:{bb(k)+3}], v[{40+4*hf}:{43+4*hf}]")
                for i in nx[2*hf:2*hf+2]: a(i)
        self.ret()
    def sub_pvlds(self):
        a = self.a
        a.label("sub_pvlds")
        a(f"v_add_u32 v63, {sPV}, v1")
        steps = [(t, r) for t in (6, 7) for r in range(4)]
        bb = lambda k: 48 + 4 * (k % 3)
        def rd(k):
            t, r = steps[k]; b = 16 + 8 * (k % 3)
            for hf in range(2):
                a(f"ds_read_b128 v[{b+4*hf}:{b+4*hf+3}], v63 offset:{(t-6)*8192 + (r*2+hf)*1024}")
        rd(0); rd(1); rd(2)
        for k in range(2):
            for i in self.bop(*steps[k], bb(k)): a(i)
        for k, (t, r) in enumerate(steps):
            nx = self.bop(*steps[k + 2], bb(k + 2)) if k + 2 < 8 else []
            issued = 3 if k == 0 else min(8, k + 2)
            a(f"s_waitcnt lgkmcnt({(issued - k - 1)*2})")
            b = 16 + 8 * (k % 3)
            for hf in range(2):
                a(f"v_mfma_f32_16x16x32_bf16 v[{40+4*hf}:{43+4*hf}], v[{b+4*hf}:{b+4*hf+3}], v[{bb(k)}:{bb(k)+3}], v[{40+4*hf}:{43+4*hf}]")
                for i in nx[2*hf:2*hf+2]: a(i)
            if k >= 1 and k + 2 < 8: rd(k + 2)
        self.ret()

    def sub_ml(self):
        a = self.a
        a.label("sub_mlw")
        a(f"""v_bfe_u32 v24, v1, 5, 1
        v_lshlrev_b32 v24, 5, v24
        v_add_f32_dpp {vL}, {vL}, {vL} row_ror:4 {DPPALL}
        v_add_u32 v25, {L_ML}, v24
        s_lshl_b32 {sT}, {sWAVE}, 3
        v_add_f32_dpp {vL}, {vL}, {vL} row_ror:8 {DPPALL}
        v_add_u32 v24, {sT}, v25""")
        self.xgroup("v_add_f32", [vL], ["v63"])
        a(f"""ds_write_b64 v24, v[60:61]
        s_waitcnt lgkmcnt(0)
        s_barrier
        ds_read_b128 v[16:19], v25
        ds_read_b128 v[20:23], v25 offset:16""")
        self.ret()
        a.label("sub_mls")
        a(f"""s_waitcnt lgkmcnt(0)
        v_min3_f32 v24, v16, v18, v20
        v_min_f32 v24, v24, v22
        v_sub_f32 v16, v24, v16
        v_sub_f32 v18, v24, v18
        v_sub_f32 v20, v24, v20
        v_sub_f32 v22, v24, v22
        v_sub_f32 v25, v24, {vNM}
        v_exp_f32 v16, v16
        v_exp_f32 v18, v18
        v_exp_f32 v20, v20
        v_exp_f32 v22, v22
        v_exp_f32 v25, v25
        v_mul_f32 v26, v16, v17
        v_fmac_f32 v26, v18, v19
        v_fmac_f32 v26, v20, v21
        v_fmac_f32 v26, v22, v23
        v_rcp_f32 v27, v26
        s_cmp_lg_u32 {sWAVE}, 0
        v_log_f32 v26, v26
        v_mul_f32 {vL}, v25, v27
        s_cbranch_scc1 .Lmls_done
        v_sub_f32 v26, v26, v24
        v_mov_b32 v27, {sN}
        v_lshlrev_b32 v24, 3, v1
        s_mov_b64 exec, 5""")
        self.local_store(f"buffer_store_dwordx2 v[26:27], v24, {WS}, {sLAMP} offen")
        a("s_mov_b64 exec, -1")
        a.label(".Lmls_done")
        self.ret()
    def ldwo(self):
        a = self.a
        a(f"""v_bfe_u32 v58, v1, 4, 3
        v_bfe_u32 v59, v1, 7, 1
        v_lshl_add_u32 v58, v59, 5, v58
        v_mul_u32_u24 v58, 896, v58
        v_bfe_u32 v59, v1, 8, 2
        v_lshl_add_u32 v58, v59, 4, v58""")
        for k in range(4):
            a(f"buffer_load_dwordx4 v[{24+4*k}:{27+4*k}], v58, {WO}, {sWOr[k]} offen")
    def perm_inplace(self):
        a = self.a
        free = 59
        m = [[None] * 8, [None] * 8]
        for p in range(2):
            for w in range(4):
                A = 24 + p * 8 + w; B = A + 4
                a(f"v_perm_b32 v{free}, v{B}, v{A}, {sSELLO}")
                a(f"v_perm_b32 v{A}, v{B}, v{A}, {sSELHI}")
                m[p][2 * w] = free; m[p][2 * w + 1] = A
                free = B
        return m
    def sub_s0(self):
        a = self.a
        a.label("sub_s0")
        a(f"""s_add_u32 {sT}, {sPV}, 8192
        v_add_u32 v58, {sT}, v1
        v_lshlrev_b32 v56, 3, v0
        v_add_u32 v56, {L_BB + 8192}, v56
        v_bfe_u32 v57, v0, 1, 1              ; par
        v_bfe_u32 v8, v0, 3, 2               ; tt
        v_lshl_add_u32 v57, v8, 1, v57       ; e
        v_lshrrev_b32 v8, 5, v0              ; hf*4+g'""")
        for i in range(8): a(f"v_mul_f32 v{40+i}, v{40+i}, {vL}")
        a(f"""ds_write_b128 v58, v[40:43]
        ds_write_b128 v58, v[44:47] offset:1024
        v_lshlrev_b32 v9, 4, v57
        v_lshl_add_u32 v9, v8, 7, v9
        v_bfe_u32 v8, v0, 2, 1               ; h
        v_lshl_add_u32 v9, v8, 10, v9
        v_and_b32 v57, 3, v57
        v_lshlrev_b32 v57, 3, v57
        v_bfe_u32 v57, {sN}, v57, 8          ; tag
        v_mov_b32 v8, 0xff
        s_waitcnt lgkmcnt(0)
        s_barrier
        ds_read_b64 v[48:49], v56
        ds_read_b64 v[50:51], v56 offset:16384
        ds_read_b64 v[52:53], v56 offset:32768
        ds_read_b64 v[54:55], v56 offset:49152
        s_waitcnt lgkmcnt(2)
        v_add_f32 v48, v48, v50
        v_add_f32 v49, v49, v51
        s_waitcnt lgkmcnt(0)
        v_add_f32 v52, v52, v54
        v_add_f32 v53, v53, v55
        v_add_f32 v48, v48, v52
        v_add_f32 v49, v49, v53
        s_mov_b32 {sT}, 0x55555555
        s_cmp_eq_u32 {sFAST}, 1
        v_mov_b32_dpp v50, v48 quad_perm:[1,1,3,3] {DPPALL}
        v_mov_b32_dpp v51, v49 quad_perm:[1,1,3,3] {DPPALL}
        v_bfi_b32 v48, v8, v57, v48
        s_mov_b32 exec_lo, {sT}
        s_mov_b32 exec_hi, {sT}
        s_cbranch_scc1 .Ls0_f
        buffer_store_dwordx4 v[48:51], v9, {WS}, {sRECP} offen sc1
        s_mov_b64 exec, -1""")
        self.ret()
        a.label(".Ls0_f")
        a(f"buffer_store_dwordx4 v[48:51], v9, {WS}, {sRECP} offen\ns_mov_b64 exec, -1")
        self.ret()
    def sub_s1(self):
        a = self.a
        a.label("sub_s1")
        a(f"""v_bfe_u32 v62, v1, 8, 2
        v_lshlrev_b32 v63, 6, v62
        v_bfe_u32 v61, v1, 4, 3
        v_lshl_add_u32 v63, v61, 3, v63
        v_lshlrev_b32 v62, 14, v62
        v_and_b32 v61, 0xf0, v1
        v_add_u32 v62, v62, v61""")
        oregs = [8, 12, 16, 20, 40, 44, 4, 52]
        loads = [f"buffer_load_dwordx2 v[56:57], v63, {WS}, {sLAMG} offen sc1"]
        for k in range(8):
            loads.append(f"buffer_load_dwordx4 v[{oregs[k]}:{oregs[k]+3}], v62, {WS}, {sRECG[k>>1]} offen offset:{(k&1)*2048} sc1")
        pm = []
        def shadow():
            a(f"""v_bfe_u32 v61, v1, 4, 2
            v_lshlrev_b32 v61, 3, v61
            v_bfe_u32 v61, {sN}, v61, 8
            s_waitcnt vmcnt(9)""")
            pm.append(self.perm_inplace())
        self.poll(loads, [(0xff, [(f"v{o}", "v61") for o in oregs], True), (0xffffffff, [("v57", sN)], True)], ["v58", "v60"], shadow=shadow)
        m = pm[0]
        a(f"""v_max_f32_dpp v58, v56, v56 row_ror:1 {DPPALL}
        v_lshrrev_b32 v62, 6, v1
        v_lshlrev_b32 v62, 3, v62
        v_max_f32_dpp v58, v58, v58 row_ror:2 {DPPALL}
        s_lshl_b32 {sT}, {sWAVE}, 7
        s_add_u32 {sT}, {sT}, {L_YP}
        v_max_f32_dpp v58, v58, v58 row_ror:4 {DPPALL}""")
        self.xgroup("v_max_f32", ["v58"], ["v60"])
        a(f"""v_sub_f32 v56, v56, v58
        v_exp_f32 v56, v56
        v_add_u32 v62, {sT}, v62
        s_nop 0""")
        for i in range(4): a(f"v_mul_f32_dpp v{8+i}, v56, v{8+i} row_newbcast:0 {DPPALL}")
        a(f"v_add_f32_dpp v58, v56, v56 row_ror:1 {DPPALL}")
        for k in range(1, 8):
            for i in range(4): a(f"v_fmac_f32_dpp v{8+i}, v56, v{oregs[k]+i} row_newbcast:{k} {DPPALL}")
            if k == 1: a(f"v_add_f32_dpp v58, v58, v58 row_ror:2 {DPPALL}")
            if k == 2: a(f"v_add_f32_dpp v58, v58, v58 row_ror:4 {DPPALL}")
        self.xgroup("v_add_f32", ["v58", "v8", "v9", "v10", "v11"], ["v60", "v12", "v13", "v14", "v15"])
        a(f"""v_rcp_f32 v58, v58
        v_and_b32 v50, 0x70, v1
        v_mul_f32 v8, v8, v58
        v_mul_f32 v9, v9, v58
        v_mul_f32 v10, v10, v58
        v_mul_f32 v11, v11, v58
        v_cvt_pk_bf16_f32 v8, v8, v9
        v_cvt_pk_bf16_f32 v9, v10, v11
        v_add_u32 v51, {L_YP}, v50""")
        for k in range(8): a(f"v_dot2_f32_bf16 v{40+k}, v{m[0][k]}, v8, 0")
        for k in range(8): a(f"v_dot2_f32_bf16 v{40+k}, v{m[1][k]}, v9, v{40+k}")
        a(f"""v_lshrrev_b32 v52, 7, v1
        v_lshl_add_u32 v50, v52, 15, v50
        v_mov_b32 v52, 0xff""")
        for k in range(4): a(f"v_add_f32_dpp v{40+k}, v{40+k}, v{40+k} row_ror:8 row_mask:0xf bank_mask:0x3")
        for k in range(4): a(f"v_add_f32_dpp v{40+k}, v{44+k}, v{44+k} row_ror:8 row_mask:0xf bank_mask:0xc")
        for k in range(2): a(f"v_add_f32_dpp v{40+k}, v{40+k}, v{40+k} row_shl:4 row_mask:0xf bank_mask:0x5")
        for k in range(2): a(f"v_add_f32_dpp v{40+k}, v{42+k}, v{42+k} row_shr:4 row_mask:0xf bank_mask:0xa")
        a("s_nop 0")
        for k in range(2): a(f"v_add_f32_dpp v{40+k}, v{40+k}, v{40+k} quad_perm:[2,3,0,1] {DPPALL}")
        a(f"s_cmp_lg_u32 {sWAVE}, 0")
        for k in range(2): a(f"v_add_f32_dpp v{40+k}, v{40+k}, v{40+k} quad_perm:[1,0,3,2] {DPPALL}")
        a(f"""ds_write_b64 v62, v[40:41]
        s_waitcnt lgkmcnt(0)
        s_barrier
        s_cbranch_scc1 .Ls1_done
        ds_read_b128 v[8:11], v51
        ds_read_b128 v[12:15], v51 offset:128
        ds_read_b128 v[16:19], v51 offset:256
        ds_read_b128 v[20:23], v51 offset:384
        s_waitcnt lgkmcnt(2)""")
        for i in range(4): a(f"v_add_f32 v{8+i}, v{8+i}, v{12+i}")
        a("s_waitcnt lgkmcnt(0)")
        for i in range(4): a(f"v_add_f32 v{16+i}, v{16+i}, v{20+i}")
        for i in range(4): a(f"v_add_f32 v{8+i}, v{8+i}, v{16+i}")
        a("v_bfi_b32 v8, v52, v61, v8")
        if self.o["ycopies"] == 1: a("s_mov_b64 exec, 0xff")
        a(f"buffer_store_dwordx4 v[8:11], v50, {WS}, {sYXP} offen sc1\ns_mov_b64 exec, -1\ns_nop 0")
        a.label(".Ls1_done")
        self.ret()
    def sub_s2(self):
        a = self.a
        a.label("sub_s2")
        a(f"""v_lshrrev_b32 v2, 7, v1
        v_mul_u32_u24 v2, 1792, v2
        v_and_b32 v3, 0x70, v1
        v_add_u32 v2, v2, v3""")
        def shadow():
            a(f"""v_lshrrev_b32 v42, 1, v3
            v_lshrrev_b32 v3, 9, v1
            v_lshl_add_u32 v42, v3, 2, v42
            s_lshl_b32 {sT2}, {sC}, 6
            v_add_u32 v42, {sT2}, v42
            v_lshrrev_b32 v3, 2, v1
            v_add_u32 v3, {L_XO}, v3
            ds_read_b32 v52, v3
            v_bfe_u32 v5, v1, 4, 2
            v_lshlrev_b32 v5, 3, v5
            v_bfe_u32 v5, {sN}, v5, 8
            v_mov_b32 v41, {sN}
            s_waitcnt lgkmcnt(0)
            v_lshlrev_b32 v53, 16, v52
            v_and_b32 v52, 0xffff0000, v52""")
        self.poll([f"buffer_load_dwordx4 v[44:47], v2, {WS}, {sYXG} offen sc1",
                   f"buffer_load_dwordx4 v[48:51], v2, {WS}, {sYXG2} offen sc1"],
                  [(0xff, [("v44", "v5"), ("v48", "v5")], True)], ["v4"], shadow=shadow)
        a(f"""v_add_f32 v44, v44, v48
        v_add_f32 v46, v46, v50
        v_add_f32 v45, v45, v49
        v_add_f32 v47, v47, v51
        v_permlane32_swap_b32 v44, v46
        s_nop 0
        v_permlane32_swap_b32 v45, v47
        v_add_f32 v44, v44, v46
        v_add_f32 v45, v45, v47
        s_nop 0
        v_add_f32_dpp v44, v44, v44 row_ror:8 {DPPALL}
        v_add_f32_dpp v45, v45, v45 row_ror:8 {DPPALL}
        v_mov_b32 v46, v44
        v_mov_b32 v47, v45
        s_nop 0
        v_permlane16_swap_b32 v44, v46
        v_permlane16_swap_b32 v45, v47
        v_add_f32 v44, v44, v46
        v_add_f32 v45, v45, v47
        v_cvt_pk_bf16_f32 v44, v44, v45
        v_and_b32 v45, 0xffff0000, v44
        v_lshlrev_b32 v44, 16, v44
        v_add_f32 v44, v44, v53
        v_add_f32 v45, v45, v52
        v_cvt_pk_bf16_f32 v40, v44, v45""")
        self.ret()
    def wbuf(self, kk):
        if kk < 8: return 8 + 4 * kk
        if kk < 10: return 56 + 4 * (kk - 8)
        return 8 + 4 * (kk - 10)
    def sub_s3pre(self):
        a = self.a
        a.label("sub_s3pre")
        a(f"""v_bfe_u32 v6, v1, 8, 2
        v_mul_u32_u24 v7, 448, v6
        v_mul_u32_u24 v6, 3584, v6
        v_bfe_u32 v5, v1, 4, 4
        v_lshl_add_u32 v6, v5, 3, v6
        v_add_u32 v6, {sWQ}, v6
        v_lshl_add_u32 v7, v5, 5, v7
        v_cmp_gt_u32 vcc, 14, v5
        v_mov_b32 v5, 0x1000
        s_nop 0
        v_cndmask_b32 v7, v5, v7, vcc""")
        self.ret()
        a.label("sub_s3w")
        for kk in range(10):
            b = self.wbuf(kk)
            a(f"ds_read_b64_tr_b16 v[{b}:{b+1}], v6 offset:{kk*256}")
            a(f"ds_read_b64_tr_b16 v[{b+2}:{b+3}], v6 offset:{kk*256+128}")
        self.ret()
    def sub_s3(self):
        a = self.a
        a.label("sub_s3")
        self.poll([f"buffer_load_dwordx4 v[44:47], v7, {XI}, 0 offen sc1", f"buffer_load_dwordx4 v[48:51], v7, {XI}, 0 offen offset:16 sc1"],
                  [self.t16([f"v{44+i}" for i in range(8)])], ["v40"], lanemask=0x3fff3fff)
        for i in range(4): a(f"v_perm_b32 v{40+i}, v{45+2*i}, v{44+2*i}, {sSELHI}")
        a.label("sub_s3b")
        for i in range(8): a(f"v_mov_b32 v{44+i}, {sONES}")
        a("s_waitcnt lgkmcnt(0)")
        def bc(kk):
            bb = 44 + 4 * (kk & 1)
            for i in range(4): a(f"v_mov_b32_dpp v{bb+i}, v{40+i} row_newbcast:{kk} row_mask:0xf bank_mask:0x3")
        S, Q2, T1, T2 = "v2", "v3", "v4", "v5"
        st = [
            [f"v_dot2_f32_bf16 {S}, v40, {sONES}, 0", f"v_dot2_f32_bf16 {Q2}, v40, v40, 0", f"v_dot2_f32_bf16 {S}, v41, {sONES}, {S}", f"v_dot2_f32_bf16 {Q2}, v41, v41, {Q2}"],
            [f"v_dot2_f32_bf16 {S}, v42, {sONES}, {S}", f"v_dot2_f32_bf16 {Q2}, v42, v42, {Q2}", f"v_dot2_f32_bf16 {S}, v43, {sONES}, {S}", f"v_dot2_f32_bf16 {Q2}, v43, v43, {Q2}"],
        ]
        for ctl in ["row_ror:8", "row_ror:4", "row_ror:2", "row_ror:1"]:
            st.append([f"v_add_f32_dpp {S}, {S}, {S} {ctl} {DPPALL}", f"v_add_f32_dpp {Q2}, {Q2}, {Q2} {ctl} {DPPALL}"])
        st[-1] += [f"v_mov_b32 {T1}, {S}", f"v_mov_b32 {T2}, {Q2}"]
        st.append([f"v_permlane16_swap_b32 {S}, {T1}", f"v_permlane16_swap_b32 {Q2}, {T2}", f"v_add_f32 {S}, {S}, {T1}", f"v_add_f32 {Q2}, {Q2}, {T2}", f"v_mov_b32 {T1}, {S}", f"v_mov_b32 {T2}, {Q2}"])
        st.append([f"v_permlane32_swap_b32 {S}, {T1}", f"v_permlane32_swap_b32 {Q2}, {T2}", f"v_add_f32 {S}, {S}, {T1}", f"v_add_f32 {Q2}, {Q2}, {T2}"])
        st.append([f"v_mul_f32 {S}, {hex(f2u(1.0/448))}, {S}", f"v_mul_f32 {Q2}, {hex(f2u(1.0/448))}, {Q2}", f"v_fma_f32 {Q2}, -{S}, {S}, {Q2}"])
        st.append([f"v_max_f32 {Q2}, 0, {Q2}", f"v_add_f32 {Q2}, {hex(f2u(1e-5))}, {Q2}", f"v_rsq_f32 {Q2}, {Q2}"])
        st.append([f"v_mul_f32 {S}, {S}, {Q2}"])
        bc(0)
        for kk in range(14):
            if kk + 1 < 14: bc(kk + 1)
            else: a("s_nop 1")
            if kk >= 10: a(f"s_waitcnt lgkmcnt({(13-kk)*2})")
            b = self.wbuf(kk); bb = 44 + 4 * (kk & 1)
            c = "0" if kk == 0 else "v[52:55]"
            a(f"v_mfma_f32_16x16x32_bf16 v[52:55], v[{b}:{b+3}], v[{bb}:{bb+3}], {c}")
            if 1 <= kk <= 4:
                k2 = kk + 9; b2 = self.wbuf(k2)
                a(f"ds_read_b64_tr_b16 v[{b2}:{b2+1}], v6 offset:{k2*256}")
                a(f"ds_read_b64_tr_b16 v[{b2+2}:{b2+3}], v6 offset:{k2*256+128}")
            if kk < len(st):
                for i in st[kk]: a(i)
        a(f"v_lshrrev_b32 v48, 4, v1\nv_mov_b32 v49, {sN}\ns_nop 5")
        for i in range(4): a(f"v_mul_f32_dpp v{44+i}, v{52+i}, {S} row_shl:8 {DPPALL}")
        for i in range(4): a(f"v_fma_f32 v{52+i}, v{52+i}, {Q2}, -v{44+i}")
        a("v_cvt_pk_bf16_f32 v52, v52, v53\nv_cvt_pk_bf16_f32 v53, v54, v55")
        a(f"""v_perm_b32 v40, v52, v49, {sSELLO}
        v_perm_b32 v41, v52, v49, {sSELHI}
        v_perm_b32 v42, v53, v49, {sSELLO}
        v_perm_b32 v43, v53, v49, {sSELHI}""")
        self.ret()
    def q_loads(self):
        return [f"buffer_load_dwordx4 v[40:43], v49, {WS}, {sQSG} offen sc1", f"buffer_load_dwordx4 v[44:47], v49, {WS}, {sQSG} offen offset:16 sc1"]
    def q_check(self):
        return self.t16(["v40", "v41", "v44", "v45"])
    def sub_s4(self):
        a = self.a
        a.label("sub_s4")
        a("v_lshlrev_b32 v49, 1, v1")
        def shadow():
            self.consts()
            a(f"v_add_u32 v50, {L_Q}, v1")
        self.poll(self.q_loads(), [self.q_check()], ["v48"], shadow=shadow)
        for i in range(4): a(f"v_perm_b32 v{40+i}, v{41+2*i}, v{40+2*i}, {sSELHI}")
        a("ds_write_b128 v50, v[40:43]")
        self.ret()
    def sub_g0(self):
        a = self.a
        a.label("sub_g0issue")
        a(f"""s_add_u32 {sT4}, {sQSG}, {XCCS - QS}
        v_and_b32 v52, 0x1ff, v1
        v_lshlrev_b32 v49, 1, v1
        buffer_load_dwordx2 v[50:51], v52, {WS}, {sT4} offen sc1""")
        for l in self.q_loads(): a(l)
        self.ret()
        a.label("sub_g0check")
        self.validate([self.q_check(), (0xffffffff, [("v51", sN)], True)], ["v48", "v53"])
        a(f"""s_cbranch_vccz .Lg0ok
        s_cmp_eq_u32 {sSPIN}, 0
        s_cbranch_scc1 .Lg0bail
        s_sub_u32 {sSPIN}, {sSPIN}, 1""")
        self.ret()
        a.label(".Lg0ok")
        a(f"""s_getreg_b32 {sT2}, hwreg(HW_REG_XCC_ID, 0, 4)
        v_cmp_ne_u32 vcc, {sT2}, v50
        s_nop 1
        s_cmp_eq_u64 vcc, 0
        s_cselect_b32 {sFAST}, 1, 0""")
        a.label(".Lg0bail")
        for i in range(4): a(f"v_perm_b32 v{40+i}, v{41+2*i}, v{40+2*i}, {sSELHI}")
        a(f"""v_add_u32 v48, {L_Q}, v1
        ds_write_b128 v48, v[40:43]
        s_add_u32 {sT}, {sFAST}, 1
        v_mov_b32 v50, {sT}
        v_mov_b32 v53, {L_ML + 64}
        s_waitcnt lgkmcnt(0)
        ds_write_b32 v53, v50
        s_mov_b32 s2, 1""")
        self.ret()

    def build(self):
        a = self.a
        o = self.o
        a(f"""s_cmp_ge_u32 s2, 256
        s_cbranch_scc1 .Lend
        s_load_dwordx16 s[64:79], s[0:1], 0
        s_load_dwordx8 s[80:87], s[0:1], 64
        s_load_dwordx2 s[88:89], s[0:1], 96
        {"s_memrealtime s[94:95]" if self.stamps else ""}
        v_lshrrev_b32 v1, 6, v0
        s_and_b32 {sG}, s2, 7
        v_readfirstlane_b32 {sWAVE}, v1
        s_lshr_b32 {sC}, s2, 3
        v_and_b32 v1, 63, v0
        v_lshlrev_b32 v1, 4, v1
        s_mov_b32 {sSELLO}, 0x05040100
        s_mov_b32 {sSELHI}, 0x07060302
        s_mov_b32 {sSC}, {hex(f2u(SCALE))}
        s_mov_b32 {sONES}, 0x3f803f80
        s_mov_b32 {sSPIN}, 0x40000
        s_mov_b32 {sFAST}, 0
        s_mov_b32 {sL}, 0
        s_mov_b32 {sWQ}, {L_WQA}
        s_lshl_b32 {sLDSW}, {sWAVE}, 14
        s_lshl_b32 {sAoff}, {sG}, 23
        s_lshl_b32 {sT}, {sC}, 13
        s_add_u32 {sAoff}, {sAoff}, {sT}
        s_add_u32 {sBoff}, {sAoff}, {12288*512}
        s_lshl_b32 {sT}, {sWAVE}, 21
        s_add_u32 {sAoff}, {sAoff}, {sT}
        s_lshl_b32 {sT}, {sWAVE}, 18
        s_add_u32 {sBoff}, {sBoff}, {sT}""")
        self.consts()
        a("s_waitcnt lgkmcnt(0)")
        def srd(d, lo, size):
            a(f"s_mov_b32 s{d}, s{lo}\ns_mov_b32 s{d+1}, s{lo+1}\ns_mov_b32 s{d+2}, {hex(size)}\ns_mov_b32 s{d+3}, 0x20000")
        a(f"s_load_dword {sN}, s[88:89], {EPOCH}")
        srd(28, 70, 3670016); srd(32, 72, 3670016); srd(36, 64, 896)
        a(f"""s_cmp_eq_u32 {sWAVE}, 1
        s_cselect_b32 s28, s80, s28
        s_cselect_b32 s29, s81, s29
        s_cmp_eq_u32 {sWAVE}, 3
        s_cselect_b32 s32, s82, s32
        s_cselect_b32 s33, s83, s33
        s_cmp_ge_u32 {sWAVE}, 2
        s_cbranch_scc1 .Lst_wo""")
        self.twq()
        a("s_branch .Lst_j")
        a.label(".Lst_wo")
        self.pfwo()
        a.label(".Lst_j")
        a(f"s_mov_b64 s[28:29], s[70:71]\ns_mov_b32 {sRL}, {L_WQA}")
        self.call("sub_wq")
        L = self.only_wave(0)
        self.call("sub_s3pre")
        a(f"""v_lshrrev_b32 v47, 1, v7
        buffer_load_dwordx4 v[40:43], v47, {XI}, 0 offen {self.nt}
        v_and_b32 v48, 0x70, v1
        v_lshrrev_b32 v48, 1, v48
        v_lshrrev_b32 v49, 9, v1
        v_lshl_add_u32 v48, v49, 2, v48
        s_lshl_b32 {sT2}, {sC}, 6
        v_add_u32 v48, {sT2}, v48
        buffer_load_dword v53, v48, {XI}, 0 offen {self.nt}""")
        a.label(L)
        tok0 = self.vm
        srd(8, 66, 0x4000000); srd(12, 68, 0x4000000)
        a("s_mov_b32 s28, s12\ns_mov_b32 s29, s13\ns_mov_b32 s30, 0x4000000")
        def pin():
            if o["pinxy"]:
                a(f"v_lshlrev_b32 v58, 3, v1\ns_mov_b32 m0, {L_SCR}\ns_nop 0")
                self.vmem(f"buffer_load_dword v58, {VA}, {sRS} offen sc1 lds")
        self.dmaA(6, L_BB); pin()
        srd(24, 88, WS_SIZE)
        srd(16, 76, 0x4000000); srd(20, 78, 0x4000000)
        a(f"""s_mov_b64 s[44:45], s[72:73]
        s_mov_b64 s[46:47], s[82:83]
        s_mov_b64 s[48:49], s[84:85]
        s_mov_b64 s[32:33], s[72:73]
        s_mov_b64 s[42:43], s[80:81]
        s_mov_b64 s[40:41], s[86:87]
        s_mov_b32 s2, 0
        s_add_u32 {sPV}, {sLDSW}, {L_BB}
        s_mov_b32 {sT5}, 1""")
        if self.stamps: a(f"s_mov_b32 s{ST0}, s94")
        a(f"""s_cmp_ge_u32 {sC}, 14
        s_cselect_b32 {sT2}, 1, 0
        s_mul_i32 {sT3}, {sT2}, 14
        s_sub_u32 {sT3}, {sC}, {sT3}
        s_lshl_b32 {sT4}, {sG}, 1
        s_add_u32 {sT4}, {sT4}, {sT2}
        s_mul_i32 {sT4}, {sT4}, {256*896}
        s_lshl_b32 {sT3}, {sT3}, 6
        s_add_u32 {sT4}, {sT4}, {sT3}
        s_mul_i32 {sT}, {sWAVE}, {64*896}
        s_add_u32 {sWOr[0]}, {sT4}, {sT}
        s_add_u32 {sWOr[1]}, {sWOr[0]}, {8*896}
        s_add_u32 {sWOr[2]}, {sWOr[0]}, {16*896}
        s_add_u32 {sWOr[3]}, {sWOr[0]}, {24*896}
        s_lshl_b32 {sT}, {sG}, 16
        s_lshl_b32 {sT3}, {sC}, 11
        s_add_u32 {sRECP}, {sT}, {sT3}
        s_lshl_b32 {sT3}, {sT2}, 10
        s_add_u32 {sT}, {sT}, {sT3}
        s_lshl_b32 {sT3}, {sWAVE}, 8
        s_add_u32 {sRECG[0]}, {sT}, {sT3}
        s_add_u32 {sRECG[1]}, {sRECG[0]}, 4096
        s_add_u32 {sRECG[2]}, {sRECG[0]}, 8192
        s_add_u32 {sRECG[3]}, {sRECG[0]}, 12288
        s_lshl_b32 {sT}, {sG}, 9
        s_add_u32 {sT}, {sT}, {LAM}
        s_lshl_b32 {sT3}, {sC}, 3
        s_add_u32 {sLAMP}, {sT}, {sT3}
        s_lshl_b32 {sT3}, {sT2}, 8
        s_add_u32 {sLAMG}, {sT}, {sT3}
        s_mul_i32 {sT}, {sG}, 28
        s_add_u32 {sT}, {sT}, {sC}
        s_lshl_b32 {sT}, {sT}, 7
        s_add_u32 {sYXP}, {sT}, {YX}
        s_lshl_b32 {sT}, {sG}, 15
        {"s_mov_b32 " + sT + ", 0" if o["ycopies"] == 1 else "s_nop 0"}
        s_lshl_b32 {sT3}, {sC}, 7
        s_add_u32 {sT}, {sT}, {sT3}
        s_add_u32 {sYXG}, {sT}, {YX}
        s_add_u32 {sYXG2}, {sYXG}, {8*1792}
        s_lshl_b32 {sT}, {sG}, 11
        s_add_u32 {sXSo}, {sT}, {XS}
        s_add_u32 {sQSG}, {sT}, {QS}
        s_lshl_b32 {sT3}, {sC}, 6
        s_add_u32 {sQSP}, {sQSG}, {sT3}
        s_waitcnt lgkmcnt(0)
        s_add_u32 {sN}, {sN}, 1
        s_and_b32 {sH0}, {sN}, 0xffff
        s_lshr_b32 {sH1}, {sN}, 16""")
        self.dmaA(7, L_BB + 8192); pin()
        a(f"s_mov_b64 s[28:29], s[42:43]\ns_mov_b32 s30, 3670016\ns_mov_b32 {sRL}, {L_WQB}")
        self.call("sub_wq")
        a("s_mov_b32 s28, s20\ns_mov_b32 s29, s21\ns_mov_b32 s30, 0x4000000")
        a(f"""v_mov_b32 v46, 0
        v_mov_b32 v47, 0
        v_mov_b32 v45, {L_ML + 64}
        ds_write_b64 v45, v[46:47]
        v_lshrrev_b32 v45, 1, v1
        v_add_u32 v45, {L_Z}, v45
        ds_write_b64 v45, v[46:47]
        s_waitcnt lgkmcnt(0)""")
        self.waitvm(tok0)
        a("s_barrier")
        L = self.only_wave(0)
        a(f"""v_lshrrev_b32 v48, 2, v1
        v_add_u32 v48, {L_XO}, v48
        ds_write_b32 v48, v53""")
        self.call("sub_s3w")
        self.call("sub_s3b")
        a(f"""s_getreg_b32 {sT2}, hwreg(HW_REG_XCC_ID, 0, 4)
        s_mul_i32 {sT3}, {sC}, 48
        s_sub_u32 {sT3}, {XCCS - QS}, {sT3}
        v_writelane_b32 v40, {sT2}, 1
        v_writelane_b32 v41, {sN}, 1
        v_writelane_b32 v48, {sT3}, 1
        s_mov_b32 exec_lo, 0x10003
        s_mov_b32 exec_hi, 0x10001
        buffer_store_dwordx4 v[40:43], v48, {WS}, {sQSP} offen sc1
        s_mov_b64 exec, -1""")
        self.consts()
        a.label(L)
        g0 = o["g0"]
        for t in range(g0): self.loadK_reg(t)
        L = self.only_wave(0)
        self.call("sub_g0issue")
        a.label(L)
        for t in range(g0, 8):
            self.loadK_reg(t)
            L = self.only_wave(0)
            a(f"s_cmp_lg_u32 s2, 0\ns_cbranch_scc1 {L}\ns_waitcnt vmcnt(8)")
            if t == 7: a.label(".Lg0loop")
            self.call("sub_g0check")
            a(f"s_cmp_lg_u32 s2, 0\ns_cbranch_scc1 {L}")
            self.call("sub_g0issue")
            if t == 7: a("s_waitcnt vmcnt(0)\ns_branch .Lg0loop")
            a.label(L)
        tokK = self.vm
        a(f"s_add_u32 s24, s24, {BLK}\ns_addc_u32 s25, s25, 0")
        self.loadV_reg(0)
        tokV1 = self.loadV_reg(1)
        a(f"v_mov_b32 v46, {L_ML + 64}")
        a.label(".Lqflag")
        a(f"""ds_read_b32 v44, v46
        s_waitcnt lgkmcnt(0)
        v_readfirstlane_b32 {sFAST}, v44
        s_nop 3
        s_cmp_eq_u32 {sFAST}, 0
        s_cbranch_scc1 .Lqflag
        s_sub_u32 {sFAST}, {sFAST}, 1""")
        self.waitvm(tokK)
        self.call("sub_qka0")
        self.loadV_reg(2)
        self.call("sub_qka1")
        self.call("sub_sma")
        tokV3 = self.loadV_reg(3)
        self.call("sub_pvlds")
        self.waitvm(tokV1)
        self.call("sub_pv01")
        a(f"s_cmp_eq_u32 {sWAVE}, 0\ns_cbranch_scc1 .Lkb_done")
        self.dmaB("K", 0, L_KB)
        self.dmaB("K", TILE, L_KB + 8192)
        a(f"""s_cmp_eq_u32 {sWAVE}, 3
        s_cbranch_scc1 .Lkb_done
        s_lshl_b32 {sT}, {sWAVE}, 18
        s_sub_u32 {sRS}, {sBoff}, {sT}
        s_sub_u32 {sT2}, {sWAVE}, 1
        s_lshl_b32 {sT3}, {sT2}, 20
        s_add_u32 {sRS}, {sRS}, {sT3}
        s_lshl_b32 {sRL}, {sT2}, 13""")
        self.call("sub_dmaK")
        a.label(".Lkb_done")
        if o["vbpre"]: self.dmaB("V", 0, L_BB)
        tokV4 = self.loadV_reg(4)
        self.waitvm(tokV3)
        self.call("sub_pv23")
        tokV5 = self.loadV_reg(5)
        self.call("sub_mlw")
        self.call("sub_mls")
        self.waitvm(tokV4)
        self.call("sub_pv4")
        a("s_waitcnt vmcnt(0)")
        self.call("sub_pv5")
        a.label(".Lchain")
        self.stamp()
        a(f"s_cmp_ge_u32 {sC}, 28\ns_cbranch_scc1 .Lno_s1")
        self.ldwo()
        self.call("sub_s0")
        self.stamp()
        self.call("sub_s1")
        a("s_branch .Ls1_end")
        a.label(".Lno_s1")
        self.call("sub_s0")
        self.stamp()
        a("s_barrier")
        a.label(".Ls1_end")
        self.stamp()
        a(f"""s_cmp_eq_u32 {sL}, 3
        s_cbranch_scc1 .Lfinal
        s_bitcmp1_b32 {sL}, 0
        s_cselect_b32 s32, s44, s46
        s_cselect_b32 s33, s45, s47
        s_cselect_b32 {sWQ}, {L_WQA}, {sWQ}
        s_cbranch_scc1 .Lwqset
        s_mov_b32 {sWQ}, {L_WQB}""")
        a.label(".Lwqset")
        a(f"s_cmp_lg_u32 {sWAVE}, 0\ns_cbranch_scc1 .Lloader")
        self.call("sub_s3pre")
        self.call("sub_s3w")
        a(f"""s_add_u32 s36, s24, {sXSo}
        s_addc_u32 s37, s25, 0
        s_mov_b32 s38, 1792
        s_cmp_ge_u32 {sC}, 14
        s_cbranch_scc1 .Lno_s2""")
        self.call("sub_s2")
        a(f"""v_lshlrev_b32 v42, 1, v42
        v_perm_b32 v44, v40, v41, {sSELLO}
        v_perm_b32 v45, v40, v41, {sSELHI}
        s_mov_b32 exec_lo, 0xff
        s_mov_b32 exec_hi, 0xff""")
        self.local_store(f"buffer_store_dwordx2 v[44:45], v42, {WS}, {sXSo} offen")
        a("s_mov_b64 exec, -1\nds_write_b32 v3, v40")
        a.label(".Lno_s2")
        self.stamp()
        self.call("sub_s3")
        a("s_mov_b32 exec_lo, 0x10001\ns_mov_b32 exec_hi, 0x10001")
        self.local_store(f"buffer_store_dwordx4 v[40:43], v48, {WS}, {sQSP} offen")
        a("s_mov_b64 exec, -1")
        self.stamp()
        a(f"s_cmp_lg_u32 {sL}, 0\ns_cbranch_scc1 .Lw0p1")
        self.call("sub_qkbpre")
        a.label(".Lw0p1")
        self.cinit(8, 0xc)
        self.call("sub_s4")
        a(f"v_mov_b32 v44, {L_ML + 68}\nv_mov_b32 v45, 1\nds_write_b32 v44, v45\ns_waitcnt lgkmcnt(0)\ns_branch .Lqready")
        a.label(".Lloader")
        self.consts()
        a(f"s_cmp_lg_u32 {sL}, 0\ns_cbranch_scc1 .Lld_n0")
        def job(kind):
            Lu, Le = a.newlabel("ju"), a.newlabel("je")
            a(f"""v_mov_b32 v44, {L_ML + 68}
            ds_read_b32 v45, v44
            s_waitcnt lgkmcnt(0)
            v_readfirstlane_b32 {sT}, v45
            s_nop 3
            s_cmp_eq_u32 {sT}, 1
            s_cbranch_scc1 {Lu}""")
            self.call(f"sub_dma{kind}p")
            a(f"s_branch {Le}")
            a.label(Lu)
            self.call(f"sub_dma{kind}")
            a.label(Le)
        a(f"s_cmp_eq_u32 {sWAVE}, 1\ns_cbranch_scc1 .Lld_own")
        if o["vbpre"]: a(f"s_cmp_eq_u32 {sWAVE}, 2\ns_cbranch_scc1 .Lld_own")
        a(f"""s_lshl_b32 {sT}, {sWAVE}, 18
        s_sub_u32 {sRS}, {sBoff}, {sT}
        s_sub_u32 {sT2}, {sWAVE}, 2
        s_lshl_b32 {sT3}, {sT2}, 20
        s_add_u32 {sRS}, {sRS}, {sT3}
        s_lshl_b32 {sRL}, {sT2}, 13
        s_add_u32 {sRL}, {sRL}, {L_BB}""")
        job("V")
        a.label(".Lld_own")
        if not o["vbpre"]:
            a(f"s_mov_b32 {sRS}, {sBoff}\ns_add_u32 {sRL}, {sLDSW}, {L_BB}")
            job("V")
        a(f"s_add_u32 {sRS}, {sBoff}, {TILE}\ns_add_u32 {sRL}, {sLDSW}, {L_BB + 8192}")
        job("V")
        self.call("sub_qkbpre")
        a("s_branch .Lld_done")
        a.label(".Lld_n0")
        a(f"s_cmp_lg_u32 {sL}, 1\ns_cbranch_scc1 .Lld_done")
        L = self.only_wave(1)
        for w in range(4):
            a(f"s_add_u32 {sRS}, {sBoff}, {TILE + (w-1)*262144}")
            for n in range(2):
                a(f"s_mov_b32 m0, {L_BB + w*16384 + 8192 + n*1024 - n*256}\ns_nop 0")
                a(f"buffer_load_dwordx4 v3, {VBs}, {sRS} offen offset:{n*256} {self.nt} lds")
        a("s_waitcnt vmcnt(0)")
        a.label(L)
        L = self.only_wave(2)
        self.call("sub_qk2")
        self.call("sub_pv67a")
        self.call("sub_pv45")
        a("s_nop 7")
        a.label(L)
        a.label(".Lld_done")
        self.cinit(8, 0xc)
        self.stamp(); self.stamp()
        a.label(".Lqready")
        a(f"""s_add_u32 {sL}, {sL}, 1
        s_add_u32 s24, s24, {BLK}
        s_addc_u32 s25, s25, 0
        s_cmp_eq_u32 {sL}, 2
        s_barrier""")
        if self.stamps:
            self.stamp()
            a(f"s_cmp_eq_u32 {sL}, 2")
        a(f"s_cbranch_scc1 .LlayerA\ns_cmp_eq_u32 {sL}, 3\ns_cbranch_scc1 .Llayer3")
        self.call("sub_qkb")
        self.fine()
        a("s_waitcnt vmcnt(0)")
        self.call("sub_mlw")
        self.call("sub_mls")
        self.fine()
        self.call("sub_pvlds")
        a("s_branch .Lchain")
        a.label(".LlayerA")
        def xy(part):
            t, half = part >> 1, part & 1
            self.aoff(6 + t, sT)
            for n in range(4 * half, 4 * half + 4):
                a(f"buffer_load_dwordx4 a[{t*32+n*4}:{t*32+n*4+3}], v3, {VA}, {sT} offen offset:{(n>>1)*512+(n&1)*256} {self.nt}")
        self.call("sub_qka0")
        xy(0)
        self.call("sub_qka1")
        xy(1)
        self.fine()
        self.call("sub_sma")
        xy(2)
        self.call("sub_mlw")
        self.fine()
        self.call("sub_pv01")
        xy(3)
        self.call("sub_mls")
        self.fine()
        a(f"v_add_u32 v30, {sLDSW}, v1\nv_add_u32 v31, {sPV}, v1")
        for n in range(12): a(f"ds_read_b128 a[{128+4*n}:{131+4*n}], v30 offset:{n*1024}")
        self.call("sub_pv23")
        for n in range(12, 16): a(f"ds_read_b128 a[{128+4*n}:{131+4*n}], v30 offset:{n*1024}")
        for n in range(8): a(f"ds_read_b128 v[{64+4*n}:{67+4*n}], v31 offset:{n*1024}")
        self.call("sub_pv45")
        for n in range(8, 16): a(f"ds_read_b128 v[{64+4*n}:{67+4*n}], v31 offset:{n*1024}")
        self.fine()
        a("s_waitcnt vmcnt(0)")
        self.call("sub_pv67a")
        a("s_waitcnt lgkmcnt(0)\ns_branch .Lchain")
        a.label(".Llayer3")
        self.call("sub_qk2")
        self.call("sub_mlw")
        self.call("sub_pv01")
        self.call("sub_mls")
        a("s_branch .Lchain")
        a.label(".Lfinal")
        a(f"""s_cmp_lg_u32 {sG}, 0
        s_cbranch_scc1 .Lfin
        s_cmp_ge_u32 {sC}, 14
        s_cbranch_scc1 .Lfin
        s_cmp_lg_u32 {sWAVE}, 0
        s_cbranch_scc1 .Lfin
        s_mov_b32 s36, s48
        s_mov_b32 s37, s49
        s_mov_b32 s38, 896""")
        self.call("sub_s2")
        a(f"""s_mov_b32 exec_lo, 0xff
        s_mov_b32 exec_hi, 0xff
        buffer_store_dword v40, v42, {XI}, 0 offen
        s_mov_b64 exec, 1
        s_cmp_lg_u32 {sC}, 0
        s_cbranch_scc1 .Lnoep
        s_sub_u32 s24, s24, {4*BLK}
        s_subb_u32 s25, s25, 0
        v_mov_b32 v43, {EPOCH}
        buffer_store_dword v41, v43, {WS}, 0 offen
        s_add_u32 s24, s24, {4*BLK}
        s_addc_u32 s25, s25, 0""")
        a.label(".Lnoep")
        a("s_mov_b64 exec, -1")
        a.label(".Lfin")
        if self.stamps:
            a(f"s_mov_b32 {sT5}, {NSTAMP-1}")
            self.stamp(True)
            n = NSTAMP
            a(f"""s_lshl_b32 {sT}, {sC}, 3
            s_add_u32 {sT}, {sT}, {sG}
            s_lshl_b32 {sT}, {sT}, 2
            s_add_u32 {sT}, {sT}, {sWAVE}
            s_mul_i32 {sT}, {sT}, {n*8}
            s_add_u32 {sT}, {sT}, {STAMP - 4*BLK}
            v_mov_b32 v8, 0""")
            for i in range(n):
                a(f"v_mov_b32 v10, s{ST0+i}\nv_mov_b32 v11, 0\nbuffer_store_dwordx2 v[10:11], v8, {WS}, {sT} offen offset:{i*8}\ns_nop 1")
        a.label(".Lend")
        a("s_endpgm")
        self.sub_s4(); self.sub_qka(); self.sub_qkb(); self.sub_qk2()
        self.sub_pvreg("sub_pv01", [0, 1]); self.sub_pvreg("sub_pv23", [2, 3]); self.sub_pvreg("sub_pv45", [4, 5]); self.sub_pvreg("sub_pv67a", [6, 7], agpr=True)
        self.sub_pvreg("sub_pv4", [4]); self.sub_pvreg("sub_pv5", [5])
        self.sub_pvlds(); self.sub_ml(); self.sub_s0(); self.sub_s1(); self.sub_s2(); self.sub_s3pre(); self.sub_s3()
        self.sub_dma("K"); self.sub_dma("V"); self.sub_dma("V", True); self.sub_wq(); self.sub_g0()
        return wrap(a.text())

if __name__ == "__main__":
    open("k6a.s", "w").write(K(stamps=(0, 1)).build())
    open("k6c.s", "w").write(K(stamps=(2, 2), fine=1).build())
    open("k6d.s", "w").write(K(stamps=(2, 3)).build())
    open("k6.s", "w").write(K().build())
```

```python
from gen6 import *
import gen6

class K8(K):
    def __init__(self, *a, **kw):
        super().__init__(*a, **kw)
        self.ool = []
    def retif0(self):
        self.a(f"s_cmp_eq_u32 {sL}, 0\ns_cbranch_scc1 .Lret")
    def local_store(self, *ins, pre_cmp=False):
        a = self.a
        Ls, Lb = a.newlabel("ss"), a.newlabel("sb")
        if not pre_cmp: a(f"s_cmp_eq_u32 {sFAST}, 1")
        a(f"s_cbranch_scc0 {Ls}")
        for i in ins: a(i)
        a.label(Lb)
        def slow():
            a.label(Ls)
            for i in ins: a(i + " sc1")
            a(f"s_branch {Lb}")
        self.ool.append(slow)
    def poll(self, loads, groups, tmp, shadow=None, lanemask=None):
        a = self.a
        Lr, Ld, Lw = a.newlabel("pr"), a.newlabel("pd"), a.newlabel("pw")
        for l in loads: a(l)
        if shadow: shadow()
        if lanemask is not None: a(f"s_mov_b32 exec_lo, {hex(lanemask)}\ns_mov_b32 exec_hi, {hex(lanemask)}")
        a.label(Lw)
        a("s_waitcnt vmcnt(0)")
        self.validate(groups, tmp, None)
        a(f"s_cbranch_vccnz {Lr}")
        a.label(Ld)
        a("s_mov_b64 exec, -1")
        def retry():
            a.label(Lr)
            a("s_wqm_b64 exec, vcc" if groups[0][0] == 0xff else "s_mov_b64 exec, vcc")
            for l in loads: a(l)
            a(f"""s_sub_u32 {sSPIN}, {sSPIN}, 1
            s_cbranch_scc0 {Lw}
            s_mov_b32 {sSPIN}, 0
            s_waitcnt vmcnt(0)
            s_branch {Ld}""")
        self.ool.append(retry)
    def b_qka(self, part):
        a = self.a
        NB = 6
        seq = [(cc, 2 * p + bb) for p in range(2) for cc in range(8) for bb in range(2)]
        def rd(k):
            cc, b = seq[k]; q = 16 + 4 * (k % NB)
            a(f"ds_read_b128 v[{q}:{q+3}], v{4+b} offset:{cc*64}")
        if part == 0:
            for k in range(NB): rd(k)
        for k in range(16 * part, 16 * part + 16):
            cc, b = seq[k]
            issued = NB if k == 0 else min(32, NB + k - 1)
            a(f"s_waitcnt lgkmcnt({issued - k - 1})")
            q = 16 + 4 * (k % NB)
            for grp in range(2):
                t = b + 4 * grp
                c = "0" if k == 0 else f"v[{8+4*grp}:{11+4*grp}]"
                a(f"v_mfma_f32_16x16x32_bf16 v[{8+4*grp}:{11+4*grp}], a[{t*32+cc*4}:{t*32+cc*4+3}], v[{q}:{q+3}], {c}")
            if k >= 1 and k - 1 + NB < 32: rd(k - 1 + NB)
    def b_pv(self, steps, k0, k1, srcf, prologue=False):
        a = self.a
        bb = lambda k: 48 + 4 * (k % 3)
        if prologue:
            for k in range(k0, k0 + 2):
                for i in self.bop(*steps[k], bb(k)): a(i)
        for k in range(k0, k1):
            t, r = steps[k]
            nx = self.bop(*steps[k + 2], bb(k + 2)) if k + 2 < len(steps) else []
            for hf in range(2):
                a(f"v_mfma_f32_16x16x32_bf16 v[{40+4*hf}:{43+4*hf}], {srcf(t, r, hf)}, v[{bb(k)}:{bb(k)+3}], v[{40+4*hf}:{43+4*hf}]")
                for i in nx[2*hf:2*hf+2]: a(i)
    def srcA(self, t, r, hf):
        if t >= 6:
            vb = (t - 6) * 32 + (r * 2 + hf) * 4; return f"a[{vb}:{vb+3}]"
        vb = 64 + t * 32 + (r * 2 + hf) * 4; return f"v[{vb}:{vb+3}]"
    def b_mlw(self, dry=False, tb=24):
        a = self.a
        a(f"""v_bfe_u32 v{tb+0}, v1, 5, 1
        v_lshlrev_b32 v{tb+0}, 5, v{tb+0}
        v_add_f32_dpp {vL}, {vL}, {vL} row_ror:4 {DPPALL}
        v_add_u32 v{tb+1}, {L_ML}, v{tb+0}
        s_lshl_b32 {sT}, {sWAVE}, 3
        v_add_f32_dpp {vL}, {vL}, {vL} row_ror:8 {DPPALL}
        v_add_u32 v{tb+0}, {sT}, v{tb+1}""")
        self.xgroup("v_add_f32", [vL], ["v63"])
        a(f"ds_write_b64 v{tb+0}, v[60:61]")
        if dry: a("s_cmp_eq_u32 s2, 2")
        a("s_waitcnt lgkmcnt(0)")
        if dry:
            L = a.newlabel("nb"); a(f"s_cbranch_scc1 {L}\ns_barrier"); a.label(L)
        else: a("s_barrier")
        a(f"ds_read_b128 v[16:19], v{tb+1}\nds_read_b128 v[20:23], v{tb+1} offset:16")
    def b_mls(self, tb=24):
        a = self.a
        L = a.newlabel("mls")
        a(f"""s_waitcnt lgkmcnt(0)
        v_min3_f32 v{tb+0}, v16, v18, v20
        v_min_f32 v{tb+0}, v{tb+0}, v22
        v_sub_f32 v16, v{tb+0}, v16
        v_sub_f32 v18, v{tb+0}, v18
        v_sub_f32 v20, v{tb+0}, v20
        v_sub_f32 v22, v{tb+0}, v22
        v_sub_f32 v{tb+1}, v{tb+0}, {vNM}
        v_exp_f32 v16, v16
        v_exp_f32 v18, v18
        v_exp_f32 v20, v20
        v_exp_f32 v22, v22
        v_exp_f32 v{tb+1}, v{tb+1}
        v_mul_f32 v{tb+2}, v16, v17
        v_fmac_f32 v{tb+2}, v18, v19
        v_fmac_f32 v{tb+2}, v20, v21
        v_fmac_f32 v{tb+2}, v22, v23
        v_rcp_f32 v{tb+3}, v{tb+2}
        s_cmp_lg_u32 {sWAVE}, 3
        v_log_f32 v{tb+2}, v{tb+2}
        v_mul_f32 {vL}, v{tb+1}, v{tb+3}
        s_cbranch_scc1 {L}
        v_sub_f32 v{tb+2}, v{tb+2}, v{tb+0}
        v_mov_b32 v{tb+3}, {sN}
        v_lshlrev_b32 v{tb+0}, 3, v1
        s_mov_b64 exec, 5""")
        self.local_store(f"buffer_store_dwordx2 v[{tb+2}:{tb+3}], v{tb+0}, {WS}, {sLAMP} offen")
        a("s_mov_b64 exec, -1")
        a.label(L)
    def strip(self, fn, *args):
        a = self.a
        n0 = len(a.lines)
        fn(*args)
        assert a.lines[n0].endswith(":")
        del a.lines[n0]
        assert "s_setpc_b64" in a.lines[-1]
        del a.lines[-1]
    def b_s0(self):
        a = self.a
        a(f"""v_add_f32_dpp {vL}, {vL}, {vL} row_ror:4 {DPPALL}
        s_add_u32 {sT}, {sPV}, 8192
        v_add_u32 v58, {sT}, v1
        v_add_f32_dpp {vL}, {vL}, {vL} row_ror:8 {DPPALL}
        v_bfe_u32 v11, v1, 5, 1
        v_mov_b32 v63, {vL}
        v_lshlrev_b32 v11, 5, v11
        s_lshl_b32 {sT}, {sWAVE}, 3
        v_permlane16_swap_b32 {vL}, v63
        ds_write_b128 v58, v[40:43]
        ds_write_b128 v58, v[44:47] offset:1024
        v_add_f32 {vL}, {vL}, v63
        v_mov_b32 v63, {vL}
        s_add_u32 {sT}, {sT}, {L_ML}
        v_add_u32 v11, {sT}, v11
        v_permlane32_swap_b32 {vL}, v63
        v_add_f32 {vL}, {vL}, v63
        ds_write_b64 v11, v[60:61]
        v_lshlrev_b32 v56, 3, v0
        v_add_u32 v56, {L_BB + 8192}, v56
        v_bfe_u32 v10, v0, 2, 1
        v_lshlrev_b32 v11, 5, v10
        v_add_u32 v11, {L_ML}, v11
        s_waitcnt lgkmcnt(0)
        s_barrier
        ds_read_b128 v[16:19], v11
        ds_read_b128 v[20:23], v11 offset:16
        ds_read_b64 v[48:49], v56
        ds_read_b64 v[50:51], v56 offset:16384
        ds_read_b64 v[52:53], v56 offset:32768
        ds_read_b64 v[54:55], v56 offset:49152
        v_bfe_u32 v57, v0, 1, 1
        v_bfe_u32 v8, v0, 3, 2
        v_lshl_add_u32 v57, v8, 1, v57
        v_lshrrev_b32 v8, 5, v0
        v_lshlrev_b32 v9, 4, v57
        v_lshl_add_u32 v9, v8, 7, v9
        v_lshl_add_u32 v9, v10, 10, v9
        v_and_b32 v57, 3, v57
        v_lshlrev_b32 v57, 3, v57
        v_bfe_u32 v57, {sN}, v57, 8
        v_mov_b32 v8, 0xff
        s_sub_u32 {sT}, {sLAMP}, {sRECP}
        v_lshl_add_u32 v10, v10, 9, {sT}
        s_cmp_eq_u32 {sWAVE}, 0
        s_cselect_b32 {sT2}, 0x22, 0
        s_or_b32 {sT2}, {sT2}, 0x55555555
        s_waitcnt lgkmcnt(4)
        v_min3_f32 v12, v16, v18, v20
        v_min_f32 v12, v12, v22
        v_sub_f32 v16, v12, v16
        v_sub_f32 v18, v12, v18
        v_sub_f32 v20, v12, v20
        v_sub_f32 v22, v12, v22
        v_exp_f32 v16, v16
        v_exp_f32 v18, v18
        v_exp_f32 v20, v20
        v_exp_f32 v22, v22
        s_waitcnt lgkmcnt(0)
        v_mul_f32 v48, v48, v16
        v_mul_f32 v49, v49, v16
        v_fmac_f32 v48, v50, v18
        v_fmac_f32 v49, v51, v18
        v_fmac_f32 v48, v52, v20
        v_fmac_f32 v49, v53, v20
        v_fmac_f32 v48, v54, v22
        v_fmac_f32 v49, v55, v22
        v_mul_f32 v13, v16, v17
        v_fmac_f32 v13, v18, v19
        v_mov_b32_dpp v50, v48 quad_perm:[1,1,3,3] {DPPALL}
        v_mov_b32_dpp v51, v49 quad_perm:[1,1,3,3] {DPPALL}
        v_bfi_b32 v48, v8, v57, v48
        s_mov_b64 exec, 0x22
        v_fmac_f32 v13, v20, v21
        v_fma_f32 v49, v22, v23, v13
        v_mov_b32 v48, v12
        v_mov_b32 v50, {sN}
        v_mov_b32 v9, v10
        s_cmp_eq_u32 {sFAST}, 1
        s_mov_b32 exec_lo, {sT2}
        s_mov_b32 exec_hi, 0x55555555""")
        self.local_store(f"buffer_store_dwordx4 v[48:51], v9, {WS}, {sRECP} offen", pre_cmp=True)
        a("s_mov_b64 exec, -1")
    def b_s1(self):
        a = self.a
        a(f"""v_bfe_u32 v62, v1, 8, 2
        v_lshlrev_b32 v63, 7, v62
        v_and_b32 v61, 0x70, v1
        v_add_u32 v63, v63, v61
        v_lshlrev_b32 v62, 14, v62
        v_and_b32 v61, 0xf0, v1
        v_add_u32 v62, v62, v61""")
        oregs = [8, 12, 16, 20, 40, 44, 4, 52]
        loads = [f"buffer_load_dwordx3 v[56:58], v63, {WS}, {sLAMG} offen sc1"]
        for k in range(8):
            loads.append(f"buffer_load_dwordx4 v[{oregs[k]}:{oregs[k]+3}], v62, {WS}, {sRECG[k>>1]} offen offset:{(k&1)*2048} sc1")
        pm = []
        def shadow():
            a(f"""v_bfe_u32 v61, v1, 4, 2
            v_lshlrev_b32 v61, 3, v61
            v_bfe_u32 v61, {sN}, v61, 8
            s_lshl_b32 {sT}, {sWAVE}, 7
            s_add_u32 {sT}, {sT}, {L_YP}
            v_lshrrev_b32 v49, 6, v1
            v_lshlrev_b32 v49, 3, v49
            v_add_u32 v49, {sT}, v49
            v_and_b32 v50, 0x70, v1
            v_add_u32 v51, {L_YP}, v50
            v_lshrrev_b32 v48, 7, v1
            v_lshl_add_u32 v50, v48, 15, v50
            s_waitcnt vmcnt(9)""")
            pm.append(self.perm_inplace())
        self.poll(loads, [(0xff, [(f"v{o_}", "v61") for o_ in oregs], True), (0xffffffff, [("v58", sN)], True)], ["v60", "v3"], shadow=shadow)
        m = pm[0]
        a(f"""v_min_f32_dpp v2, v56, v56 row_ror:1 {DPPALL}
        s_nop 1
        v_min_f32_dpp v2, v2, v2 row_ror:2 {DPPALL}
        s_nop 1
        v_min_f32_dpp v2, v2, v2 row_ror:4 {DPPALL}
        v_mov_b32 v3, v2
        s_nop 1
        v_permlane16_swap_b32 v2, v3
        v_min_f32 v2, v2, v3
        v_mov_b32 v3, v2
        s_nop 1
        v_permlane32_swap_b32 v2, v3
        v_min_f32 v2, v2, v3
        v_sub_f32 v56, v2, v56
        v_exp_f32 v56, v56
        s_nop 0
        v_mul_f32 v57, v56, v57""")
        wsum = [f"v_add_f32_dpp v57, v57, v57 row_ror:1 {DPPALL}", f"v_add_f32_dpp v57, v57, v57 row_ror:2 {DPPALL}", f"v_add_f32_dpp v57, v57, v57 row_ror:4 {DPPALL}\nv_mov_b32 v3, v57",
                "v_permlane16_swap_b32 v57, v3\nv_add_f32 v57, v57, v3\nv_mov_b32 v3, v57", "v_permlane32_swap_b32 v57, v3\nv_add_f32 v57, v57, v3", "v_rcp_f32 v57, v57", "", ""]
        for k in range(8):
            o_ = oregs[k]
            for i in (0, 2, 1, 3):
                if k == 0: a(f"v_mul_f32_dpp v{8+i}, v56, v{8+i} row_newbcast:0 {DPPALL}")
                else: a(f"v_fmac_f32_dpp v{8+i}, v56, v{o_+i} row_newbcast:{k} {DPPALL}")
            if wsum[k]: a(wsum[k])
        a(f"""v_permlane32_swap_b32 v8, v10
        s_nop 0
        v_permlane32_swap_b32 v9, v11""")
        a.label(".Ls1d")
        a(f"""v_add_f32 v8, v8, v10
        v_add_f32 v9, v9, v11
        v_mov_b32 v10, v8
        v_mov_b32 v11, v9
        v_mov_b32 v48, 0xff
        v_permlane16_swap_b32 v8, v10
        v_permlane16_swap_b32 v9, v11
        v_add_f32 v8, v8, v10
        v_add_f32 v9, v9, v11
        v_mul_f32 v8, v8, v57
        v_mul_f32 v9, v9, v57
        v_cvt_pk_bf16_f32 v8, v8, v9
        v_mov_b32 v9, v8
        s_cmp_lg_u32 {sWAVE}, 0
        s_nop 0
        v_permlane32_swap_b32 v8, v9""")
        for k in range(8): a(f"v_dot2_f32_bf16 v{40+k}, v{m[0][k]}, v8, 0")
        for k in range(8): a(f"v_dot2_f32_bf16 v{40+k}, v{m[1][k]}, v9, v{40+k}")
        for k in range(4): a(f"v_add_f32_dpp v{40+k}, v{40+k}, v{40+k} row_ror:8 row_mask:0xf bank_mask:0x3")
        for k in range(4): a(f"v_add_f32_dpp v{40+k}, v{44+k}, v{44+k} row_ror:8 row_mask:0xf bank_mask:0xc")
        for k in range(2): a(f"v_add_f32_dpp v{40+k}, v{40+k}, v{40+k} row_shl:4 row_mask:0xf bank_mask:0x5")
        for k in range(2): a(f"v_add_f32_dpp v{40+k}, v{42+k}, v{42+k} row_shr:4 row_mask:0xf bank_mask:0xa")
        a("s_nop 0")
        for k in range(2): a(f"v_add_f32_dpp v{40+k}, v{40+k}, v{40+k} quad_perm:[2,3,0,1] {DPPALL}")
        a("s_nop 0")
        for k in range(2): a(f"v_add_f32_dpp v{40+k}, v{40+k}, v{40+k} quad_perm:[1,0,3,2] {DPPALL}")
        a(f"""ds_write_b64 v49, v[40:41]
        s_waitcnt lgkmcnt(0)
        s_barrier
        s_cbranch_scc1 .Ls1_done
        ds_read_b128 v[8:11], v51
        ds_read_b128 v[12:15], v51 offset:128
        ds_read_b128 v[16:19], v51 offset:256
        ds_read_b128 v[20:23], v51 offset:384
        s_waitcnt lgkmcnt(2)""")
        for i in range(4): a(f"v_add_f32 v{8+i}, v{8+i}, v{12+i}")
        a("s_waitcnt lgkmcnt(0)")
        for i in range(4): a(f"v_add_f32 v{16+i}, v{16+i}, v{20+i}")
        for i in range(4): a(f"v_add_f32 v{8+i}, v{8+i}, v{16+i}")
        a("v_bfi_b32 v8, v48, v61, v8")
        if self.o["ycopies"] == 1: a("s_mov_b64 exec, 0xff")
        a(f"buffer_store_dwordx4 v[8:11], v50, {WS}, {sYXP} offen sc1\ns_mov_b64 exec, -1\ns_nop 0")
        a.label(".Ls1_done")

    def build(self):
        a = self.a
        o = self.o
        base = K(stamps=self.stamps, nt=self.nt, **self.o)
        txt = base.build()
        body = txt.split(NAME + "_kernel:\n")[1]
        pro = body.split(".Lchain:")[0]
        lines = pro.rstrip("\n").split("\n")
        assert "sub_pv5" in lines[-1]
        lines[-1] = "    s_branch sub_pv5"
        lines = [l for l in lines if "sub_mlw" not in l and "sub_mls" not in l]
        i = lines.index(f"    s_lshl_b32 {sT}, {sG}, 9")
        assert lines[i+2] == f"    s_lshl_b32 {sT3}, {sC}, 3" and lines[i+4] == f"    s_lshl_b32 {sT3}, {sT2}, 8"
        lines[i] = f"    s_lshl_b32 {sT}, {sG}, 10"
        lines[i+2] = f"    s_lshl_b32 {sT3}, {sC}, 4"
        lines[i+4] = f"    s_lshl_b32 {sT3}, {sT2}, 9"
        i = lines.index(f"    s_add_u32 s24, s24, {BLK}")
        lines[i:i+2] = [f"    s_add_u32 {sN}, {sN}, 1"]
        a.lines += lines
        a.uid = base.a.uid + 1000
        stepsA = [(t, r) for t in range(8) for r in range(4)]
        def xy(part):
            t, half = part >> 1, part & 1
            self.aoff(6 + t, sT)
            for n in range(4 * half, 4 * half + 4):
                a(f"buffer_load_dwordx4 a[{t*32+n*4}:{t*32+n*4+3}], v3, {VA}, {sT} offen offset:{(n>>1)*512+(n&1)*256} {self.nt}")
        a.label(".LlayerA")
        a.label("sub_qka0"); self.b_qka(0); self.retif0()
        xy(0)
        a.label("sub_qka1"); self.b_qka(1); self.retif0()
        xy(1)
        self.fine()
        a.label("sub_sma"); self.softmax([f"v{8+i}" for i in range(8)]); self.retif0()
        xy(2)
        self.fine()
        a.label("sub_pv01"); self.b_pv(stepsA, 0, 8, self.srcA, prologue=True); self.retif0()
        xy(3)
        a(f"v_add_u32 v23, {sPV}, v1")
        for n in range(8, 10): a(f"ds_read_b128 v[{64+4*n}:{67+4*n}], v23 offset:{n*1024}")
        self.fine()
        a.label("sub_pv23"); self.b_pv(stepsA, 8, 16, self.srcA); self.retif0()
        a.label("sub_pv4"); self.b_pv(stepsA, 16, 20, self.srcA); self.retif0()
        a.label("sub_pv5"); self.ldwo7(); self.b_pv(stepsA, 20, 24, self.srcA)
        a(f"s_cmp_eq_u32 {sL}, 0\ns_cbranch_scc1 .Lchain")
        self.fine()
        a("s_waitcnt vmcnt(4) lgkmcnt(0)")
        a.label("sub_pv67a"); self.b_pv(stepsA, 24, 32, self.srcA)
        a("s_cmp_eq_u32 s2, 2\ns_cbranch_scc1 .Lret")
        a.label(".Lchain")
        self.stamp()
        self.b_s0()
        self.stamp()
        a(f"s_cmp_ge_u32 {sC}, 28\ns_cbranch_scc1 .Lno_s1")
        self.b_s1()
        self.ool.append(lambda: (a.label(".Lno_s1"), a("s_waitcnt vmcnt(0)\ns_barrier\ns_branch .Ls1_done")))
        self.stamp()
        a(f"s_cmp_lg_u32 {sWAVE}, 0\ns_cbranch_scc1 .Lloader")
        a(f"""s_cmp_eq_u32 {sL}, 3
        s_cbranch_scc1 .Lfinal
        s_cmp_ge_u32 {sC}, 14
        s_cbranch_scc1 .Lno_s2""")
        a.label(".Ls2")
        self.b_s2()
        a(f"""s_cmp_eq_u32 {sL}, 3
        s_cbranch_scc1 .Lout
        v_perm_b32 v44, v40, v41, {sSELLO}
        v_perm_b32 v45, v40, v41, {sSELHI}
        s_cmp_eq_u32 {sFAST}, 1
        s_mov_b32 exec_lo, 0xff
        s_mov_b32 exec_hi, 0xff""")
        self.local_store(f"buffer_store_dwordx2 v[44:45], v43, {WS}, {sXSo} offen", pre_cmp=True)
        a("s_mov_b64 exec, -1\nds_write_b32 v3, v40")
        a.label(".Ls3")
        def nos2():
            a.label(".Lno_s2"); self.w0prep(); a("s_branch .Ls3")
        self.ool.append(nos2)
        self.stamp()
        self.strip(self.sub_s3)
        a(f"""s_cmp_eq_u32 s2, 0
        s_cbranch_scc1 .Lret
        s_cmp_eq_u32 {sFAST}, 1
        s_mov_b32 exec_lo, 0x10001
        s_mov_b32 exec_hi, 0x10001""")
        self.local_store(f"buffer_store_dwordx4 v[40:43], v48, {WS}, {sQSP} offen", pre_cmp=True)
        a("s_mov_b64 exec, -1")
        self.stamp()
        a(f"v_lshlrev_b32 v49, 1, v1\nv_add_u32 v49, {QS - XS}, v49")
        def shadow():
            self.consts()
            a(f"v_add_u32 v50, {L_Q}, v1\nv_mov_b32 v51, {L_ML + 68}\nv_mov_b32 v52, 1")
            self.cinit(8, 0xc)
            a(f"s_cmp_lg_u32 {sL}, 0\ns_cbranch_scc1 .Lw0p1")
            self.call("sub_qkbpre")
            a.label(".Lw0p1")
            a(f"s_cmp_lg_u32 {sL}, 2\ns_cbranch_scc1 .Lw0p2")
            self.call("sub_breg")
            a.label(".Lw0p2")
            self.advance()
        self.poll([f"buffer_load_dwordx4 v[40:43], v49, {XI}, 0 offen sc1", f"buffer_load_dwordx4 v[44:47], v49, {XI}, 0 offen offset:16 sc1"],
                  [self.q_check()], ["v48"], shadow=shadow)
        for i in range(4): a(f"v_perm_b32 v{40+i}, v{41+2*i}, v{40+2*i}, {sSELHI}")
        a(f"ds_write_b128 v50, v[40:43]\nds_write_b32 v51, v52\ns_cmp_eq_u32 {sL}, 2\ns_waitcnt lgkmcnt(0)")
        a.label(".Lqready")
        a("s_barrier")
        if self.stamps:
            self.stamp()
            a(f"s_cmp_eq_u32 {sL}, 2")
        a(f"s_cbranch_scc1 .LlayerA\ns_cmp_eq_u32 {sL}, 1\ns_cbranch_scc1 .Llayer1")
        a.label(".Llayer3")
        self.strip(self.sub_qk2)
        self.ldwo7()
        steps3 = [(t, r) for t in range(2) for r in range(4)]
        self.b_pv(steps3, 0, 8, self.srcA, prologue=True)
        a("s_cmp_eq_u32 s2, 2\ns_cbranch_scc0 .Lchain")
        a.label(".Lret")
        self.ret()
        n0 = len(a.lines)
        self.sub_qkb()
        del a.lines[-1]
        i = a.lines.index("sub_qkb:"); a.lines[i] = ".Llayer1:"
        self.fine()
        a("s_waitcnt vmcnt(0)\ns_barrier")
        self.fine()
        self.sub_pvlds()
        del a.lines[-1]
        self.retif0()
        self.ldwo7()
        a("s_branch .Lchain")
        a.label(".Lloader")
        a(f"s_cmp_eq_u32 {sL}, 3\ns_cbranch_scc1 .Lfin")
        self.setw()
        self.consts()
        a(f"s_cmp_lg_u32 {sL}, 0\ns_cbranch_scc1 .Lld_n0")
        def job(kind):
            Lu, Le = a.newlabel("ju"), a.newlabel("je")
            a(f"""v_mov_b32 v44, {L_ML + 68}
            ds_read_b32 v45, v44
            s_waitcnt lgkmcnt(0)
            v_readfirstlane_b32 {sT}, v45
            s_nop 3
            s_cmp_eq_u32 {sT}, 1
            s_cbranch_scc1 {Lu}""")
            self.call(f"sub_dma{kind}p")
            a(f"s_branch {Le}")
            a.label(Lu)
            self.call(f"sub_dma{kind}")
            a.label(Le)
        a(f"s_cmp_eq_u32 {sWAVE}, 1\ns_cbranch_scc1 .Lld_own")
        if o["vbpre"]: a(f"s_cmp_eq_u32 {sWAVE}, 2\ns_cbranch_scc1 .Lld_own")
        a(f"""s_lshl_b32 {sT}, {sWAVE}, 18
        s_sub_u32 {sRS}, {sBoff}, {sT}
        s_sub_u32 {sT2}, {sWAVE}, 2
        s_lshl_b32 {sT3}, {sT2}, 20
        s_add_u32 {sRS}, {sRS}, {sT3}
        s_lshl_b32 {sRL}, {sT2}, 13
        s_add_u32 {sRL}, {sRL}, {L_BB}""")
        job("V")
        a.label(".Lld_own")
        if not o["vbpre"]:
            a(f"s_mov_b32 {sRS}, {sBoff}\ns_add_u32 {sRL}, {sLDSW}, {L_BB}")
            job("V")
        a(f"s_add_u32 {sRS}, {sBoff}, {TILE}\ns_add_u32 {sRL}, {sLDSW}, {L_BB + 8192}")
        job("V")
        self.call("sub_qkbpre")
        a("s_branch .Lld_done")
        a.label(".Lld_n0")
        a(f"s_cmp_eq_u32 {sL}, 1\ns_cbranch_scc1 .Lld_1")
        self.call("sub_breg")
        a("s_waitcnt lgkmcnt(0)\ns_branch .Lld_done")
        a.label(".Lld_1")
        L = self.only_wave(1)
        for w in range(4):
            a(f"s_add_u32 {sRS}, {sBoff}, {TILE + (w-1)*262144}")
            for n in range(2):
                a(f"s_mov_b32 m0, {L_BB + w*16384 + 8192 + n*1024 - n*256}\ns_nop 0")
                a(f"buffer_load_dwordx4 v3, {VBs}, {sRS} offen offset:{n*256} {self.nt} lds")
        a("s_waitcnt vmcnt(0)")
        a.label(L)
        L = self.only_wave(2)
        a("s_mov_b32 s2, 2")
        self.call(".Llayer3")
        self.call("sub_pv67a")
        a("s_mov_b32 s2, 1\ns_waitcnt vmcnt(0) lgkmcnt(0)\ns_nop 7")
        a.label(L)
        a.label(".Lld_done")
        self.cinit(8, 0xc)
        self.stamp(); self.stamp()
        self.advance()
        a(f"s_cmp_eq_u32 {sL}, 2\ns_branch .Lqready")
        a.label(".Lfinal")
        a(f"""s_cmp_lg_u32 {sG}, 0
        s_cbranch_scc1 .Lfin
        s_cmp_ge_u32 {sC}, 14
        s_cbranch_scc1 .Lfin
        s_branch .Ls2""")
        a.label(".Lout")
        a(f"""s_mov_b32 s36, s48
        s_mov_b32 s37, s49
        s_mov_b32 s38, 896
        s_mov_b32 exec_lo, 0xff
        s_mov_b32 exec_hi, 0xff
        buffer_store_dword v40, v42, {XI}, 0 offen
        s_mov_b64 exec, 1
        s_cmp_lg_u32 {sC}, 0
        s_cbranch_scc1 .Lnoep
        v_mov_b32 v43, {EPOCH}
        buffer_store_dword v41, v43, {WS}, 0 offen""")
        a.label(".Lnoep")
        a("s_mov_b64 exec, -1")
        a.label(".Lfin")
        if self.stamps:
            a(f"s_mov_b32 {sT5}, {NSTAMP-1}")
            self.stamp(True)
            n = NSTAMP
            a(f"""s_lshl_b32 {sT}, {sC}, 3
            s_add_u32 {sT}, {sT}, {sG}
            s_lshl_b32 {sT}, {sT}, 2
            s_add_u32 {sT}, {sT}, {sWAVE}
            s_mul_i32 {sT}, {sT}, {n*8}
            s_add_u32 {sT}, {sT}, {STAMP}
            v_mov_b32 v8, 0""")
            for i in range(n):
                a(f"v_mov_b32 v10, s{ST0+i}\nv_mov_b32 v11, 0\nbuffer_store_dwordx2 v[10:11], v8, {WS}, {sT} offen offset:{i*8}\ns_nop 1")
        a.label(".Lend")
        a("s_endpgm")
        for f in list(self.ool): f()
        self.sub_s3pre()
        a.label("sub_breg")
        a(f"v_add_u32 v22, {sLDSW}, v1\nv_add_u32 v23, {sPV}, v1")
        for n in range(16): a(f"ds_read_b128 a[{128+4*n}:{131+4*n}], v22 offset:{n*1024}")
        for n in list(range(8)) + list(range(10, 16)): a(f"ds_read_b128 v[{64+4*n}:{67+4*n}], v23 offset:{n*1024}")
        self.ret()
        self.sub_dma("K"); self.sub_dma("V"); self.sub_dma("V", True); self.sub_wq(); self.sub_g0()
        return wrap(a.text())
    def advance(self):
        self.a(f"""s_add_u32 {sL}, {sL}, 1
        s_add_u32 {sN}, {sN}, 1
        s_add_u32 {sYXP}, {sYXP}, {BLK}
        s_add_u32 {sYXG}, {sYXG}, {BLK}
        s_add_u32 {sYXG2}, {sYXG2}, {BLK}""")
    def setw(self):
        a = self.a
        a(f"""s_bitcmp1_b32 {sL}, 0
        s_cselect_b32 s32, s44, s46
        s_cselect_b32 s33, s45, s47
        s_cselect_b32 {sWQ}, 0, 14336
        s_add_u32 {sWQ}, {sWQ}, {L_WQA}""")
    def w0prep(self):
        a = self.a
        self.setw()
        a(f"""s_and_b32 {sH0}, {sN}, 0xffff
        s_lshr_b32 {sH1}, {sN}, 16
        v_bfe_u32 v6, v1, 8, 2
        v_mul_u32_u24 v7, 448, v6
        v_mul_u32_u24 v6, 3584, v6
        v_bfe_u32 v4, v1, 4, 4
        v_lshl_add_u32 v6, v4, 3, v6
        v_add_u32 v6, {sWQ}, v6
        v_lshl_add_u32 v7, v4, 5, v7
        v_cmp_gt_u32 vcc, 14, v4
        v_mov_b32 v4, 0x10000
        s_add_u32 s36, s24, {sXSo}
        v_cndmask_b32 v7, v4, v7, vcc
        s_addc_u32 s37, s25, 0
        s_mov_b32 s38, {QS - XS + 2048}""")
        for kk in range(10):
            b = self.wbuf(kk)
            a(f"ds_read_b64_tr_b16 v[{b}:{b+1}], v6 offset:{kk*256}")
            a(f"ds_read_b64_tr_b16 v[{b+2}:{b+3}], v6 offset:{kk*256+128}")
    def ldwo7(self):
        a = self.a
        a(f"""v_bfe_u32 v16, v1, 4, 3
        v_bfe_u32 v17, v1, 7, 1
        v_lshl_add_u32 v16, v17, 5, v16
        v_mul_u32_u24 v16, 896, v16
        v_bfe_u32 v17, v1, 8, 2
        v_lshl_add_u32 v16, v17, 4, v16""")
        for k in range(4):
            a(f"buffer_load_dwordx4 v[{self.WB+4*k}:{self.WB+3+4*k}], v16, {WO}, {sWOr[k]} offen")
    WB = 24
    def b_s2(self):
        a = self.a
        a(f"""v_lshrrev_b32 v2, 7, v1
        v_mul_u32_u24 v2, 1792, v2
        v_and_b32 v3, 0x70, v1
        v_add_u32 v2, v2, v3""")
        def shadow():
            a(f"""v_lshrrev_b32 v42, 1, v3
            v_lshrrev_b32 v3, 9, v1
            v_lshl_add_u32 v42, v3, 2, v42
            s_lshl_b32 {sT2}, {sC}, 6
            v_add_u32 v42, {sT2}, v42
            v_lshlrev_b32 v43, 1, v42
            v_lshrrev_b32 v3, 2, v1
            v_add_u32 v3, {L_XO}, v3
            ds_read_b32 v52, v3
            v_bfe_u32 v5, v1, 4, 2
            v_lshlrev_b32 v5, 3, v5
            v_bfe_u32 v5, {sN}, v5, 8
            v_mov_b32 v41, {sN}
            s_waitcnt lgkmcnt(0)
            v_lshlrev_b32 v53, 16, v52
            v_and_b32 v52, 0xffff0000, v52""")
            self.w0prep()
        self.poll([f"buffer_load_dwordx4 v[44:47], v2, {WS}, {sYXG} offen sc1",
                   f"buffer_load_dwordx4 v[48:51], v2, {WS}, {sYXG2} offen sc1"],
                  [(0xff, [("v44", "v5"), ("v48", "v5")], True)], ["v4"], shadow=shadow)
        a(f"""v_add_f32 v44, v44, v48
        v_add_f32 v46, v46, v50
        v_add_f32 v45, v45, v49
        v_add_f32 v47, v47, v51
        v_permlane32_swap_b32 v44, v46
        s_nop 0
        v_permlane32_swap_b32 v45, v47
        v_add_f32 v44, v44, v46
        v_add_f32 v45, v45, v47
        s_nop 0
        v_add_f32_dpp v44, v44, v44 row_ror:8 {DPPALL}
        v_add_f32_dpp v45, v45, v45 row_ror:8 {DPPALL}
        v_mov_b32 v46, v44
        v_mov_b32 v47, v45
        s_nop 0
        v_permlane16_swap_b32 v44, v46
        v_permlane16_swap_b32 v45, v47
        v_add_f32 v44, v44, v46
        v_add_f32 v45, v45, v47
        v_cvt_pk_bf16_f32 v44, v44, v45
        v_and_b32 v45, 0xffff0000, v44
        v_lshlrev_b32 v44, 16, v44
        v_add_f32 v44, v44, v53
        v_add_f32 v45, v45, v52
        v_cvt_pk_bf16_f32 v40, v44, v45""")

if __name__ == "__main__":
    open("k8a.s", "w").write(K8(stamps=(0, 1)).build())
    open("k8d.s", "w").write(K8(stamps=(2, 3)).build())
    open("k8d_vb.s", "w").write(K8(stamps=(2, 3), vbpre=1).build())
    open("k8d_p4.s", "w").write(K8(stamps=(2, 3), pace=4).build())
    open("k8d_p16.s", "w").write(K8(stamps=(2, 3), pace=16).build())
    open("k8.s", "w").write(K8().build())
```

```python
from gen8 import *
import re
def variant(out, A, XY, XY2, B, W, **kw):
    t = K8(nt="@P", **kw).build()
    lines = []
    for l in t.split("\n"):
        if "@P" in l:
            if "s[8:11]" in l: p = A
            elif "s[12:15]" in l: p = XY2 if " a[" in l else A
            elif "s[16:19]" in l or "s[20:23]" in l: p = B
            elif "s[28:31]" in l and "v3," in l: p = XY
            else: p = W
            l = l.replace("@P", p)
        lines.append(l)
    open(out, "w").write("\n".join(lines))
variant("p_ddddd.s", "", "", "", "", "")
variant("p_ndddd.s", "nt", "", "", "", "")
variant("p_dnnnn.s", "", "nt", "nt", "nt", "nt")
variant("p_ndnnd.s", "nt", "", "nt", "nt", "")
variant("p_ddddd_vb.s", "", "", "", "", "", vbpre=1)
variant("p_ddddd_y1.s", "", "", "", "", "", ycopies=1)
```

```python
from gen6 import *
import gen6

L_XO2 = L_Z + 512
assert L_XO2 + 1024 <= LDS_TOTAL
sCB = 's88'
sVB = 's89'
class K9(K):
    def __init__(self, *a, **kw):
        super().__init__(*a, **kw)
        self.ool = []
    def retif0(self):
        self.a(f"s_cmp_eq_u32 {sL}, 0\ns_cbranch_scc1 .Lret")
    def local_store(self, *ins, pre_cmp=False):
        a = self.a
        Ls, Lb = a.newlabel("ss"), a.newlabel("sb")
        if not pre_cmp: a(f"s_cmp_eq_u32 {sFAST}, 1")
        a(f"s_cbranch_scc0 {Ls}")
        for i in ins: a(i)
        a.label(Lb)
        def slow():
            a.label(Ls)
            for i in ins: a(i + " sc1")
            a(f"s_branch {Lb}")
        self.ool.append(slow)
    def poll(self, loads, groups, tmp, shadow=None, lanemask=None, hook=None):
        a = self.a
        Lr, Ld, Lw = a.newlabel("pr"), a.newlabel("pd"), a.newlabel("pw")
        for l in loads: a(l)
        if shadow: shadow()
        if lanemask is not None: a(f"s_mov_b32 exec_lo, {hex(lanemask)}\ns_mov_b32 exec_hi, {hex(lanemask)}")
        a.label(Lw)
        a("s_waitcnt vmcnt(0)")
        self.validate(groups, tmp, None)
        a(f"s_cbranch_vccnz {Lr}")
        a.label(Ld)
        a("s_mov_b64 exec, -1")
        def retry():
            a.label(Lr)
            if hook: hook()
            a("s_wqm_b64 exec, vcc" if groups[0][0] == 0xff else "s_mov_b64 exec, vcc")
            for l in loads: a(l)
            a(f"""s_sub_u32 {sSPIN}, {sSPIN}, 1
            s_cbranch_scc0 {Lw}
            s_mov_b32 {sSPIN}, 0
            s_waitcnt vmcnt(0)
            s_branch {Ld}""")
        self.ool.append(retry)
    def b_qka(self, part):
        a = self.a
        NB = 6
        seq = [(cc, 2 * p + bb) for p in range(2) for cc in range(8) for bb in range(2)]
        def rd(k):
            cc, b = seq[k]; q = 16 + 4 * (k % NB)
            a(f"ds_read_b128 v[{q}:{q+3}], v{4+b} offset:{cc*64}")
        if part == 0:
            for k in range(NB): rd(k)
        for k in range(16 * part, 16 * part + 16):
            cc, b = seq[k]
            issued = NB if k == 0 else min(32, NB + k - 1)
            a(f"s_waitcnt lgkmcnt({issued - k - 1})")
            q = 16 + 4 * (k % NB)
            for grp in range(2):
                t = b + 4 * grp
                c = "0" if k == 0 else f"v[{8+4*grp}:{11+4*grp}]"
                a(f"v_mfma_f32_16x16x32_bf16 v[{8+4*grp}:{11+4*grp}], a[{t*32+cc*4}:{t*32+cc*4+3}], v[{q}:{q+3}], {c}")
            if k >= 1 and k - 1 + NB < 32: rd(k - 1 + NB)
    def b_pv(self, steps, k0, k1, srcf, prologue=False):
        a = self.a
        bb = lambda k: 48 + 4 * (k % 3)
        if prologue:
            for k in range(k0, k0 + 2):
                for i in self.bop(*steps[k], bb(k)): a(i)
        for k in range(k0, k1):
            t, r = steps[k]
            nx = self.bop(*steps[k + 2], bb(k + 2)) if k + 2 < len(steps) else []
            for hf in range(2):
                a(f"v_mfma_f32_16x16x32_bf16 v[{40+4*hf}:{43+4*hf}], {srcf(t, r, hf)}, v[{bb(k)}:{bb(k)+3}], v[{40+4*hf}:{43+4*hf}]")
                for i in nx[2*hf:2*hf+2]: a(i)
    def srcA(self, t, r, hf):
        if t >= 6:
            vb = (t - 6) * 32 + (r * 2 + hf) * 4; return f"a[{vb}:{vb+3}]"
        vb = 64 + t * 32 + (r * 2 + hf) * 4; return f"v[{vb}:{vb+3}]"
    def b_mlw(self, dry=False, tb=24):
        a = self.a
        a(f"""v_bfe_u32 v{tb+0}, v1, 5, 1
        v_lshlrev_b32 v{tb+0}, 5, v{tb+0}
        v_add_f32_dpp {vL}, {vL}, {vL} row_ror:4 {DPPALL}
        v_add_u32 v{tb+1}, {L_ML}, v{tb+0}
        s_lshl_b32 {sT}, {sWAVE}, 3
        v_add_f32_dpp {vL}, {vL}, {vL} row_ror:8 {DPPALL}
        v_add_u32 v{tb+0}, {sT}, v{tb+1}""")
        self.xgroup("v_add_f32", [vL], ["v63"])
        a(f"ds_write_b64 v{tb+0}, v[60:61]")
        if dry: a("s_cmp_eq_u32 s2, 2")
        a("s_waitcnt lgkmcnt(0)")
        if dry:
            L = a.newlabel("nb"); a(f"s_cbranch_scc1 {L}\ns_barrier"); a.label(L)
        else: a("s_barrier")
        a(f"ds_read_b128 v[16:19], v{tb+1}\nds_read_b128 v[20:23], v{tb+1} offset:16")
    def b_mls(self, tb=24):
        a = self.a
        L = a.newlabel("mls")
        a(f"""s_waitcnt lgkmcnt(0)
        v_min3_f32 v{tb+0}, v16, v18, v20
        v_min_f32 v{tb+0}, v{tb+0}, v22
        v_sub_f32 v16, v{tb+0}, v16
        v_sub_f32 v18, v{tb+0}, v18
        v_sub_f32 v20, v{tb+0}, v20
        v_sub_f32 v22, v{tb+0}, v22
        v_sub_f32 v{tb+1}, v{tb+0}, {vNM}
        v_exp_f32 v16, v16
        v_exp_f32 v18, v18
        v_exp_f32 v20, v20
        v_exp_f32 v22, v22
        v_exp_f32 v{tb+1}, v{tb+1}
        v_mul_f32 v{tb+2}, v16, v17
        v_fmac_f32 v{tb+2}, v18, v19
        v_fmac_f32 v{tb+2}, v20, v21
        v_fmac_f32 v{tb+2}, v22, v23
        v_rcp_f32 v{tb+3}, v{tb+2}
        s_cmp_lg_u32 {sWAVE}, 3
        v_log_f32 v{tb+2}, v{tb+2}
        v_mul_f32 {vL}, v{tb+1}, v{tb+3}
        s_cbranch_scc1 {L}
        v_sub_f32 v{tb+2}, v{tb+2}, v{tb+0}
        v_mov_b32 v{tb+3}, {sN}
        v_lshlrev_b32 v{tb+0}, 3, v1
        s_mov_b64 exec, 5""")
        self.local_store(f"buffer_store_dwordx2 v[{tb+2}:{tb+3}], v{tb+0}, {WS}, {sLAMP} offen")
        a("s_mov_b64 exec, -1")
        a.label(L)
    def strip(self, fn, *args):
        a = self.a
        n0 = len(a.lines)
        fn(*args)
        assert a.lines[n0].endswith(":")
        del a.lines[n0]
        assert "s_setpc_b64" in a.lines[-1]
        del a.lines[-1]
    def b_s0(self):
        a = self.a
        a(f"""v_add_f32_dpp {vL}, {vL}, {vL} row_ror:4 {DPPALL}
        s_add_u32 {sT}, {sPV}, 8192
        v_add_u32 v58, {sT}, v1
        v_add_f32_dpp {vL}, {vL}, {vL} row_ror:8 {DPPALL}
        v_bfe_u32 v11, v1, 5, 1
        v_mov_b32 v63, {vL}
        v_lshlrev_b32 v11, 5, v11
        s_lshl_b32 {sT}, {sWAVE}, 3
        v_permlane16_swap_b32 {vL}, v63
        ds_write_b128 v58, v[40:43]
        ds_write_b128 v58, v[44:47] offset:1024
        v_add_f32 {vL}, {vL}, v63
        v_mov_b32 v63, {vL}
        s_add_u32 {sT}, {sT}, {L_ML}
        v_add_u32 v11, {sT}, v11
        v_permlane32_swap_b32 {vL}, v63
        v_add_f32 {vL}, {vL}, v63
        ds_write_b64 v11, v[60:61]
        v_lshlrev_b32 v56, 3, v0
        v_add_u32 v56, {L_BB + 8192}, v56
        v_bfe_u32 v10, v0, 2, 1
        v_lshlrev_b32 v11, 5, v10
        v_add_u32 v11, {L_ML}, v11
        s_waitcnt lgkmcnt(0)
        s_barrier
        ds_read_b128 v[16:19], v11
        ds_read_b128 v[20:23], v11 offset:16
        ds_read_b64 v[48:49], v56
        ds_read_b64 v[50:51], v56 offset:16384
        ds_read_b64 v[52:53], v56 offset:32768
        ds_read_b64 v[54:55], v56 offset:49152
        v_bfe_u32 v57, v0, 1, 1
        v_bfe_u32 v8, v0, 3, 2
        v_lshl_add_u32 v57, v8, 1, v57
        v_lshrrev_b32 v8, 5, v0
        v_lshlrev_b32 v9, 4, v57
        v_lshl_add_u32 v9, v8, 7, v9
        v_lshl_add_u32 v9, v10, 10, v9
        v_and_b32 v57, 3, v57
        v_lshlrev_b32 v57, 3, v57
        v_bfe_u32 v57, {sN}, v57, 8
        v_mov_b32 v8, 0xff
        s_sub_u32 {sT}, {sLAMP}, {sRECP}
        v_lshl_add_u32 v10, v10, 9, {sT}
        s_cmp_eq_u32 {sWAVE}, 0
        s_cselect_b32 {sT2}, 0x22, 0
        s_or_b32 {sT2}, {sT2}, 0x55555555
        s_waitcnt lgkmcnt(4)
        v_min3_f32 v12, v16, v18, v20
        v_min_f32 v12, v12, v22
        v_sub_f32 v16, v12, v16
        v_sub_f32 v18, v12, v18
        v_sub_f32 v20, v12, v20
        v_sub_f32 v22, v12, v22
        v_exp_f32 v16, v16
        v_exp_f32 v18, v18
        v_exp_f32 v20, v20
        v_exp_f32 v22, v22
        s_waitcnt lgkmcnt(0)
        v_mul_f32 v48, v48, v16
        v_mul_f32 v49, v49, v16
        v_fmac_f32 v48, v50, v18
        v_fmac_f32 v49, v51, v18
        v_fmac_f32 v48, v52, v20
        v_fmac_f32 v49, v53, v20
        v_fmac_f32 v48, v54, v22
        v_fmac_f32 v49, v55, v22
        v_mul_f32 v13, v16, v17
        v_fmac_f32 v13, v18, v19
        v_mov_b32_dpp v50, v48 quad_perm:[1,1,3,3] {DPPALL}
        v_mov_b32_dpp v51, v49 quad_perm:[1,1,3,3] {DPPALL}
        v_bfi_b32 v48, v8, v57, v48
        s_mov_b64 exec, 0x22
        v_fmac_f32 v13, v20, v21
        v_fma_f32 v49, v22, v23, v13
        v_mov_b32 v48, v12
        v_mov_b32 v50, {sN}
        v_mov_b32 v9, v10
        s_cmp_eq_u32 {sFAST}, 1
        s_mov_b32 exec_lo, {sT2}
        s_mov_b32 exec_hi, 0x55555555""")
        self.local_store(f"buffer_store_dwordx4 v[48:51], v9, {WS}, {sRECP} offen", pre_cmp=True)
        a("s_mov_b64 exec, -1")
    def b_s1(self):
        a = self.a
        a(f"""v_bfe_u32 v62, v1, 8, 2
        v_lshlrev_b32 v63, 7, v62
        v_and_b32 v61, 0x70, v1
        v_add_u32 v63, v63, v61
        v_lshlrev_b32 v62, 14, v62
        v_and_b32 v61, 0xf0, v1
        v_add_u32 v62, v62, v61""")
        oregs = [8, 12, 16, 20, 40, 44, 4, 52]
        loads = [f"buffer_load_dwordx3 v[56:58], v63, {WS}, {sLAMG} offen sc1"]
        for k in range(8):
            loads.append(f"buffer_load_dwordx4 v[{oregs[k]}:{oregs[k]+3}], v62, {WS}, {sRECG[k>>1]} offen offset:{(k&1)*2048} sc1")
        pm = []
        def shadow():
            a(f"""v_bfe_u32 v61, v1, 4, 2
            v_lshlrev_b32 v61, 3, v61
            v_bfe_u32 v61, {sN}, v61, 8
            s_lshl_b32 {sT}, {sWAVE}, 7
            s_add_u32 {sT}, {sT}, {L_YP}
            v_lshrrev_b32 v49, 6, v1
            v_lshlrev_b32 v49, 3, v49
            v_add_u32 v49, {sT}, v49
            v_and_b32 v50, 0x70, v1
            v_add_u32 v51, {L_YP}, v50
            v_lshrrev_b32 v48, 7, v1
            v_lshl_add_u32 v50, v48, 15, v50
            s_waitcnt vmcnt(9)""")
            pm.append(self.perm_inplace())
        self.poll(loads, [(0xff, [(f"v{o_}", "v61") for o_ in oregs], True), (0xffffffff, [("v58", sN)], True)], ["v60", "v3"], shadow=shadow, hook=self.early_vb if self.o.get("thr") else None)
        m = pm[0]
        a(f"""v_min_f32_dpp v2, v56, v56 row_ror:1 {DPPALL}
        s_nop 1
        v_min_f32_dpp v2, v2, v2 row_ror:2 {DPPALL}
        s_nop 1
        v_min_f32_dpp v2, v2, v2 row_ror:4 {DPPALL}
        v_mov_b32 v3, v2
        s_nop 1
        v_permlane16_swap_b32 v2, v3
        v_min_f32 v2, v2, v3
        v_mov_b32 v3, v2
        s_nop 1
        v_permlane32_swap_b32 v2, v3
        v_min_f32 v2, v2, v3
        v_sub_f32 v56, v2, v56
        v_exp_f32 v56, v56
        s_nop 0
        v_mul_f32 v57, v56, v57""")
        wsum = [f"v_add_f32_dpp v57, v57, v57 row_ror:1 {DPPALL}", f"v_add_f32_dpp v57, v57, v57 row_ror:2 {DPPALL}", f"v_add_f32_dpp v57, v57, v57 row_ror:4 {DPPALL}\nv_mov_b32 v3, v57",
                "v_permlane16_swap_b32 v57, v3\nv_add_f32 v57, v57, v3\nv_mov_b32 v3, v57", "v_permlane32_swap_b32 v57, v3\nv_add_f32 v57, v57, v3", "v_rcp_f32 v57, v57", "", ""]
        for k in range(8):
            o_ = oregs[k]
            for i in (0, 2, 1, 3):
                if k == 0: a(f"v_mul_f32_dpp v{8+i}, v56, v{8+i} row_newbcast:0 {DPPALL}")
                else: a(f"v_fmac_f32_dpp v{8+i}, v56, v{o_+i} row_newbcast:{k} {DPPALL}")
            if wsum[k]: a(wsum[k])
        a(f"""v_permlane32_swap_b32 v8, v10
        s_nop 0
        v_permlane32_swap_b32 v9, v11""")
        a.label(".Ls1d")
        a(f"""v_add_f32 v8, v8, v10
        v_add_f32 v9, v9, v11
        v_mov_b32 v10, v8
        v_mov_b32 v11, v9
        v_mov_b32 v48, 0xff
        v_permlane16_swap_b32 v8, v10
        v_permlane16_swap_b32 v9, v11
        v_add_f32 v8, v8, v10
        v_add_f32 v9, v9, v11
        v_mul_f32 v8, v8, v57
        v_mul_f32 v9, v9, v57
        v_cvt_pk_bf16_f32 v8, v8, v9
        v_mov_b32 v9, v8
        s_lshl_b32 {sT2}, {sWAVE}, 2
        s_add_u32 {sT2}, {sT2}, {L_ML + 80}
        v_permlane32_swap_b32 v8, v9
        v_mov_b32 v2, {sT2}
        v_mov_b32 v3, {sVB}
        s_cmp_lg_u32 {sWAVE}, 0""")
        for k in range(8): a(f"v_dot2_f32_bf16 v{40+k}, v{m[0][k]}, v8, 0")
        for k in range(8): a(f"v_dot2_f32_bf16 v{40+k}, v{m[1][k]}, v9, v{40+k}")
        for k in range(4): a(f"v_add_f32_dpp v{40+k}, v{40+k}, v{40+k} row_ror:8 row_mask:0xf bank_mask:0x3")
        for k in range(4): a(f"v_add_f32_dpp v{40+k}, v{44+k}, v{44+k} row_ror:8 row_mask:0xf bank_mask:0xc")
        for k in range(2): a(f"v_add_f32_dpp v{40+k}, v{40+k}, v{40+k} row_shl:4 row_mask:0xf bank_mask:0x5")
        for k in range(2): a(f"v_add_f32_dpp v{40+k}, v{42+k}, v{42+k} row_shr:4 row_mask:0xf bank_mask:0xa")
        a("s_nop 0")
        for k in range(2): a(f"v_add_f32_dpp v{40+k}, v{40+k}, v{40+k} quad_perm:[2,3,0,1] {DPPALL}")
        a("s_nop 0")
        for k in range(2): a(f"v_add_f32_dpp v{40+k}, v{40+k}, v{40+k} quad_perm:[1,0,3,2] {DPPALL}")
        a(f"""ds_write_b64 v49, v[40:41]
        ds_write_b32 v2, v3
        s_waitcnt lgkmcnt(0)
        s_barrier
        s_cbranch_scc1 .Ls1_done
        ds_read_b128 v[8:11], v51
        ds_read_b128 v[12:15], v51 offset:128
        ds_read_b128 v[16:19], v51 offset:256
        ds_read_b128 v[20:23], v51 offset:384
        s_waitcnt lgkmcnt(2)""")
        for i in range(4): a(f"v_add_f32 v{8+i}, v{8+i}, v{12+i}")
        a("s_waitcnt lgkmcnt(0)")
        for i in range(4): a(f"v_add_f32 v{16+i}, v{16+i}, v{20+i}")
        for i in range(4): a(f"v_add_f32 v{8+i}, v{8+i}, v{16+i}")
        a("v_bfi_b32 v8, v48, v61, v8")
        if self.o["ycopies"] == 1: a("s_mov_b64 exec, 0xff")
        a(f"buffer_store_dwordx4 v[8:11], v50, {WS}, {sYXP} offen sc1\ns_mov_b64 exec, -1\ns_nop 0")
        a.label(".Ls1_done")

    def build(self):
        a = self.a
        o = self.o
        base = K(stamps=self.stamps, nt=self.nt, **self.o)
        txt = base.build()
        body = txt.split(NAME + "_kernel:\n")[1]
        pro = body.split(".Lchain:")[0]
        lines = pro.rstrip("\n").split("\n")
        assert "sub_pv5" in lines[-1]
        lines[-1] = "    s_branch sub_pv5"
        lines = [l for l in lines if "sub_mlw" not in l and "sub_mls" not in l]
        i = lines.index(f"    s_lshl_b32 {sT}, {sG}, 9")
        assert lines[i+2] == f"    s_lshl_b32 {sT3}, {sC}, 3" and lines[i+4] == f"    s_lshl_b32 {sT3}, {sT2}, 8"
        lines[i] = f"    s_lshl_b32 {sT}, {sG}, 10"
        lines[i+2] = f"    s_lshl_b32 {sT3}, {sC}, 4"
        lines[i+4] = f"    s_lshl_b32 {sT3}, {sT2}, 9"
        i = lines.index(f"    s_add_u32 s24, s24, {BLK}")
        lines[i:i+2] = [f"    s_add_u32 {sN}, {sN}, 1"]
        if o.get("wmask", 0):
            i = lines.index(f"    s_lshr_b32 {sH1}, {sN}, 16")
            w = f"""s_cmp_lg_u32 {sWAVE}, 2
            s_cbranch_scc1 .Lnowarm
            v_lshlrev_b32 v16, 3, v1
            v_add_u32 v17, {sRECP}, v16
            s_lshl_b32 {sT}, {sG}, 15
            s_lshl_b32 {sT2}, {sC}, 10
            s_add_u32 {sT}, {sT}, {sT2}
            s_add_u32 {sT}, {sT}, {YX - 2048}
            v_add_u32 v16, {sT}, v16
            v_cmp_gt_u32 vcc, 256, v1
            v_add_u32 v18, {BLK - 2048}, v16
            s_and_b32 {sT2}, {sC}, 7
            v_cndmask_b32 v16, v16, v17, vcc
            v_cmp_gt_u32 vcc, 512, v1
            s_lshl_b32 {sT2}, {sT2}, 7
            s_lshl_b32 {sT}, {sG}, 10
            v_cndmask_b32 v16, v18, v16, vcc
            s_add_u32 {sT}, {sT}, {sT2}
            s_add_u32 {sT}, {sT}, {LAM}
            v_writelane_b32 v16, {sT}, 24
            s_and_b32 {sT2}, {sC}, 15
            s_lshl_b32 {sT2}, {sT2}, 7
            s_add_u32 {sT}, {sXSo}, {sT2}
            v_writelane_b32 v16, {sT}, 25
            s_mov_b32 m0, {L_SCR}
            s_mov_b32 exec_lo, {hex(o["wmask"] & 0xffffffff)}
            s_mov_b32 exec_hi, {hex(o["wmask"] >> 32)}
            buffer_load_dword v16, {WS}, 0 offen sc1 lds
            s_mov_b64 exec, -1""".split("\n")
            lines[i+1:i+1] = ["    " + x.strip() for x in w] + [".Lnowarm:"]
        i = lines.index("    ds_write_b64 v45, v[46:47]")
        lines[i+1:i+1] = ["    ds_write_b64 v45, v[46:47] offset:8"]
        i = lines.index(f"    s_lshr_b32 {sH1}, {sN}, 16")
        lines[i+1:i+1] = [f"    s_mov_b32 {sVB}, 0"]
        i = lines.index(f"    s_add_u32 {sYXG}, {sT}, {YX}")
        assert lines[i-2] == f"    s_lshl_b32 {sT3}, {sC}, 7"
        lines[i-2:i-1] = [f"    s_sub_u32 {sCB}, {sC}, 28", f"    s_lshl_b32 {sCB}, {sCB}, 2", f"    s_add_u32 {sCB}, {sCB}, {sWAVE}", f"    s_lshl_b32 {sT3}, {sCB}, 7"]
        i = lines.index("    v_and_b32 v48, 0x70, v1")
        blk = lines[i:i+7]
        assert "buffer_load_dword v53" in blk[6] and lines[i+7].endswith(":")
        lab = lines[i+7]
        blk[4] = f"    s_sub_u32 {sT2}, {sC}, 28\n    s_lshl_b32 {sT2}, {sT2}, 2\n    s_add_u32 {sT2}, {sT2}, {sWAVE}\n    s_lshl_b32 {sT2}, {sT2}, 6"
        lines[i:i+8] = [lab] + blk
        i = lines.index(f"    v_add_u32 v48, {L_XO}, v48")
        assert lines[i-3].strip().startswith("s_cmp_lg_u32")
        w0 = lines[i-3:i-1]
        lines[i-3:i+2] = ["    v_lshrrev_b32 v48, 2, v1", f"    s_lshl_b32 {sT}, {sWAVE}, 8", f"    s_add_u32 {sT}, {sT}, {L_XO2}", f"    v_add_u32 v48, {sT}, v48", "    ds_write_b32 v48, v53"] + w0
        a.lines += lines
        a.uid = base.a.uid + 1000
        stepsA = [(t, r) for t in range(8) for r in range(4)]
        def xy(part):
            t, half = part >> 1, part & 1
            self.aoff(6 + t, sT)
            for n in range(4 * half, 4 * half + 4):
                a(f"buffer_load_dwordx4 a[{t*32+n*4}:{t*32+n*4+3}], v3, {VA}, {sT} offen offset:{(n>>1)*512+(n&1)*256} {self.nt}")
        a.label(".LlayerA")
        a.label("sub_qka0"); self.b_qka(0); self.retif0()
        xy(0)
        a.label("sub_qka1"); self.b_qka(1); self.retif0()
        xy(1)
        self.fine()
        a.label("sub_sma"); self.softmax([f"v{8+i}" for i in range(8)]); self.retif0()
        xy(2)
        self.fine()
        a.label("sub_pv01"); self.b_pv(stepsA, 0, 8, self.srcA, prologue=True); self.retif0()
        xy(3)
        a(f"v_add_u32 v23, {sPV}, v1")
        for n in range(8, 10): a(f"ds_read_b128 v[{64+4*n}:{67+4*n}], v23 offset:{n*1024}")
        self.fine()
        a.label("sub_pv23"); self.b_pv(stepsA, 8, 16, self.srcA); self.retif0()
        a.label("sub_pv4"); self.b_pv(stepsA, 16, 20, self.srcA); self.retif0()
        a.label("sub_pv5"); self.ldwo7(); self.b_pv(stepsA, 20, 24, self.srcA)
        a(f"s_cmp_eq_u32 {sL}, 0\ns_cbranch_scc1 .Lchain")
        self.fine()
        a("s_waitcnt vmcnt(4) lgkmcnt(0)")
        a.label("sub_pv67a"); self.b_pv(stepsA, 24, 32, self.srcA)
        a("s_cmp_eq_u32 s2, 2\ns_cbranch_scc1 .Lret")
        a.label(".Lchain")
        self.stamp()
        self.b_s0()
        self.stamp()
        a(f"s_cmp_ge_u32 {sC}, 28\ns_cbranch_scc1 .Lno_s1")
        self.b_s1()
        self.stamp()
        a(f"""s_cmp_lg_u32 {sWAVE}, 0
        s_cbranch_scc1 .Lloader
        s_cmp_eq_u32 {sL}, 3
        s_cbranch_scc1 .Lfin""")
        a.label(".Lprep")
        self.w0prep()
        a.label(".Ls3")
        def s2cu():
            a.label(".Lno_s1")
            a("s_waitcnt vmcnt(0)\ns_barrier")
            self.stamp()
            a(f"s_cmp_lg_u32 {sL}, 0\ns_cbranch_scc1 .Ls2a")
            self.dmaB("V", 0, L_BB)
            self.dmaB("V", TILE, L_BB + 8192)
            a("s_branch .Ls2b")
            a.label(".Ls2a")
            a(f"s_cmp_eq_u32 {sL}, 3\ns_cbranch_scc1 .Ls2b\ns_call_b64 s[0:1], .Ljobs")
            a.label(".Ls2b")
            a(f"""s_cmp_lt_u32 {sCB}, 14
            s_cbranch_scc0 .Lloader
            s_cmp_lg_u32 {sL}, 3
            s_cbranch_scc1 .Ls2
            s_cmp_lg_u32 {sG}, 0
            s_cbranch_scc1 .Lfin""")
            a.label(".Ls2")
            self.b_s2()
            a(f"""s_cmp_eq_u32 {sL}, 3
            s_cbranch_scc1 .Lout
            v_perm_b32 v44, v40, v41, {sSELLO}
            v_perm_b32 v45, v40, v41, {sSELHI}
            s_cmp_eq_u32 {sFAST}, 1
            s_mov_b32 exec_lo, 0xff
            s_mov_b32 exec_hi, 0xff""")
            self.local_store(f"buffer_store_dwordx2 v[44:45], v43, {WS}, {sXSo} offen", pre_cmp=True)
            a(f"""s_mov_b64 exec, -1
            ds_write_b32 v3, v40
            s_cmp_eq_u32 {sWAVE}, 0
            s_cbranch_scc1 .Ls3
            s_waitcnt lgkmcnt(0)
            s_branch .Lloader""")
        self.ool.insert(0, s2cu)
        self.stamp()
        self.strip(self.sub_s3)
        a(f"""s_cmp_eq_u32 s2, 0
        s_cbranch_scc1 .Lret
        s_cmp_eq_u32 {sFAST}, 1
        s_mov_b32 exec_lo, 0x10001
        s_mov_b32 exec_hi, 0x10001""")
        self.local_store(f"buffer_store_dwordx4 v[40:43], v48, {WS}, {sQSP} offen", pre_cmp=True)
        a("s_mov_b64 exec, -1")
        self.stamp()
        a(f"v_lshlrev_b32 v49, 1, v1\nv_add_u32 v49, {QS - XS}, v49")
        def shadow():
            self.consts()
            a(f"v_add_u32 v50, {L_Q}, v1\nv_mov_b32 v51, {L_ML + 68}\nv_mov_b32 v52, 1")
            self.cinit(8, 0xc)
            a(f"s_cmp_lg_u32 {sL}, 0\ns_cbranch_scc1 .Lw0p1")
            self.call("sub_qkbpre")
            a.label(".Lw0p1")
            a(f"s_cmp_lg_u32 {sL}, 2\ns_cbranch_scc1 .Lw0p2\ns_cmp_ge_u32 {sC}, 28\ns_cbranch_scc1 .Lw0p2")
            self.call("sub_breg")
            a.label(".Lw0p2")
            self.advance()
        self.poll([f"buffer_load_dwordx4 v[40:43], v49, {XI}, 0 offen sc1", f"buffer_load_dwordx4 v[44:47], v49, {XI}, 0 offen offset:16 sc1"],
                  [self.q_check()], ["v48"], shadow=shadow)
        for i in range(4): a(f"v_perm_b32 v{40+i}, v{41+2*i}, v{40+2*i}, {sSELHI}")
        a(f"ds_write_b128 v50, v[40:43]\nds_write_b32 v51, v52\ns_cmp_eq_u32 {sL}, 2\ns_waitcnt lgkmcnt(0)")
        a.label(".Lqready")
        a("s_barrier")
        if self.stamps:
            self.stamp()
            a(f"s_cmp_eq_u32 {sL}, 2")
        a(f"s_cbranch_scc1 .LlayerA\ns_cmp_eq_u32 {sL}, 1\ns_cbranch_scc1 .Llayer1")
        a.label(".Llayer3")
        self.strip(self.sub_qk2)
        self.ldwo7()
        steps3 = [(t, r) for t in range(2) for r in range(4)]
        self.b_pv(steps3, 0, 8, self.srcA, prologue=True)
        a("s_cmp_eq_u32 s2, 2\ns_cbranch_scc0 .Lchain")
        a.label(".Lret")
        self.ret()
        n0 = len(a.lines)
        self.sub_qkb()
        del a.lines[-1]
        i = a.lines.index("sub_qkb:"); a.lines[i] = ".Llayer1:"
        self.fine()
        a("s_waitcnt vmcnt(0)\ns_barrier")
        self.fine()
        self.sub_pvlds()
        del a.lines[-1]
        self.retif0()
        self.ldwo7()
        a("s_branch .Lchain")
        a.label(".Lloader")
        a(f"s_cmp_eq_u32 {sL}, 3\ns_cbranch_scc1 .Lfin")
        self.setw()
        self.consts()
        a(f"s_cmp_lg_u32 {sL}, 0\ns_cbranch_scc1 .Lld_n0")
        a(f"s_cmp_ge_u32 {sC}, 28\ns_cbranch_scc1 .Lld_pre")
        a(f"""v_mov_b32 v44, {L_ML + 80}
        ds_read_b32 v45, v44
        s_lshl_b32 {sT}, {sWAVE}, 18
        s_sub_u32 {sRS}, {sBoff}, {sT}
        s_mov_b32 {sRL}, {L_BB}
        s_waitcnt lgkmcnt(0)
        v_readfirstlane_b32 {sT4}, v45
        s_cmp_eq_u32 {sWAVE}, 1
        s_cbranch_scc1 .Lj_rep
        s_sub_u32 {sT2}, {sWAVE}, 2
        s_cmp_gt_u32 {sT4}, {sT2}
        s_cbranch_scc1 .Lj_own
        s_cmp_eq_u32 {sWAVE}, 3
        s_cbranch_scc1 .Lj_w1""")
        self.call("sub_dmaV")
        a("s_branch .Lj_own")
        a.label(".Lj_w1")
        self.call("sub_dmaV1")
        a("s_branch .Lj_own")
        a.label(".Lj_rep")
        self.call("sub_repair")
        a.label(".Lj_own")
        a(f"s_mov_b32 {sRS}, {sBoff}\ns_mov_b32 {sRL}, {sPV}\ns_cmp_ge_u32 {sVB}, 1\ns_cbranch_scc1 .Lj_o1")
        self.call("sub_dmaV")
        a.label(".Lj_o1")
        a(f"s_cmp_ge_u32 {sVB}, 2\ns_cbranch_scc1 .Lld_pre")
        self.call("sub_dmaV1")
        a.label(".Lld_pre")
        self.call("sub_qkbpre")
        a("s_branch .Lld_done")
        a.label(".Lld_n0")
        a(f"s_cmp_ge_u32 {sC}, 28\ns_cbranch_scc1 .Lld_done\ns_call_b64 s[0:1], .Ljobs\ns_branch .Lld_done")
        a.label(".Ljobs")
        a(f"s_cmp_eq_u32 {sL}, 1\ns_cbranch_scc1 .Lld_1")
        self.call("sub_breg")
        a("s_waitcnt lgkmcnt(0)\ns_setpc_b64 s[0:1]")
        a.label(".Lld_1")
        L = self.only_wave(1)
        self.call("sub_repair")
        a("s_waitcnt vmcnt(0)")
        a.label(L)
        L = self.only_wave(2)
        a("s_mov_b32 s2, 2")
        self.call(".Llayer3")
        self.call("sub_pv67a")
        a("s_mov_b32 s2, 1\ns_waitcnt vmcnt(0) lgkmcnt(0)\ns_nop 7")
        a.label(L)
        a("s_setpc_b64 s[0:1]")
        a.label(".Lld_done")
        self.cinit(8, 0xc)
        self.stamp(); self.stamp()
        self.advance()
        a(f"s_cmp_eq_u32 {sL}, 2\ns_branch .Lqready")
        a.label(".Lout")
        a(f"""s_mov_b32 s36, s48
        s_mov_b32 s37, s49
        s_mov_b32 s38, 896
        s_mov_b32 exec_lo, 0xff
        s_mov_b32 exec_hi, 0xff
        buffer_store_dword v40, v42, {XI}, 0 offen
        s_mov_b64 exec, 1
        s_cmp_lg_u32 {sCB}, 0
        s_cbranch_scc1 .Lnoep
        v_mov_b32 v43, {EPOCH}
        buffer_store_dword v41, v43, {WS}, 0 offen""")
        a.label(".Lnoep")
        a("s_mov_b64 exec, -1")
        a.label(".Lfin")
        if self.stamps:
            a(f"s_mov_b32 {sT5}, {NSTAMP-1}")
            self.stamp(True)
            n = NSTAMP
            a(f"""s_lshl_b32 {sT}, {sC}, 3
            s_add_u32 {sT}, {sT}, {sG}
            s_lshl_b32 {sT}, {sT}, 2
            s_add_u32 {sT}, {sT}, {sWAVE}
            s_mul_i32 {sT}, {sT}, {n*8}
            s_add_u32 {sT}, {sT}, {STAMP}
            v_mov_b32 v8, 0""")
            for i in range(n):
                a(f"v_mov_b32 v10, s{ST0+i}\nv_mov_b32 v11, 0\nbuffer_store_dwordx2 v[10:11], v8, {WS}, {sT} offen offset:{i*8}\ns_nop 1")
        a.label(".Lend")
        a("s_endpgm")
        k = 0
        while k < len(self.ool): self.ool[k](); k += 1
        self.sub_s3pre()
        a.label("sub_repair")
        for w in range(4):
            a(f"s_add_u32 {sRS}, {sBoff}, {TILE + (w-1)*262144}")
            for n in range(2):
                a(f"s_mov_b32 m0, {L_BB + w*16384 + 8192 + n*1024 - n*256}\ns_nop 0")
                a(f"buffer_load_dwordx4 v3, {VBs}, {sRS} offen offset:{n*256} {self.nt} lds")
        self.ret()
        a.label("sub_dmaV1")
        a(f"s_add_u32 {sT}, {sRS}, {TILE}")
        for n in range(2, 8):
            imm = (n >> 1) * 512 + (n & 1) * 256
            a(f"s_add_u32 m0, {sRL}, {8192 + n*1024 - imm}\ns_nop 0")
            a(f"buffer_load_dwordx4 v3, {VBs}, {sT} offen offset:{imm} {self.nt} lds")
        self.ret()
        a.label("sub_breg")
        a(f"v_add_u32 v22, {sLDSW}, v1\nv_add_u32 v23, {sPV}, v1")
        for n in range(16): a(f"ds_read_b128 a[{128+4*n}:{131+4*n}], v22 offset:{n*1024}")
        for n in list(range(8)) + list(range(10, 16)): a(f"ds_read_b128 v[{64+4*n}:{67+4*n}], v23 offset:{n*1024}")
        self.ret()
        self.sub_dma("K"); self.sub_dma("V"); self.sub_dma("V", True); self.sub_wq(); self.sub_g0()
        return wrap(a.text())
    def early_vb(self):
        a = self.a
        a(f"""s_cmp_ge_u32 {sVB}, 2
        s_cbranch_scc1 .Lev_x
        v_cmp_ne_u32 s[0:1], 0, v58
        s_nop 1
        s_bcnt1_i32_b64 {sT2}, s[0:1]
        s_cmp_lt_u32 {sT2}, {2 * self.o["thr"]}
        s_cbranch_scc1 .Lev_x
        s_mov_b64 exec, -1
        s_mov_b32 {sRS}, {sBoff}
        s_mov_b32 {sRL}, {sPV}
        s_cmp_eq_u32 {sVB}, 0
        s_add_u32 {sVB}, {sVB}, 1
        s_cmp_eq_u32 {sVB}, 1
        s_cbranch_scc0 .Lev_1""")
        self.call("sub_dmaV")
        a("s_branch .Lev_x")
        a.label(".Lev_1")
        self.call("sub_dmaV1")
        a.label(".Lev_x")
    def advance(self):
        self.a(f"""s_add_u32 {sL}, {sL}, 1
        s_mov_b32 {sVB}, 2
        s_add_u32 {sN}, {sN}, 1
        s_{"xor_b32" if self.o.get("ypar", 1) else "add_u32"} {sYXP}, {sYXP}, {BLK}
        s_{"xor_b32" if self.o.get("ypar", 1) else "add_u32"} {sYXG}, {sYXG}, {BLK}
        s_{"xor_b32" if self.o.get("ypar", 1) else "add_u32"} {sYXG2}, {sYXG2}, {BLK}""")
    def setw(self):
        a = self.a
        a(f"""s_bitcmp1_b32 {sL}, 0
        s_cselect_b32 s32, s44, s46
        s_cselect_b32 s33, s45, s47
        s_cselect_b32 {sWQ}, 0, 14336
        s_add_u32 {sWQ}, {sWQ}, {L_WQA}""")
    def w0prep(self):
        a = self.a
        self.setw()
        a(f"""s_and_b32 {sH0}, {sN}, 0xffff
        s_lshr_b32 {sH1}, {sN}, 16
        v_bfe_u32 v6, v1, 8, 2
        v_mul_u32_u24 v7, 448, v6
        v_mul_u32_u24 v6, 3584, v6
        v_bfe_u32 v4, v1, 4, 4
        v_lshl_add_u32 v6, v4, 3, v6
        v_add_u32 v6, {sWQ}, v6
        v_lshl_add_u32 v7, v4, 5, v7
        v_cmp_gt_u32 vcc, 14, v4
        v_mov_b32 v4, 0x10000
        s_add_u32 s36, s24, {sXSo}
        v_cndmask_b32 v7, v4, v7, vcc
        s_addc_u32 s37, s25, 0
        s_mov_b32 s38, {QS - XS + 2048}""")
        for kk in range(10):
            b = self.wbuf(kk)
            a(f"ds_read_b64_tr_b16 v[{b}:{b+1}], v6 offset:{kk*256}")
            a(f"ds_read_b64_tr_b16 v[{b+2}:{b+3}], v6 offset:{kk*256+128}")
    def ldwo7(self):
        a = self.a
        a(f"""v_bfe_u32 v16, v1, 4, 3
        v_bfe_u32 v17, v1, 7, 1
        v_lshl_add_u32 v16, v17, 5, v16
        v_mul_u32_u24 v16, 896, v16
        v_bfe_u32 v17, v1, 8, 2
        v_lshl_add_u32 v16, v17, 4, v16""")
        for k in range(4):
            a(f"buffer_load_dwordx4 v[{self.WB+4*k}:{self.WB+3+4*k}], v16, {WO}, {sWOr[k]} offen")
    WB = 24
    def b_s2(self):
        a = self.a
        a(f"""v_lshrrev_b32 v2, 7, v1
        v_mul_u32_u24 v2, 1792, v2
        v_and_b32 v3, 0x70, v1
        v_add_u32 v2, v2, v3""")
        def shadow():
            a(f"""v_lshrrev_b32 v42, 1, v3
            v_lshrrev_b32 v3, 9, v1
            v_lshl_add_u32 v42, v3, 2, v42
            s_lshl_b32 {sT2}, {sCB}, 6
            v_add_u32 v42, {sT2}, v42
            v_lshlrev_b32 v43, 1, v42
            v_lshrrev_b32 v3, 2, v1
            s_lshl_b32 {sT2}, {sWAVE}, 8
            s_add_u32 {sT2}, {sT2}, {L_XO2}
            v_add_u32 v3, {sT2}, v3
            ds_read_b32 v52, v3
            v_bfe_u32 v5, v1, 4, 2
            v_lshlrev_b32 v5, 3, v5
            v_bfe_u32 v5, {sN}, v5, 8
            v_mov_b32 v41, {sN}
            s_waitcnt lgkmcnt(0)
            v_lshlrev_b32 v53, 16, v52
            v_and_b32 v52, 0xffff0000, v52""")
            self.w0prep()
        self.poll([f"buffer_load_dwordx4 v[44:47], v2, {WS}, {sYXG} offen sc1",
                   f"buffer_load_dwordx4 v[48:51], v2, {WS}, {sYXG2} offen sc1"],
                  [(0xff, [("v44", "v5"), ("v48", "v5")], True)], ["v4"], shadow=shadow)
        a(f"""v_add_f32 v44, v44, v48
        v_add_f32 v46, v46, v50
        v_add_f32 v45, v45, v49
        v_add_f32 v47, v47, v51
        v_permlane32_swap_b32 v44, v46
        s_nop 0
        v_permlane32_swap_b32 v45, v47
        v_add_f32 v44, v44, v46
        v_add_f32 v45, v45, v47
        s_nop 0
        v_add_f32_dpp v44, v44, v44 row_ror:8 {DPPALL}
        v_add_f32_dpp v45, v45, v45 row_ror:8 {DPPALL}
        v_mov_b32 v46, v44
        v_mov_b32 v47, v45
        s_nop 0
        v_permlane16_swap_b32 v44, v46
        v_permlane16_swap_b32 v45, v47
        v_add_f32 v44, v44, v46
        v_add_f32 v45, v45, v47
        v_cvt_pk_bf16_f32 v44, v44, v45
        v_and_b32 v45, 0xffff0000, v44
        v_lshlrev_b32 v44, 16, v44
        v_add_f32 v44, v44, v53
        v_add_f32 v45, v45, v52
        v_cvt_pk_bf16_f32 v40, v44, v45""")


def variant(out, A="nt", XY="", XY2="", B="nt", W="", **kw):
    t = K9(nt="@P", **kw).build()
    i0 = t.index("sub_dmaV:"); i1 = t.index("sub_dmaVp:")
    sub = t[i0:i1]
    t = t[:i0] + sub.replace("sub_dmaV:", "sub_dmaX:").replace("@P", XY) + t[i0:]
    t = t.replace("sub_dmaV\n", "sub_dmaX\n", 2)
    lines = []
    for l in t.split("\n"):
        if "@P" in l:
            if "s[8:11]" in l: p = A
            elif "s[12:15]" in l: p = XY2 if " a[" in l else A
            elif "s[16:19]" in l or "s[20:23]" in l or ("s[28:31]" in l and "v3," in l): p = B
            else: p = W
            l = l.replace("@P", p)
        lines.append(l.rstrip())
    open(out, "w").write("\n".join(lines))
if __name__ == "__main__":
    variant("k9a.s", stamps=(0, 1))
    variant("k9a_t4.s", stamps=(0, 1), thr=4)
    variant("k9a_t8.s", stamps=(0, 1), thr=8)
    variant("k9a_t14.s", stamps=(0, 1), thr=14)
    variant("k9a_t1.s", stamps=(0, 1), thr=1)
    variant("k9.s", thr=8)
```

```python
from gen6 import *
import gen6

L_XO2 = L_Z + 512
assert L_XO2 + 1024 <= LDS_TOTAL
sCB = 's88'
sVB = 's89'
class K10(K):
    def __init__(self, *a, **kw):
        super().__init__(*a, **kw)
        self.ool = []
    def retif0(self):
        self.a(f"s_cmp_eq_u32 {sL}, 0\ns_cbranch_scc1 .Lret")
    def local_store(self, *ins, pre_cmp=False):
        a = self.a
        Ls, Lb = a.newlabel("ss"), a.newlabel("sb")
        if not pre_cmp: a(f"s_cmp_eq_u32 {sFAST}, 1")
        a(f"s_cbranch_scc0 {Ls}")
        for i in ins: a(i)
        a.label(Lb)
        def slow():
            a.label(Ls)
            for i in ins: a(i + " sc1")
            a(f"s_branch {Lb}")
        self.ool.append(slow)
    def poll(self, loads, groups, tmp, shadow=None, lanemask=None, hook=None):
        a = self.a
        Lr, Ld, Lw = a.newlabel("pr"), a.newlabel("pd"), a.newlabel("pw")
        for l in loads: a(l)
        if shadow: shadow()
        if lanemask is not None: a(f"s_mov_b32 exec_lo, {hex(lanemask)}\ns_mov_b32 exec_hi, {hex(lanemask)}")
        a.label(Lw)
        a("s_waitcnt vmcnt(0)")
        self.validate(groups, tmp, None)
        a(f"s_cbranch_vccnz {Lr}")
        a.label(Ld)
        a("s_mov_b64 exec, -1")
        def retry():
            a.label(Lr)
            if hook: hook()
            a("s_wqm_b64 exec, vcc" if groups[0][0] == 0xff else "s_mov_b64 exec, vcc")
            for l in loads: a(l)
            a(f"""s_sub_u32 {sSPIN}, {sSPIN}, 1
            s_cbranch_scc0 {Lw}
            s_mov_b32 {sSPIN}, 0
            s_waitcnt vmcnt(0)
            s_branch {Ld}""")
        self.ool.append(retry)
    def b_qka(self, part):
        a = self.a
        NB = 6
        seq = [(cc, 2 * p + bb) for p in range(2) for cc in range(8) for bb in range(2)]
        def rd(k):
            cc, b = seq[k]; q = 16 + 4 * (k % NB)
            a(f"ds_read_b128 v[{q}:{q+3}], v{4+b} offset:{cc*64}")
        if part == 0:
            for k in range(NB): rd(k)
        for k in range(16 * part, 16 * part + 16):
            cc, b = seq[k]
            issued = NB if k == 0 else min(32, NB + k - 1)
            a(f"s_waitcnt lgkmcnt({issued - k - 1})")
            q = 16 + 4 * (k % NB)
            for grp in range(2):
                t = b + 4 * grp
                c = "0" if k == 0 else f"v[{8+4*grp}:{11+4*grp}]"
                a(f"v_mfma_f32_16x16x32_bf16 v[{8+4*grp}:{11+4*grp}], a[{t*32+cc*4}:{t*32+cc*4+3}], v[{q}:{q+3}], {c}")
            if k >= 1 and k - 1 + NB < 32: rd(k - 1 + NB)
    def b_pv(self, steps, k0, k1, srcf, prologue=False):
        a = self.a
        bb = lambda k: 48 + 4 * (k % 3)
        if prologue:
            for k in range(k0, k0 + 2):
                for i in self.bop(*steps[k], bb(k)): a(i)
        for k in range(k0, k1):
            t, r = steps[k]
            nx = self.bop(*steps[k + 2], bb(k + 2)) if k + 2 < len(steps) else []
            for hf in range(2):
                a(f"v_mfma_f32_16x16x32_bf16 v[{40+4*hf}:{43+4*hf}], {srcf(t, r, hf)}, v[{bb(k)}:{bb(k)+3}], v[{40+4*hf}:{43+4*hf}]")
                for i in nx[2*hf:2*hf+2]: a(i)
    def srcA(self, t, r, hf):
        if t >= 6:
            vb = (t - 6) * 32 + (r * 2 + hf) * 4; return f"a[{vb}:{vb+3}]"
        vb = 64 + t * 32 + (r * 2 + hf) * 4; return f"v[{vb}:{vb+3}]"
    def b_mlw(self, dry=False, tb=24):
        a = self.a
        a(f"""v_bfe_u32 v{tb+0}, v1, 5, 1
        v_lshlrev_b32 v{tb+0}, 5, v{tb+0}
        v_add_f32_dpp {vL}, {vL}, {vL} row_ror:4 {DPPALL}
        v_add_u32 v{tb+1}, {L_ML}, v{tb+0}
        s_lshl_b32 {sT}, {sWAVE}, 3
        v_add_f32_dpp {vL}, {vL}, {vL} row_ror:8 {DPPALL}
        v_add_u32 v{tb+0}, {sT}, v{tb+1}""")
        self.xgroup("v_add_f32", [vL], ["v63"])
        a(f"ds_write_b64 v{tb+0}, v[60:61]")
        if dry: a("s_cmp_eq_u32 s2, 2")
        a("s_waitcnt lgkmcnt(0)")
        if dry:
            L = a.newlabel("nb"); a(f"s_cbranch_scc1 {L}\ns_barrier"); a.label(L)
        else: a("s_barrier")
        a(f"ds_read_b128 v[16:19], v{tb+1}\nds_read_b128 v[20:23], v{tb+1} offset:16")
    def b_mls(self, tb=24):
        a = self.a
        L = a.newlabel("mls")
        a(f"""s_waitcnt lgkmcnt(0)
        v_min3_f32 v{tb+0}, v16, v18, v20
        v_min_f32 v{tb+0}, v{tb+0}, v22
        v_sub_f32 v16, v{tb+0}, v16
        v_sub_f32 v18, v{tb+0}, v18
        v_sub_f32 v20, v{tb+0}, v20
        v_sub_f32 v22, v{tb+0}, v22
        v_sub_f32 v{tb+1}, v{tb+0}, {vNM}
        v_exp_f32 v16, v16
        v_exp_f32 v18, v18
        v_exp_f32 v20, v20
        v_exp_f32 v22, v22
        v_exp_f32 v{tb+1}, v{tb+1}
        v_mul_f32 v{tb+2}, v16, v17
        v_fmac_f32 v{tb+2}, v18, v19
        v_fmac_f32 v{tb+2}, v20, v21
        v_fmac_f32 v{tb+2}, v22, v23
        v_rcp_f32 v{tb+3}, v{tb+2}
        s_cmp_lg_u32 {sWAVE}, 3
        v_log_f32 v{tb+2}, v{tb+2}
        v_mul_f32 {vL}, v{tb+1}, v{tb+3}
        s_cbranch_scc1 {L}
        v_sub_f32 v{tb+2}, v{tb+2}, v{tb+0}
        v_mov_b32 v{tb+3}, {sN}
        v_lshlrev_b32 v{tb+0}, 3, v1
        s_mov_b64 exec, 5""")
        self.local_store(f"buffer_store_dwordx2 v[{tb+2}:{tb+3}], v{tb+0}, {WS}, {sLAMP} offen")
        a("s_mov_b64 exec, -1")
        a.label(L)
    def strip(self, fn, *args):
        a = self.a
        n0 = len(a.lines)
        fn(*args)
        assert a.lines[n0].endswith(":")
        del a.lines[n0]
        assert "s_setpc_b64" in a.lines[-1]
        del a.lines[-1]
    def b_s0(self):
        a = self.a
        a(f"""v_add_f32_dpp {vL}, {vL}, {vL} row_ror:4 {DPPALL}
        s_add_u32 {sT}, {sPV}, 8192
        v_add_u32 v58, {sT}, v1
        v_add_f32_dpp {vL}, {vL}, {vL} row_ror:8 {DPPALL}
        v_bfe_u32 v11, v1, 5, 1
        v_mov_b32 v63, {vL}
        v_lshlrev_b32 v11, 5, v11
        s_lshl_b32 {sT}, {sWAVE}, 3
        v_permlane16_swap_b32 {vL}, v63
        ds_write_b128 v58, v[40:43]
        ds_write_b128 v58, v[44:47] offset:1024
        v_add_f32 {vL}, {vL}, v63
        v_mov_b32 v63, {vL}
        s_add_u32 {sT}, {sT}, {L_ML}
        v_add_u32 v11, {sT}, v11
        v_permlane32_swap_b32 {vL}, v63
        v_add_f32 {vL}, {vL}, v63
        ds_write_b64 v11, v[60:61]
        v_lshlrev_b32 v56, 3, v0
        v_add_u32 v56, {L_BB + 8192}, v56
        v_bfe_u32 v10, v0, 2, 1
        v_lshlrev_b32 v11, 5, v10
        v_add_u32 v11, {L_ML}, v11
        s_waitcnt lgkmcnt(0)
        s_barrier
        ds_read_b128 v[16:19], v11
        ds_read_b128 v[20:23], v11 offset:16
        ds_read_b64 v[48:49], v56
        ds_read_b64 v[50:51], v56 offset:16384
        ds_read_b64 v[52:53], v56 offset:32768
        ds_read_b64 v[54:55], v56 offset:49152
        v_bfe_u32 v57, v0, 1, 1
        v_bfe_u32 v8, v0, 3, 2
        v_lshl_add_u32 v57, v8, 1, v57
        v_lshrrev_b32 v8, 5, v0
        v_lshlrev_b32 v9, 4, v57
        v_lshl_add_u32 v9, v8, 7, v9
        v_lshl_add_u32 v9, v10, 10, v9
        v_and_b32 v57, 3, v57
        v_lshlrev_b32 v57, 3, v57
        v_bfe_u32 v57, {sN}, v57, 8
        v_mov_b32 v8, 0xff
        s_sub_u32 {sT}, {sLAMP}, {sRECP}
        v_lshl_add_u32 v10, v10, 9, {sT}
        s_cmp_eq_u32 {sWAVE}, 0
        s_cselect_b32 {sT2}, 0x22, 0
        s_or_b32 {sT2}, {sT2}, 0x55555555
        s_waitcnt lgkmcnt(4)
        v_min3_f32 v12, v16, v18, v20
        v_min_f32 v12, v12, v22
        v_sub_f32 v16, v12, v16
        v_sub_f32 v18, v12, v18
        v_sub_f32 v20, v12, v20
        v_sub_f32 v22, v12, v22
        v_exp_f32 v16, v16
        v_exp_f32 v18, v18
        v_exp_f32 v20, v20
        v_exp_f32 v22, v22
        s_waitcnt lgkmcnt(0)
        v_mul_f32 v48, v48, v16
        v_mul_f32 v49, v49, v16
        v_fmac_f32 v48, v50, v18
        v_fmac_f32 v49, v51, v18
        v_fmac_f32 v48, v52, v20
        v_fmac_f32 v49, v53, v20
        v_fmac_f32 v48, v54, v22
        v_fmac_f32 v49, v55, v22
        v_mul_f32 v13, v16, v17
        v_fmac_f32 v13, v18, v19
        v_mov_b32_dpp v50, v48 quad_perm:[1,1,3,3] {DPPALL}
        v_mov_b32_dpp v51, v49 quad_perm:[1,1,3,3] {DPPALL}
        v_bfi_b32 v48, v8, v57, v48
        s_mov_b64 exec, 0x22
        v_fmac_f32 v13, v20, v21
        v_fma_f32 v49, v22, v23, v13
        v_mov_b32 v48, v12
        v_mov_b32 v50, {sN}
        v_mov_b32 v9, v10
        s_cmp_eq_u32 {sFAST}, 1
        s_mov_b32 exec_lo, {sT2}
        s_mov_b32 exec_hi, 0x55555555""")
        self.local_store(f"buffer_store_dwordx4 v[48:51], v9, {WS}, {sRECP} offen", pre_cmp=True)
        a("s_mov_b64 exec, -1")
    def b_s1(self):
        a = self.a
        a(f"""v_bfe_u32 v62, v1, 8, 2
        v_lshlrev_b32 v63, 7, v62
        v_and_b32 v61, 0x70, v1
        v_add_u32 v63, v63, v61
        v_lshlrev_b32 v62, 14, v62
        v_and_b32 v61, 0xf0, v1
        v_add_u32 v62, v62, v61""")
        oregs = [8, 12, 16, 20, 40, 44, 4, 52]
        loads = [f"buffer_load_dwordx3 v[56:58], v63, {WS}, {sLAMG} offen sc1"]
        for k in range(8):
            loads.append(f"buffer_load_dwordx4 v[{oregs[k]}:{oregs[k]+3}], v62, {WS}, {sRECG[k>>1]} offen offset:{(k&1)*2048} sc1")
        pm = []
        def shadow():
            a(f"""v_bfe_u32 v61, v1, 4, 2
            v_lshlrev_b32 v61, 3, v61
            v_bfe_u32 v61, {sN}, v61, 8
            s_lshl_b32 {sT}, {sWAVE}, 7
            s_add_u32 {sT}, {sT}, {L_YP}
            v_lshrrev_b32 v49, 6, v1
            v_lshlrev_b32 v49, 3, v49
            v_add_u32 v49, {sT}, v49
            v_and_b32 v50, 0x70, v1
            v_add_u32 v51, {L_YP}, v50
            v_lshrrev_b32 v48, 7, v1
            v_lshl_add_u32 v50, v48, 15, v50
            s_waitcnt vmcnt(9)""")
            pm.append(self.perm_inplace())
        self.poll(loads, [(0xff, [(f"v{o_}", "v61") for o_ in oregs], True), (0xffffffff, [("v58", sN)], True)], ["v60", "v3"], shadow=shadow, hook=self.early_vb if self.o.get("thr") else None)
        m = pm[0]
        a(f"""v_min_f32_dpp v2, v56, v56 row_ror:1 {DPPALL}
        s_nop 1
        v_min_f32_dpp v2, v2, v2 row_ror:2 {DPPALL}
        s_nop 1
        v_min_f32_dpp v2, v2, v2 row_ror:4 {DPPALL}
        v_mov_b32 v3, v2
        s_nop 1
        v_permlane16_swap_b32 v2, v3
        v_min_f32 v2, v2, v3
        v_mov_b32 v3, v2
        s_nop 1
        v_permlane32_swap_b32 v2, v3
        v_min_f32 v2, v2, v3
        v_sub_f32 v56, v2, v56
        v_exp_f32 v56, v56
        s_nop 0
        v_mul_f32 v57, v56, v57""")
        wsum = [f"v_add_f32_dpp v57, v57, v57 row_ror:1 {DPPALL}", f"v_add_f32_dpp v57, v57, v57 row_ror:2 {DPPALL}", f"v_add_f32_dpp v57, v57, v57 row_ror:4 {DPPALL}\nv_mov_b32 v3, v57",
                "v_permlane16_swap_b32 v57, v3\nv_add_f32 v57, v57, v3\nv_mov_b32 v3, v57", "v_permlane32_swap_b32 v57, v3\nv_add_f32 v57, v57, v3", "v_rcp_f32 v57, v57", "", ""]
        for k in range(8):
            o_ = oregs[k]
            for i in (0, 2, 1, 3):
                if k == 0: a(f"v_mul_f32_dpp v{8+i}, v56, v{8+i} row_newbcast:0 {DPPALL}")
                else: a(f"v_fmac_f32_dpp v{8+i}, v56, v{o_+i} row_newbcast:{k} {DPPALL}")
            if wsum[k]: a(wsum[k])
        a(f"""v_permlane32_swap_b32 v8, v10
        s_nop 0
        v_permlane32_swap_b32 v9, v11""")
        a.label(".Ls1d")
        a(f"""v_add_f32 v8, v8, v10
        v_add_f32 v9, v9, v11
        v_mov_b32 v10, v8
        v_mov_b32 v11, v9
        v_mov_b32 v48, 0xff
        v_permlane16_swap_b32 v8, v10
        v_permlane16_swap_b32 v9, v11
        v_add_f32 v8, v8, v10
        v_add_f32 v9, v9, v11
        v_mul_f32 v8, v8, v57
        v_mul_f32 v9, v9, v57
        v_cvt_pk_bf16_f32 v8, v8, v9
        v_mov_b32 v9, v8
        s_lshl_b32 {sT2}, {sWAVE}, 2
        s_add_u32 {sT2}, {sT2}, {L_ML + 80}
        v_permlane32_swap_b32 v8, v9
        v_mov_b32 v2, {sT2}
        v_mov_b32 v3, {sVB}
        s_cmp_lg_u32 {sWAVE}, 0""")
        for k in range(8): a(f"v_dot2_f32_bf16 v{40+k}, v{m[0][k]}, v8, 0")
        for k in range(8): a(f"v_dot2_f32_bf16 v{40+k}, v{m[1][k]}, v9, v{40+k}")
        for k in range(4): a(f"v_add_f32_dpp v{40+k}, v{40+k}, v{40+k} row_ror:8 row_mask:0xf bank_mask:0x3")
        for k in range(4): a(f"v_add_f32_dpp v{40+k}, v{44+k}, v{44+k} row_ror:8 row_mask:0xf bank_mask:0xc")
        for k in range(2): a(f"v_add_f32_dpp v{40+k}, v{40+k}, v{40+k} row_shl:4 row_mask:0xf bank_mask:0x5")
        for k in range(2): a(f"v_add_f32_dpp v{40+k}, v{42+k}, v{42+k} row_shr:4 row_mask:0xf bank_mask:0xa")
        a("s_nop 0")
        for k in range(2): a(f"v_add_f32_dpp v{40+k}, v{40+k}, v{40+k} quad_perm:[2,3,0,1] {DPPALL}")
        a("s_nop 0")
        for k in range(2): a(f"v_add_f32_dpp v{40+k}, v{40+k}, v{40+k} quad_perm:[1,0,3,2] {DPPALL}")
        a(f"""ds_write_b64 v49, v[40:41]
        ds_write_b32 v2, v3
        s_waitcnt lgkmcnt(0)
        s_barrier
        s_cbranch_scc1 .Ls1_done
        ds_read_b128 v[8:11], v51
        ds_read_b128 v[12:15], v51 offset:128
        ds_read_b128 v[16:19], v51 offset:256
        ds_read_b128 v[20:23], v51 offset:384
        s_waitcnt lgkmcnt(2)""")
        for i in range(4): a(f"v_add_f32 v{8+i}, v{8+i}, v{12+i}")
        a("s_waitcnt lgkmcnt(0)")
        for i in range(4): a(f"v_add_f32 v{16+i}, v{16+i}, v{20+i}")
        for i in range(4): a(f"v_add_f32 v{8+i}, v{8+i}, v{16+i}")
        a("v_bfi_b32 v8, v48, v61, v8")
        if self.o["ycopies"] == 1: a("s_mov_b64 exec, 0xff")
        a(f"buffer_store_dwordx4 v[8:11], v50, {WS}, {sYXP} offen sc1\ns_mov_b64 exec, -1\ns_nop 0")
        a.label(".Ls1_done")

    def build(self):
        a = self.a
        o = self.o
        base = K(stamps=self.stamps, nt=self.nt, **self.o)
        txt = base.build()
        body = txt.split(NAME + "_kernel:\n")[1]
        pro = body.split(".Lchain:")[0]
        lines = pro.rstrip("\n").split("\n")
        assert "sub_pv5" in lines[-1]
        lines[-1] = "    s_branch sub_pv5"
        lines = [l for l in lines if "sub_mlw" not in l and "sub_mls" not in l]
        i = lines.index(f"    s_lshl_b32 {sT}, {sG}, 9")
        assert lines[i+2] == f"    s_lshl_b32 {sT3}, {sC}, 3" and lines[i+4] == f"    s_lshl_b32 {sT3}, {sT2}, 8"
        lines[i] = f"    s_lshl_b32 {sT}, {sG}, 10"
        lines[i+2] = f"    s_lshl_b32 {sT3}, {sC}, 4"
        lines[i+4] = f"    s_lshl_b32 {sT3}, {sT2}, 9"
        i = lines.index(f"    s_add_u32 s24, s24, {BLK}")
        lines[i:i+2] = [f"    s_add_u32 {sN}, {sN}, 1"]
        if o.get("wmask", 0):
            i = lines.index(f"    s_lshr_b32 {sH1}, {sN}, 16")
            w = f"""s_cmp_lg_u32 {sWAVE}, 2
            s_cbranch_scc1 .Lnowarm
            v_lshlrev_b32 v16, 3, v1
            v_add_u32 v17, {sRECP}, v16
            s_lshl_b32 {sT}, {sG}, 15
            s_lshl_b32 {sT2}, {sC}, 10
            s_add_u32 {sT}, {sT}, {sT2}
            s_add_u32 {sT}, {sT}, {YX - 2048}
            v_add_u32 v16, {sT}, v16
            v_cmp_gt_u32 vcc, 256, v1
            v_add_u32 v18, {BLK - 2048}, v16
            s_and_b32 {sT2}, {sC}, 7
            v_cndmask_b32 v16, v16, v17, vcc
            v_cmp_gt_u32 vcc, 512, v1
            s_lshl_b32 {sT2}, {sT2}, 7
            s_lshl_b32 {sT}, {sG}, 10
            v_cndmask_b32 v16, v18, v16, vcc
            s_add_u32 {sT}, {sT}, {sT2}
            s_add_u32 {sT}, {sT}, {LAM}
            v_writelane_b32 v16, {sT}, 24
            s_and_b32 {sT2}, {sC}, 15
            s_lshl_b32 {sT2}, {sT2}, 7
            s_add_u32 {sT}, {sXSo}, {sT2}
            v_writelane_b32 v16, {sT}, 25
            s_mov_b32 m0, {L_SCR}
            s_mov_b32 exec_lo, {hex(o["wmask"] & 0xffffffff)}
            s_mov_b32 exec_hi, {hex(o["wmask"] >> 32)}
            buffer_load_dword v16, {WS}, 0 offen sc1 lds
            s_mov_b64 exec, -1""".split("\n")
            lines[i+1:i+1] = ["    " + x.strip() for x in w] + [".Lnowarm:"]
        i = lines.index("    ds_write_b64 v45, v[46:47]")
        lines[i+1:i+1] = ["    ds_write_b64 v45, v[46:47] offset:8"]
        i = lines.index(f"    s_lshr_b32 {sH1}, {sN}, 16")
        lines[i+1:i+1] = [f"    s_mov_b32 {sVB}, 0"]
        i = lines.index(f"    s_cmp_eq_u32 {sWAVE}, 0"); j = lines.index(".Lkb_done:")
        kb = []
        for t in range(o.get("kbpre", 0)):
            kb += [f"    s_mov_b32 {sRS}, {sBoff}", f"    s_mov_b32 {sRL}, {sLDSW}", f"    s_mov_b32 {sT4}, {t}", f"    s_call_b64 {RET}, sub_job"]
        kb += [f"    s_mov_b32 {sVB}, {o.get('kbpre', 0)}"]
        lines[i:j+1] = kb
        i = lines.index(f"    s_add_u32 {sYXG}, {sT}, {YX}")
        assert lines[i-2] == f"    s_lshl_b32 {sT3}, {sC}, 7"
        lines[i-2:i-1] = [f"    s_sub_u32 {sCB}, {sC}, 28", f"    s_lshl_b32 {sCB}, {sCB}, 2", f"    s_add_u32 {sCB}, {sCB}, {sWAVE}", f"    s_lshl_b32 {sT3}, {sCB}, 7"]
        i = lines.index("    v_and_b32 v48, 0x70, v1")
        blk = lines[i:i+7]
        assert "buffer_load_dword v53" in blk[6] and lines[i+7].endswith(":")
        lab = lines[i+7]
        blk[4] = f"    s_sub_u32 {sT2}, {sC}, 28\n    s_lshl_b32 {sT2}, {sT2}, 2\n    s_add_u32 {sT2}, {sT2}, {sWAVE}\n    s_lshl_b32 {sT2}, {sT2}, 6"
        lines[i:i+8] = [lab] + blk
        i = lines.index(f"    v_add_u32 v48, {L_XO}, v48")
        assert lines[i-3].strip().startswith("s_cmp_lg_u32")
        w0 = lines[i-3:i-1]
        lines[i-3:i+2] = ["    v_lshrrev_b32 v48, 2, v1", f"    s_lshl_b32 {sT}, {sWAVE}, 8", f"    s_add_u32 {sT}, {sT}, {L_XO2}", f"    v_add_u32 v48, {sT}, v48", "    ds_write_b32 v48, v53"] + w0
        a.lines += lines
        a.uid = base.a.uid + 1000
        stepsA = [(t, r) for t in range(8) for r in range(4)]
        def xy(part):
            t, half = part >> 1, part & 1
            self.aoff(6 + t, sT)
            for n in range(4 * half, 4 * half + 4):
                a(f"buffer_load_dwordx4 a[{t*32+n*4}:{t*32+n*4+3}], v3, {VA}, {sT} offen offset:{(n>>1)*512+(n&1)*256} {self.nt}")
        a.label(".LlayerA")
        a.label("sub_qka0"); self.b_qka(0); self.retif0()
        xy(0)
        a.label("sub_qka1"); self.b_qka(1); self.retif0()
        xy(1)
        self.fine()
        a.label("sub_sma"); self.softmax([f"v{8+i}" for i in range(8)]); self.retif0()
        xy(2)
        self.fine()
        a.label("sub_pv01"); self.b_pv(stepsA, 0, 8, self.srcA, prologue=True); self.retif0()
        xy(3)
        a(f"v_add_u32 v23, {sPV}, v1")
        for n in range(8, 10): a(f"ds_read_b128 v[{64+4*n}:{67+4*n}], v23 offset:{n*1024}")
        self.fine()
        a.label("sub_pv23"); self.b_pv(stepsA, 8, 16, self.srcA); self.retif0()
        a.label("sub_pv4"); self.b_pv(stepsA, 16, 20, self.srcA); self.retif0()
        a.label("sub_pv5"); self.ldwo7(); self.b_pv(stepsA, 20, 24, self.srcA)
        a(f"s_cmp_eq_u32 {sL}, 0\ns_cbranch_scc1 .Lchain")
        self.fine()
        a("s_waitcnt vmcnt(4) lgkmcnt(0)")
        a.label("sub_pv67a"); self.b_pv(stepsA, 24, 32, self.srcA)
        a("s_cmp_eq_u32 s2, 2\ns_cbranch_scc1 .Lret")
        a.label(".Lchain")
        self.stamp()
        self.b_s0()
        self.stamp()
        a(f"s_cmp_ge_u32 {sC}, 28\ns_cbranch_scc1 .Lno_s1")
        self.b_s1()
        self.stamp()
        a(f"""s_cmp_lg_u32 {sWAVE}, 0
        s_cbranch_scc1 .Lloader
        s_cmp_eq_u32 {sL}, 3
        s_cbranch_scc1 .Lfin""")
        a.label(".Lprep")
        self.w0prep()
        a.label(".Ls3")
        def s2cu():
            a.label(".Lno_s1")
            a("s_waitcnt vmcnt(0)\ns_barrier")
            self.stamp()
            a(f"s_cmp_lg_u32 {sL}, 0\ns_cbranch_scc1 .Ls2a")
            for t in range(o.get("kbpre", 0), 2): self.dmaB("K", t * TILE, L_KB + t * 8192)
            if o.get("kbpre", 0) < 3: self.dmaB("V", 0, L_BB)
            self.dmaB("V", TILE, L_BB + 8192)
            a("s_branch .Ls2b")
            a.label(".Ls2a")
            a(f"s_cmp_eq_u32 {sL}, 3\ns_cbranch_scc1 .Ls2b\ns_call_b64 s[0:1], .Ljobs")
            a.label(".Ls2b")
            a(f"""s_cmp_lt_u32 {sCB}, 14
            s_cbranch_scc0 .Lloader
            s_cmp_lg_u32 {sL}, 3
            s_cbranch_scc1 .Ls2
            s_cmp_lg_u32 {sG}, 0
            s_cbranch_scc1 .Lfin""")
            a.label(".Ls2")
            self.b_s2()
            a(f"""s_cmp_eq_u32 {sL}, 3
            s_cbranch_scc1 .Lout
            v_perm_b32 v44, v40, v41, {sSELLO}
            v_perm_b32 v45, v40, v41, {sSELHI}
            s_cmp_eq_u32 {sFAST}, 1
            s_mov_b32 exec_lo, 0xff
            s_mov_b32 exec_hi, 0xff""")
            self.local_store(f"buffer_store_dwordx2 v[44:45], v43, {WS}, {sXSo} offen", pre_cmp=True)
            a(f"""s_mov_b64 exec, -1
            ds_write_b32 v3, v40
            s_cmp_eq_u32 {sWAVE}, 0
            s_cbranch_scc1 .Ls3
            s_waitcnt lgkmcnt(0)
            s_branch .Lloader""")
        self.ool.insert(0, s2cu)
        self.stamp()
        self.strip(self.sub_s3)
        a(f"""s_cmp_eq_u32 s2, 0
        s_cbranch_scc1 .Lret
        s_cmp_eq_u32 {sFAST}, 1
        s_mov_b32 exec_lo, 0x10001
        s_mov_b32 exec_hi, 0x10001""")
        self.local_store(f"buffer_store_dwordx4 v[40:43], v48, {WS}, {sQSP} offen", pre_cmp=True)
        a("s_mov_b64 exec, -1")
        self.stamp()
        a(f"v_lshlrev_b32 v49, 1, v1\nv_add_u32 v49, {QS - XS}, v49")
        def shadow():
            self.consts()
            a(f"v_add_u32 v50, {L_Q}, v1\nv_mov_b32 v51, {L_ML + 68}\nv_mov_b32 v52, 1")
            self.cinit(8, 0xc)
            self.cinit(12, 0x3)
            a(f"s_cmp_lg_u32 {sL}, 2\ns_cbranch_scc1 .Lw0p2\ns_cmp_ge_u32 {sC}, 28\ns_cbranch_scc1 .Lw0p2")
            self.call("sub_breg")
            a.label(".Lw0p2")
            self.advance()
        self.poll([f"buffer_load_dwordx4 v[40:43], v49, {XI}, 0 offen sc1", f"buffer_load_dwordx4 v[44:47], v49, {XI}, 0 offen offset:16 sc1"],
                  [self.q_check()], ["v48"], shadow=shadow)
        for i in range(4): a(f"v_perm_b32 v{40+i}, v{41+2*i}, v{40+2*i}, {sSELHI}")
        a(f"ds_write_b128 v50, v[40:43]\nds_write_b32 v51, v52\ns_cmp_eq_u32 {sL}, 2\ns_waitcnt lgkmcnt(0)")
        a.label(".Lqready")
        a("s_barrier")
        if self.stamps:
            self.stamp()
            a(f"s_cmp_eq_u32 {sL}, 2")
        a(f"s_cbranch_scc1 .LlayerA\ns_cmp_eq_u32 {sL}, 1\ns_cbranch_scc1 .Llayer1")
        a.label(".Llayer3")
        self.strip(self.sub_qk2)
        self.ldwo7()
        steps3 = [(t, r) for t in range(2) for r in range(4)]
        self.b_pv(steps3, 0, 8, self.srcA, prologue=True)
        a("s_cmp_eq_u32 s2, 2\ns_cbranch_scc0 .Lchain")
        a.label(".Lret")
        self.ret()
        n0 = len(a.lines)
        self.sub_qkb()
        del a.lines[-1]
        i = a.lines.index("sub_qkbpre:"); a.lines[i] = ".Llayer1:"
        j = a.lines.index("sub_qkb:")
        del a.lines[j-10:j+1]
        self.fine()
        a("s_waitcnt vmcnt(0)\ns_barrier")
        self.fine()
        self.sub_pvlds()
        del a.lines[-1]
        self.retif0()
        self.ldwo7()
        a("s_branch .Lchain")
        a.label(".Lloader")
        a(f"s_cmp_eq_u32 {sL}, 3\ns_cbranch_scc1 .Lfin")
        self.setw()
        self.consts()
        a(f"s_cmp_lg_u32 {sL}, 0\ns_cbranch_scc1 .Lld_n0")
        a(f"s_cmp_ge_u32 {sC}, 28\ns_cbranch_scc1 .Lld_pre")
        a(f"""v_mov_b32 v44, {L_ML + 80}
        ds_read_b32 v45, v44
        s_waitcnt lgkmcnt(0)
        v_readfirstlane_b32 s0, v45
        s_lshl_b32 s1, {sWAVE}, 18
        s_sub_u32 s1, {sBoff}, s1""")
        def own(jn):
            L = a.newlabel("jo")
            a(f"s_cmp_gt_u32 {sVB}, {jn}\ns_cbranch_scc1 {L}\ns_mov_b32 {sRS}, {sBoff}\ns_mov_b32 {sRL}, {sLDSW}\ns_mov_b32 {sT4}, {jn}")
            self.call("sub_job"); a.label(L)
        def w0s(jn, w):
            L = self.only_wave(w)
            a(f"s_cmp_gt_u32 s0, {jn}\ns_cbranch_scc1 {L}\ns_mov_b32 {sRS}, s1\ns_mov_b32 {sRL}, 0\ns_mov_b32 {sT4}, {jn}")
            self.call("sub_job"); a.label(L)
        own(0); w0s(0, 1); own(1); w0s(1, 2)
        own(2); w0s(2, 3); w0s(3, 2)
        L = self.only_wave(1)
        self.call("sub_repair")
        a.label(L)
        a(f"s_cmp_gt_u32 {sVB}, 3\ns_cbranch_scc1 .Lld_pre")
        own(3)
        a("s_waitcnt vmcnt(6)\ns_branch .Lld_pre2")
        a.label(".Lld_pre")
        a("s_waitcnt vmcnt(0)")
        a.label(".Lld_pre2")
        self.cinit(12, 0x3)
        a("s_branch .Lld_done")
        a.label(".Lld_n0")
        a(f"s_cmp_ge_u32 {sC}, 28\ns_cbranch_scc1 .Lld_done\ns_call_b64 s[0:1], .Ljobs\ns_branch .Lld_done")
        a.label(".Ljobs")
        a(f"s_cmp_eq_u32 {sL}, 1\ns_cbranch_scc1 .Lld_1")
        self.call("sub_breg")
        a("s_waitcnt lgkmcnt(0)\ns_setpc_b64 s[0:1]")
        a.label(".Lld_1")
        L = self.only_wave(1)
        self.call("sub_repair")
        a("s_waitcnt vmcnt(0)")
        a.label(L)
        L = self.only_wave(2)
        a("s_mov_b32 s2, 2")
        self.call(".Llayer3")
        self.call("sub_pv67a")
        a("s_mov_b32 s2, 1\ns_waitcnt vmcnt(0) lgkmcnt(0)\ns_nop 7")
        a.label(L)
        a("s_setpc_b64 s[0:1]")
        a.label(".Lld_done")
        self.cinit(8, 0xc)
        self.stamp(); self.stamp()
        self.advance()
        a(f"s_cmp_eq_u32 {sL}, 2\ns_branch .Lqready")
        a.label(".Lout")
        a(f"""s_mov_b32 s36, s48
        s_mov_b32 s37, s49
        s_mov_b32 s38, 896
        s_mov_b32 exec_lo, 0xff
        s_mov_b32 exec_hi, 0xff
        buffer_store_dword v40, v42, {XI}, 0 offen
        s_mov_b64 exec, 1
        s_cmp_lg_u32 {sCB}, 0
        s_cbranch_scc1 .Lnoep
        v_mov_b32 v43, {EPOCH}
        buffer_store_dword v41, v43, {WS}, 0 offen""")
        a.label(".Lnoep")
        a("s_mov_b64 exec, -1")
        a.label(".Lfin")
        if self.stamps:
            a(f"s_mov_b32 {sT5}, {NSTAMP-1}")
            self.stamp(True)
            n = NSTAMP
            a(f"""s_lshl_b32 {sT}, {sC}, 3
            s_add_u32 {sT}, {sT}, {sG}
            s_lshl_b32 {sT}, {sT}, 2
            s_add_u32 {sT}, {sT}, {sWAVE}
            s_mul_i32 {sT}, {sT}, {n*8}
            s_add_u32 {sT}, {sT}, {STAMP}
            v_mov_b32 v8, 0""")
            for i in range(n):
                a(f"v_mov_b32 v10, s{ST0+i}\nv_mov_b32 v11, 0\nbuffer_store_dwordx2 v[10:11], v8, {WS}, {sT} offen offset:{i*8}\ns_nop 1")
        a.label(".Lend")
        a("s_endpgm")
        k = 0
        while k < len(self.ool): self.ool[k](); k += 1
        self.sub_s3pre()
        a.label("sub_job")
        a(f"""s_cmp_ge_u32 {sT4}, 2
        s_cbranch_scc1 .Ljob_v
        s_lshl_b32 {sT}, {sT4}, 20
        s_add_u32 {sRS}, {sRS}, {sT}
        s_lshl_b32 {sT}, {sT4}, 13
        s_add_u32 {sRL}, {sRL}, {sT}
        s_branch sub_dmaK
.Ljob_v:
        s_add_u32 {sRL}, {sRL}, {L_BB}
        s_cmp_eq_u32 {sT4}, 2
        s_cbranch_scc1 sub_dmaV
        s_branch sub_dmaV1""")
        a.label("sub_repair")
        for w in range(4):
            a(f"s_add_u32 {sRS}, {sBoff}, {TILE + (w-1)*262144}")
            for n in range(2):
                a(f"s_mov_b32 m0, {L_BB + w*16384 + 8192 + n*1024 - n*256}\ns_nop 0")
                a(f"buffer_load_dwordx4 v3, {VBs}, {sRS} offen offset:{n*256} {self.nt} lds")
        self.ret()
        a.label("sub_dmaV1")
        a(f"s_add_u32 {sT}, {sRS}, {TILE}")
        for n in range(2, 8):
            imm = (n >> 1) * 512 + (n & 1) * 256
            a(f"s_add_u32 m0, {sRL}, {8192 + n*1024 - imm}\ns_nop 0")
            a(f"buffer_load_dwordx4 v3, {VBs}, {sT} offen offset:{imm} {self.nt} lds")
        self.ret()
        a.label("sub_breg")
        a(f"v_add_u32 v22, {sLDSW}, v1\nv_add_u32 v23, {sPV}, v1")
        for n in range(16): a(f"ds_read_b128 a[{128+4*n}:{131+4*n}], v22 offset:{n*1024}")
        for n in list(range(8)) + list(range(10, 16)): a(f"ds_read_b128 v[{64+4*n}:{67+4*n}], v23 offset:{n*1024}")
        self.ret()
        self.sub_dma("K"); self.sub_dma("V"); self.sub_dma("V", True); self.sub_wq(); self.sub_g0()
        return wrap(a.text())
    def early_vb(self):
        a = self.a
        a(f"""s_cmp_ge_u32 {sVB}, 4
        s_cbranch_scc1 .Lev_x
        v_cmp_ne_u32 s[0:1], 0, v58
        s_nop 1
        s_bcnt1_i32_b64 {sT2}, s[0:1]
        s_cmp_lt_u32 {sT2}, {2 * self.o["thr"]}
        s_cbranch_scc1 .Lev_x
        s_mov_b64 exec, -1
        s_mov_b32 {sRS}, {sBoff}
        s_mov_b32 {sRL}, {sLDSW}
        s_mov_b32 {sT4}, {sVB}
        s_add_u32 {sVB}, {sVB}, 1""")
        self.call("sub_job")
        a.label(".Lev_x")
    def advance(self):
        self.a(f"""s_add_u32 {sL}, {sL}, 1
        s_mov_b32 {sVB}, 4
        s_add_u32 {sN}, {sN}, 1
        s_{"xor_b32" if self.o.get("ypar", 1) else "add_u32"} {sYXP}, {sYXP}, {BLK}
        s_{"xor_b32" if self.o.get("ypar", 1) else "add_u32"} {sYXG}, {sYXG}, {BLK}
        s_{"xor_b32" if self.o.get("ypar", 1) else "add_u32"} {sYXG2}, {sYXG2}, {BLK}""")
    def setw(self):
        a = self.a
        a(f"""s_bitcmp1_b32 {sL}, 0
        s_cselect_b32 s32, s44, s46
        s_cselect_b32 s33, s45, s47
        s_cselect_b32 {sWQ}, 0, 14336
        s_add_u32 {sWQ}, {sWQ}, {L_WQA}""")
    def w0prep(self):
        a = self.a
        self.setw()
        a(f"""s_and_b32 {sH0}, {sN}, 0xffff
        s_lshr_b32 {sH1}, {sN}, 16
        v_bfe_u32 v6, v1, 8, 2
        v_mul_u32_u24 v7, 448, v6
        v_mul_u32_u24 v6, 3584, v6
        v_bfe_u32 v4, v1, 4, 4
        v_lshl_add_u32 v6, v4, 3, v6
        v_add_u32 v6, {sWQ}, v6
        v_lshl_add_u32 v7, v4, 5, v7
        v_cmp_gt_u32 vcc, 14, v4
        v_mov_b32 v4, 0x10000
        s_add_u32 s36, s24, {sXSo}
        v_cndmask_b32 v7, v4, v7, vcc
        s_addc_u32 s37, s25, 0
        s_mov_b32 s38, {QS - XS + 2048}""")
        for kk in range(10):
            b = self.wbuf(kk)
            a(f"ds_read_b64_tr_b16 v[{b}:{b+1}], v6 offset:{kk*256}")
            a(f"ds_read_b64_tr_b16 v[{b+2}:{b+3}], v6 offset:{kk*256+128}")
    def ldwo7(self):
        a = self.a
        a(f"""v_bfe_u32 v16, v1, 4, 3
        v_bfe_u32 v17, v1, 7, 1
        v_lshl_add_u32 v16, v17, 5, v16
        v_mul_u32_u24 v16, 896, v16
        v_bfe_u32 v17, v1, 8, 2
        v_lshl_add_u32 v16, v17, 4, v16""")
        for k in range(4):
            a(f"buffer_load_dwordx4 v[{self.WB+4*k}:{self.WB+3+4*k}], v16, {WO}, {sWOr[k]} offen")
    WB = 24
    def b_s2(self):
        a = self.a
        a(f"""v_lshrrev_b32 v2, 7, v1
        v_mul_u32_u24 v2, 1792, v2
        v_and_b32 v3, 0x70, v1
        v_add_u32 v2, v2, v3""")
        def shadow():
            a(f"""v_lshrrev_b32 v42, 1, v3
            v_lshrrev_b32 v3, 9, v1
            v_lshl_add_u32 v42, v3, 2, v42
            s_lshl_b32 {sT2}, {sCB}, 6
            v_add_u32 v42, {sT2}, v42
            v_lshlrev_b32 v43, 1, v42
            v_lshrrev_b32 v3, 2, v1
            s_lshl_b32 {sT2}, {sWAVE}, 8
            s_add_u32 {sT2}, {sT2}, {L_XO2}
            v_add_u32 v3, {sT2}, v3
            ds_read_b32 v52, v3
            v_bfe_u32 v5, v1, 4, 2
            v_lshlrev_b32 v5, 3, v5
            v_bfe_u32 v5, {sN}, v5, 8
            v_mov_b32 v41, {sN}
            s_waitcnt lgkmcnt(0)
            v_lshlrev_b32 v53, 16, v52
            v_and_b32 v52, 0xffff0000, v52""")
            self.w0prep()
        self.poll([f"buffer_load_dwordx4 v[44:47], v2, {WS}, {sYXG} offen sc1",
                   f"buffer_load_dwordx4 v[48:51], v2, {WS}, {sYXG2} offen sc1"],
                  [(0xff, [("v44", "v5"), ("v48", "v5")], True)], ["v4"], shadow=shadow)
        a(f"""v_add_f32 v44, v44, v48
        v_add_f32 v46, v46, v50
        v_add_f32 v45, v45, v49
        v_add_f32 v47, v47, v51
        v_permlane32_swap_b32 v44, v46
        s_nop 0
        v_permlane32_swap_b32 v45, v47
        v_add_f32 v44, v44, v46
        v_add_f32 v45, v45, v47
        s_nop 0
        v_add_f32_dpp v44, v44, v44 row_ror:8 {DPPALL}
        v_add_f32_dpp v45, v45, v45 row_ror:8 {DPPALL}
        v_mov_b32 v46, v44
        v_mov_b32 v47, v45
        s_nop 0
        v_permlane16_swap_b32 v44, v46
        v_permlane16_swap_b32 v45, v47
        v_add_f32 v44, v44, v46
        v_add_f32 v45, v45, v47
        v_cvt_pk_bf16_f32 v44, v44, v45
        v_and_b32 v45, 0xffff0000, v44
        v_lshlrev_b32 v44, 16, v44
        v_add_f32 v44, v44, v53
        v_add_f32 v45, v45, v52
        v_cvt_pk_bf16_f32 v40, v44, v45""")


def variant(out, A="nt", XY="", XY2="", B="nt", W="", **kw):
    t = K10(nt="@P", **kw).build()
    i0 = t.index("sub_dmaV:"); i1 = t.index("sub_dmaVp:")
    sub = t[i0:i1]
    t = t[:i0] + sub.replace("sub_dmaV:", "sub_dmaX:").replace("@P", XY) + t[i0:]
    t = t.replace("sub_dmaV\n", "sub_dmaX\n", 2)
    lines = []
    for l in t.split("\n"):
        if "@P" in l:
            if "s[8:11]" in l: p = A
            elif "s[12:15]" in l: p = XY2 if " a[" in l else A
            elif "s[16:19]" in l or "s[20:23]" in l or ("s[28:31]" in l and "v3," in l): p = B
            else: p = W
            l = l.replace("@P", p)
        lines.append(l.rstrip())
    open(out, "w").write("\n".join(lines))
if __name__ == "__main__":
    variant("h_k2.s", thr=8, kbpre=2)
    variant("h_k3.s", thr=8, kbpre=3)
    variant("h_k4.s", thr=8, kbpre=4)
```

```python
from gen6 import *
import gen6

L_XO2 = L_Z + 512
assert L_XO2 + 1024 <= LDS_TOTAL
sCB = 's88'
sVB = 's89'
class K9(K):
    def __init__(self, *a, **kw):
        super().__init__(*a, **kw)
        self.ool = []
    def retif0(self):
        self.a(f"s_cmp_eq_u32 {sL}, 0\ns_cbranch_scc1 .Lret")
    def local_store(self, *ins, pre_cmp=False):
        a = self.a
        Ls, Lb = a.newlabel("ss"), a.newlabel("sb")
        if not pre_cmp: a(f"s_cmp_eq_u32 {sFAST}, 1")
        a(f"s_cbranch_scc0 {Ls}")
        for i in ins: a(i)
        a.label(Lb)
        def slow():
            a.label(Ls)
            for i in ins: a(i + " sc1")
            a(f"s_branch {Lb}")
        self.ool.append(slow)
    def poll(self, loads, groups, tmp, shadow=None, lanemask=None, hook=None):
        a = self.a
        Lr, Ld, Lw = a.newlabel("pr"), a.newlabel("pd"), a.newlabel("pw")
        for l in loads: a(l)
        if shadow: shadow()
        if lanemask is not None: a(f"s_mov_b32 exec_lo, {hex(lanemask)}\ns_mov_b32 exec_hi, {hex(lanemask)}")
        a.label(Lw)
        a("s_waitcnt vmcnt(0)")
        self.validate(groups, tmp, None)
        a(f"s_cbranch_vccnz {Lr}")
        a.label(Ld)
        a("s_mov_b64 exec, -1")
        def retry():
            a.label(Lr)
            if hook: hook()
            a("s_wqm_b64 exec, vcc" if groups[0][0] == 0xff else "s_mov_b64 exec, vcc")
            for l in loads: a(l)
            a(f"""s_sub_u32 {sSPIN}, {sSPIN}, 1
            s_cbranch_scc0 {Lw}
            s_mov_b32 {sSPIN}, 0
            s_waitcnt vmcnt(0)
            s_branch {Ld}""")
        self.ool.append(retry)
    def b_qka(self, part):
        a = self.a
        NB = 6
        seq = [(cc, 2 * p + bb) for p in range(2) for cc in range(8) for bb in range(2)]
        def rd(k):
            cc, b = seq[k]; q = 16 + 4 * (k % NB)
            a(f"ds_read_b128 v[{q}:{q+3}], v{4+b} offset:{cc*64}")
        if part == 0:
            for k in range(NB): rd(k)
        for k in range(16 * part, 16 * part + 16):
            cc, b = seq[k]
            issued = NB if k == 0 else min(32, NB + k - 1)
            a(f"s_waitcnt lgkmcnt({issued - k - 1})")
            q = 16 + 4 * (k % NB)
            for grp in range(2):
                t = b + 4 * grp
                c = "0" if k == 0 else f"v[{8+4*grp}:{11+4*grp}]"
                a(f"v_mfma_f32_16x16x32_bf16 v[{8+4*grp}:{11+4*grp}], a[{t*32+cc*4}:{t*32+cc*4+3}], v[{q}:{q+3}], {c}")
            if k >= 1 and k - 1 + NB < 32: rd(k - 1 + NB)
    def b_pv(self, steps, k0, k1, srcf, prologue=False):
        a = self.a
        bb = lambda k: 48 + 4 * (k % 3)
        if prologue:
            for k in range(k0, k0 + 2):
                for i in self.bop(*steps[k], bb(k)): a(i)
        for k in range(k0, k1):
            t, r = steps[k]
            nx = self.bop(*steps[k + 2], bb(k + 2)) if k + 2 < len(steps) else []
            for hf in range(2):
                a(f"v_mfma_f32_16x16x32_bf16 v[{40+4*hf}:{43+4*hf}], {srcf(t, r, hf)}, v[{bb(k)}:{bb(k)+3}], v[{40+4*hf}:{43+4*hf}]")
                for i in nx[2*hf:2*hf+2]: a(i)
    def srcA(self, t, r, hf):
        if t >= 6:
            vb = (t - 6) * 32 + (r * 2 + hf) * 4; return f"a[{vb}:{vb+3}]"
        vb = 64 + t * 32 + (r * 2 + hf) * 4; return f"v[{vb}:{vb+3}]"
    def b_mlw(self, dry=False, tb=24):
        a = self.a
        a(f"""v_bfe_u32 v{tb+0}, v1, 5, 1
        v_lshlrev_b32 v{tb+0}, 5, v{tb+0}
        v_add_f32_dpp {vL}, {vL}, {vL} row_ror:4 {DPPALL}
        v_add_u32 v{tb+1}, {L_ML}, v{tb+0}
        s_lshl_b32 {sT}, {sWAVE}, 3
        v_add_f32_dpp {vL}, {vL}, {vL} row_ror:8 {DPPALL}
        v_add_u32 v{tb+0}, {sT}, v{tb+1}""")
        self.xgroup("v_add_f32", [vL], ["v63"])
        a(f"ds_write_b64 v{tb+0}, v[60:61]")
        if dry: a("s_cmp_eq_u32 s2, 2")
        a("s_waitcnt lgkmcnt(0)")
        if dry:
            L = a.newlabel("nb"); a(f"s_cbranch_scc1 {L}\ns_barrier"); a.label(L)
        else: a("s_barrier")
        a(f"ds_read_b128 v[16:19], v{tb+1}\nds_read_b128 v[20:23], v{tb+1} offset:16")
    def b_mls(self, tb=24):
        a = self.a
        L = a.newlabel("mls")
        a(f"""s_waitcnt lgkmcnt(0)
        v_min3_f32 v{tb+0}, v16, v18, v20
        v_min_f32 v{tb+0}, v{tb+0}, v22
        v_sub_f32 v16, v{tb+0}, v16
        v_sub_f32 v18, v{tb+0}, v18
        v_sub_f32 v20, v{tb+0}, v20
        v_sub_f32 v22, v{tb+0}, v22
        v_sub_f32 v{tb+1}, v{tb+0}, {vNM}
        v_exp_f32 v16, v16
        v_exp_f32 v18, v18
        v_exp_f32 v20, v20
        v_exp_f32 v22, v22
        v_exp_f32 v{tb+1}, v{tb+1}
        v_mul_f32 v{tb+2}, v16, v17
        v_fmac_f32 v{tb+2}, v18, v19
        v_fmac_f32 v{tb+2}, v20, v21
        v_fmac_f32 v{tb+2}, v22, v23
        v_rcp_f32 v{tb+3}, v{tb+2}
        s_cmp_lg_u32 {sWAVE}, 3
        v_log_f32 v{tb+2}, v{tb+2}
        v_mul_f32 {vL}, v{tb+1}, v{tb+3}
        s_cbranch_scc1 {L}
        v_sub_f32 v{tb+2}, v{tb+2}, v{tb+0}
        v_mov_b32 v{tb+3}, {sN}
        v_lshlrev_b32 v{tb+0}, 3, v1
        s_mov_b64 exec, 5""")
        self.local_store(f"buffer_store_dwordx2 v[{tb+2}:{tb+3}], v{tb+0}, {WS}, {sLAMP} offen")
        a("s_mov_b64 exec, -1")
        a.label(L)
    def strip(self, fn, *args):
        a = self.a
        n0 = len(a.lines)
        fn(*args)
        assert a.lines[n0].endswith(":")
        del a.lines[n0]
        assert "s_setpc_b64" in a.lines[-1]
        del a.lines[-1]
    def b_s0(self):
        a = self.a
        a(f"""v_add_f32_dpp {vL}, {vL}, {vL} row_ror:4 {DPPALL}
        s_add_u32 {sT}, {sPV}, 8192
        v_add_u32 v58, {sT}, v1
        v_add_f32_dpp {vL}, {vL}, {vL} row_ror:8 {DPPALL}
        v_bfe_u32 v11, v1, 5, 1
        v_mov_b32 v63, {vL}
        v_lshlrev_b32 v11, 5, v11
        s_lshl_b32 {sT}, {sWAVE}, 3
        v_permlane16_swap_b32 {vL}, v63
        ds_write_b128 v58, v[40:43]
        ds_write_b128 v58, v[44:47] offset:1024
        v_add_f32 {vL}, {vL}, v63
        v_mov_b32 v63, {vL}
        s_add_u32 {sT}, {sT}, {L_ML}
        v_add_u32 v11, {sT}, v11
        v_permlane32_swap_b32 {vL}, v63
        v_add_f32 {vL}, {vL}, v63
        ds_write_b64 v11, v[60:61]
        v_lshlrev_b32 v56, 3, v0
        v_add_u32 v56, {L_BB + 8192}, v56
        v_bfe_u32 v10, v0, 2, 1
        v_lshlrev_b32 v11, 5, v10
        v_add_u32 v11, {L_ML}, v11
        s_waitcnt lgkmcnt(0)
        s_barrier
        ds_read_b128 v[16:19], v11
        ds_read_b128 v[20:23], v11 offset:16
        ds_read_b64 v[48:49], v56
        ds_read_b64 v[50:51], v56 offset:16384
        ds_read_b64 v[52:53], v56 offset:32768
        ds_read_b64 v[54:55], v56 offset:49152
        v_bfe_u32 v57, v0, 1, 1
        v_bfe_u32 v8, v0, 3, 2
        v_lshl_add_u32 v57, v8, 1, v57
        v_lshrrev_b32 v8, 5, v0
        v_lshlrev_b32 v9, 4, v57
        v_lshl_add_u32 v9, v8, 7, v9
        v_lshl_add_u32 v9, v10, 10, v9
        v_and_b32 v57, 3, v57
        v_lshlrev_b32 v57, 3, v57
        v_bfe_u32 v57, {sN}, v57, 8
        v_mov_b32 v8, 0xff
        s_sub_u32 {sT}, {sLAMP}, {sRECP}
        v_lshl_add_u32 v10, v10, 9, {sT}
        s_cmp_eq_u32 {sWAVE}, 0
        s_cselect_b32 {sT2}, 0x22, 0
        s_or_b32 {sT2}, {sT2}, 0x55555555
        s_waitcnt lgkmcnt(4)
        v_min3_f32 v12, v16, v18, v20
        v_min_f32 v12, v12, v22
        v_sub_f32 v16, v12, v16
        v_sub_f32 v18, v12, v18
        v_sub_f32 v20, v12, v20
        v_sub_f32 v22, v12, v22
        v_exp_f32 v16, v16
        v_exp_f32 v18, v18
        v_exp_f32 v20, v20
        v_exp_f32 v22, v22
        s_waitcnt lgkmcnt(0)
        v_mul_f32 v48, v48, v16
        v_mul_f32 v49, v49, v16
        v_fmac_f32 v48, v50, v18
        v_fmac_f32 v49, v51, v18
        v_fmac_f32 v48, v52, v20
        v_fmac_f32 v49, v53, v20
        v_fmac_f32 v48, v54, v22
        v_fmac_f32 v49, v55, v22
        v_mul_f32 v13, v16, v17
        v_fmac_f32 v13, v18, v19
        v_mov_b32_dpp v50, v48 quad_perm:[1,1,3,3] {DPPALL}
        v_mov_b32_dpp v51, v49 quad_perm:[1,1,3,3] {DPPALL}
        v_bfi_b32 v48, v8, v57, v48
        s_mov_b64 exec, 0x22
        v_fmac_f32 v13, v20, v21
        v_fma_f32 v49, v22, v23, v13
        v_mov_b32 v48, v12
        v_mov_b32 v50, {sN}
        v_mov_b32 v9, v10
        s_cmp_eq_u32 {sFAST}, 1
        s_mov_b32 exec_lo, {sT2}
        s_mov_b32 exec_hi, 0x55555555""")
        self.local_store(f"buffer_store_dwordx4 v[48:51], v9, {WS}, {sRECP} offen", pre_cmp=True)
        a("s_mov_b64 exec, -1")
    def b_s1(self):
        a = self.a
        a(f"""v_bfe_u32 v62, v1, 8, 2
        v_lshlrev_b32 v63, 7, v62
        v_and_b32 v61, 0x70, v1
        v_add_u32 v63, v63, v61
        v_lshlrev_b32 v62, 14, v62
        v_and_b32 v61, 0xf0, v1
        v_add_u32 v62, v62, v61""")
        oregs = [8, 12, 16, 20, 40, 44, 4, 52]
        loads = [f"buffer_load_dwordx3 v[56:58], v63, {WS}, {sLAMG} offen sc1"]
        for k in range(8):
            loads.append(f"buffer_load_dwordx4 v[{oregs[k]}:{oregs[k]+3}], v62, {WS}, {sRECG[k>>1]} offen offset:{(k&1)*2048} sc1")
        pm = []
        def shadow():
            a(f"""v_bfe_u32 v61, v1, 4, 2
            v_lshlrev_b32 v61, 3, v61
            v_bfe_u32 v61, {sN}, v61, 8
            s_lshl_b32 {sT}, {sWAVE}, 7
            s_add_u32 {sT}, {sT}, {L_YP}
            v_lshrrev_b32 v49, 6, v1
            v_lshlrev_b32 v49, 3, v49
            v_add_u32 v49, {sT}, v49
            v_and_b32 v50, 0x70, v1
            v_add_u32 v51, {L_YP}, v50
            v_lshrrev_b32 v48, 7, v1
            v_lshl_add_u32 v50, v48, 15, v50
            s_waitcnt vmcnt(9)""")
            pm.append(self.perm_inplace())
        self.poll(loads, [(0xff, [(f"v{o_}", "v61") for o_ in oregs], True), (0xffffffff, [("v58", sN)], True)], ["v60", "v3"], shadow=shadow, hook=self.early_vb if self.o.get("thr") else None)
        m = pm[0]
        a(f"""v_min_f32_dpp v2, v56, v56 row_ror:1 {DPPALL}
        s_nop 1
        v_min_f32_dpp v2, v2, v2 row_ror:2 {DPPALL}
        s_nop 1
        v_min_f32_dpp v2, v2, v2 row_ror:4 {DPPALL}
        v_mov_b32 v3, v2
        s_nop 1
        v_permlane16_swap_b32 v2, v3
        v_min_f32 v2, v2, v3
        v_mov_b32 v3, v2
        s_nop 1
        v_permlane32_swap_b32 v2, v3
        v_min_f32 v2, v2, v3
        v_sub_f32 v56, v2, v56
        v_exp_f32 v56, v56
        s_nop 0
        v_mul_f32 v57, v56, v57""")
        wsum = [f"v_add_f32_dpp v57, v57, v57 row_ror:1 {DPPALL}", f"v_add_f32_dpp v57, v57, v57 row_ror:2 {DPPALL}", f"v_add_f32_dpp v57, v57, v57 row_ror:4 {DPPALL}\nv_mov_b32 v3, v57",
                "v_permlane16_swap_b32 v57, v3\nv_add_f32 v57, v57, v3\nv_mov_b32 v3, v57", "v_permlane32_swap_b32 v57, v3\nv_add_f32 v57, v57, v3", "v_rcp_f32 v57, v57", "", ""]
        for k in range(8):
            o_ = oregs[k]
            for i in (0, 2, 1, 3):
                if k == 0: a(f"v_mul_f32_dpp v{8+i}, v56, v{8+i} row_newbcast:0 {DPPALL}")
                else: a(f"v_fmac_f32_dpp v{8+i}, v56, v{o_+i} row_newbcast:{k} {DPPALL}")
            if wsum[k]: a(wsum[k])
        a(f"""v_permlane32_swap_b32 v8, v10
        s_nop 0
        v_permlane32_swap_b32 v9, v11""")
        a.label(".Ls1d")
        a(f"""v_add_f32 v8, v8, v10
        v_add_f32 v9, v9, v11
        v_mov_b32 v10, v8
        v_mov_b32 v11, v9
        v_mov_b32 v48, 0xff
        v_permlane16_swap_b32 v8, v10
        v_permlane16_swap_b32 v9, v11
        v_add_f32 v8, v8, v10
        v_add_f32 v9, v9, v11
        v_mul_f32 v8, v8, v57
        v_mul_f32 v9, v9, v57
        v_cvt_pk_bf16_f32 v8, v8, v9
        v_mov_b32 v9, v8
        s_lshl_b32 {sT2}, {sWAVE}, 2
        s_add_u32 {sT2}, {sT2}, {L_ML + 80}
        v_permlane32_swap_b32 v8, v9
        v_mov_b32 v2, {sT2}
        v_mov_b32 v3, {sVB}
        s_cmp_lg_u32 {sWAVE}, 0""")
        for k in range(8): a(f"v_dot2_f32_bf16 v{40+k}, v{m[0][k]}, v8, 0")
        for k in range(8): a(f"v_dot2_f32_bf16 v{40+k}, v{m[1][k]}, v9, v{40+k}")
        for k in range(4): a(f"v_add_f32_dpp v{40+k}, v{40+k}, v{40+k} row_ror:8 row_mask:0xf bank_mask:0x3")
        for k in range(4): a(f"v_add_f32_dpp v{40+k}, v{44+k}, v{44+k} row_ror:8 row_mask:0xf bank_mask:0xc")
        for k in range(2): a(f"v_add_f32_dpp v{40+k}, v{40+k}, v{40+k} row_shl:4 row_mask:0xf bank_mask:0x5")
        for k in range(2): a(f"v_add_f32_dpp v{40+k}, v{42+k}, v{42+k} row_shr:4 row_mask:0xf bank_mask:0xa")
        a("s_nop 0")
        for k in range(2): a(f"v_add_f32_dpp v{40+k}, v{40+k}, v{40+k} quad_perm:[2,3,0,1] {DPPALL}")
        a("s_nop 0")
        for k in range(2): a(f"v_add_f32_dpp v{40+k}, v{40+k}, v{40+k} quad_perm:[1,0,3,2] {DPPALL}")
        a(f"""ds_write_b64 v49, v[40:41]
        ds_write_b32 v2, v3
        s_waitcnt lgkmcnt(0)
        s_barrier
        s_cbranch_scc1 .Ls1_done
        ds_read_b128 v[8:11], v51
        ds_read_b128 v[12:15], v51 offset:128
        ds_read_b128 v[16:19], v51 offset:256
        ds_read_b128 v[20:23], v51 offset:384
        s_waitcnt lgkmcnt(2)""")
        for i in range(4): a(f"v_add_f32 v{8+i}, v{8+i}, v{12+i}")
        a("s_waitcnt lgkmcnt(0)")
        for i in range(4): a(f"v_add_f32 v{16+i}, v{16+i}, v{20+i}")
        for i in range(4): a(f"v_add_f32 v{8+i}, v{8+i}, v{16+i}")
        a("v_bfi_b32 v8, v48, v61, v8")
        if self.o["ycopies"] == 1: a("s_mov_b64 exec, 0xff")
        a(f"buffer_store_dwordx4 v[8:11], v50, {WS}, {sYXP} offen sc1\ns_mov_b64 exec, -1\ns_nop 0")
        a.label(".Ls1_done")

    def build(self):
        a = self.a
        o = self.o
        base = K(stamps=self.stamps, nt=self.nt, **self.o)
        txt = base.build()
        body = txt.split(NAME + "_kernel:\n")[1]
        pro = body.split(".Lchain:")[0]
        lines = pro.rstrip("\n").split("\n")
        assert "sub_pv5" in lines[-1]
        lines[-1] = "    s_branch sub_pv5"
        lines = [l for l in lines if "sub_mlw" not in l and "sub_mls" not in l]
        i = lines.index(f"    s_lshl_b32 {sT}, {sG}, 9")
        assert lines[i+2] == f"    s_lshl_b32 {sT3}, {sC}, 3" and lines[i+4] == f"    s_lshl_b32 {sT3}, {sT2}, 8"
        lines[i] = f"    s_lshl_b32 {sT}, {sG}, 10"
        lines[i+2] = f"    s_lshl_b32 {sT3}, {sC}, 4"
        lines[i+4] = f"    s_lshl_b32 {sT3}, {sT2}, 9"
        i = lines.index(f"    s_add_u32 s24, s24, {BLK}")
        lines[i:i+2] = [f"    s_add_u32 {sN}, {sN}, 1"]
        if o.get("wmask", 0):
            i = lines.index(f"    s_lshr_b32 {sH1}, {sN}, 16")
            w = f"""s_cmp_lg_u32 {sWAVE}, 2
            s_cbranch_scc1 .Lnowarm
            v_lshlrev_b32 v16, 3, v1
            v_add_u32 v17, {sRECP}, v16
            s_lshl_b32 {sT}, {sG}, 15
            s_lshl_b32 {sT2}, {sC}, 10
            s_add_u32 {sT}, {sT}, {sT2}
            s_add_u32 {sT}, {sT}, {YX - 2048}
            v_add_u32 v16, {sT}, v16
            v_cmp_gt_u32 vcc, 256, v1
            v_add_u32 v18, {BLK - 2048}, v16
            s_and_b32 {sT2}, {sC}, 7
            v_cndmask_b32 v16, v16, v17, vcc
            v_cmp_gt_u32 vcc, 512, v1
            s_lshl_b32 {sT2}, {sT2}, 7
            s_lshl_b32 {sT}, {sG}, 10
            v_cndmask_b32 v16, v18, v16, vcc
            s_add_u32 {sT}, {sT}, {sT2}
            s_add_u32 {sT}, {sT}, {LAM}
            v_writelane_b32 v16, {sT}, 24
            s_and_b32 {sT2}, {sC}, 15
            s_lshl_b32 {sT2}, {sT2}, 7
            s_add_u32 {sT}, {sXSo}, {sT2}
            v_writelane_b32 v16, {sT}, 25
            s_mov_b32 m0, {L_SCR}
            s_mov_b32 exec_lo, {hex(o["wmask"] & 0xffffffff)}
            s_mov_b32 exec_hi, {hex(o["wmask"] >> 32)}
            buffer_load_dword v16, {WS}, 0 offen sc1 lds
            s_mov_b64 exec, -1""".split("\n")
            lines[i+1:i+1] = ["    " + x.strip() for x in w] + [".Lnowarm:"]
        i = lines.index("    ds_write_b64 v45, v[46:47]")
        lines[i+1:i+1] = ["    ds_write_b64 v45, v[46:47] offset:8"]
        i = lines.index(f"    s_lshr_b32 {sH1}, {sN}, 16")
        lines[i+1:i+1] = [f"    s_mov_b32 {sVB}, 0"]
        i = lines.index(f"    s_add_u32 {sYXG}, {sT}, {YX}")
        assert lines[i-2] == f"    s_lshl_b32 {sT3}, {sC}, 7"
        lines[i-2:i-1] = [f"    s_sub_u32 {sCB}, {sC}, 28", f"    s_lshl_b32 {sCB}, {sCB}, 2", f"    s_add_u32 {sCB}, {sCB}, {sWAVE}", f"    s_lshl_b32 {sT3}, {sCB}, 7"]
        i = lines.index("    v_and_b32 v48, 0x70, v1")
        blk = lines[i:i+7]
        assert "buffer_load_dword v53" in blk[6] and lines[i+7].endswith(":")
        lab = lines[i+7]
        blk[4] = f"    s_sub_u32 {sT2}, {sC}, 28\n    s_lshl_b32 {sT2}, {sT2}, 2\n    s_add_u32 {sT2}, {sT2}, {sWAVE}\n    s_lshl_b32 {sT2}, {sT2}, 6"
        lines[i:i+8] = [lab] + blk
        i = lines.index(f"    v_add_u32 v48, {L_XO}, v48")
        assert lines[i-3].strip().startswith("s_cmp_lg_u32")
        w0 = lines[i-3:i-1]
        lines[i-3:i+2] = ["    v_lshrrev_b32 v48, 2, v1", f"    s_lshl_b32 {sT}, {sWAVE}, 8", f"    s_add_u32 {sT}, {sT}, {L_XO2}", f"    v_add_u32 v48, {sT}, v48", "    ds_write_b32 v48, v53"] + w0
        a.lines += lines
        a.uid = base.a.uid + 1000
        stepsA = [(t, r) for t in range(8) for r in range(4)]
        def xy(part):
            t, half = part >> 1, part & 1
            self.aoff(6 + t, sT)
            for n in range(4 * half, 4 * half + 4):
                a(f"buffer_load_dwordx4 a[{t*32+n*4}:{t*32+n*4+3}], v3, {VA}, {sT} offen offset:{(n>>1)*512+(n&1)*256} {self.nt}")
        a.label(".LlayerA")
        a.label("sub_qka0"); self.b_qka(0); self.retif0()
        xy(0)
        a.label("sub_qka1"); self.b_qka(1); self.retif0()
        xy(1)
        self.fine()
        a.label("sub_sma"); self.softmax([f"v{8+i}" for i in range(8)]); self.retif0()
        xy(2)
        self.fine()
        a.label("sub_pv01"); self.b_pv(stepsA, 0, 8, self.srcA, prologue=True); self.retif0()
        xy(3)
        a(f"v_add_u32 v23, {sPV}, v1")
        for n in range(8, 10): a(f"ds_read_b128 v[{64+4*n}:{67+4*n}], v23 offset:{n*1024}")
        self.fine()
        a.label("sub_pv23"); self.b_pv(stepsA, 8, 16, self.srcA); self.retif0()
        a.label("sub_pv4"); self.b_pv(stepsA, 16, 20, self.srcA); self.retif0()
        a.label("sub_pv5"); self.ldwo7(); self.b_pv(stepsA, 20, 24, self.srcA)
        a(f"s_cmp_eq_u32 {sL}, 0\ns_cbranch_scc1 .Lchain")
        self.fine()
        a("s_waitcnt vmcnt(4) lgkmcnt(0)")
        a.label("sub_pv67a"); self.b_pv(stepsA, 24, 32, self.srcA)
        a("s_cmp_eq_u32 s2, 2\ns_cbranch_scc1 .Lret")
        a.label(".Lchain")
        self.stamp()
        self.b_s0()
        self.stamp()
        a(f"s_cmp_ge_u32 {sC}, 28\ns_cbranch_scc1 .Lno_s1")
        self.b_s1()
        self.stamp()
        a(f"""s_cmp_lg_u32 {sWAVE}, 0
        s_cbranch_scc1 .Lloader
        s_cmp_eq_u32 {sL}, 3
        s_cbranch_scc1 .Lfin""")
        a.label(".Lprep")
        self.w0prep()
        a.label(".Ls3")
        def s2cu():
            a.label(".Lno_s1")
            a("s_waitcnt vmcnt(0)\ns_barrier")
            self.stamp()
            a(f"s_cmp_lg_u32 {sL}, 0\ns_cbranch_scc1 .Ls2a")
            self.dmaB("V", 0, L_BB)
            self.dmaB("V", TILE, L_BB + 8192)
            a("s_branch .Ls2b")
            a.label(".Ls2a")
            a(f"s_cmp_eq_u32 {sL}, 3\ns_cbranch_scc1 .Ls2b\ns_call_b64 s[0:1], .Ljobs")
            a.label(".Ls2b")
            a(f"""s_cmp_lt_u32 {sCB}, 14
            s_cbranch_scc0 .Lloader
            s_cmp_lg_u32 {sL}, 3
            s_cbranch_scc1 .Ls2
            s_cmp_lg_u32 {sG}, 0
            s_cbranch_scc1 .Lfin""")
            a.label(".Ls2")
            self.b_s2()
            a(f"""s_cmp_eq_u32 {sL}, 3
            s_cbranch_scc1 .Lout
            v_perm_b32 v44, v40, v41, {sSELLO}
            v_perm_b32 v45, v40, v41, {sSELHI}
            s_cmp_eq_u32 {sFAST}, 1
            s_mov_b32 exec_lo, 0xff
            s_mov_b32 exec_hi, 0xff""")
            self.local_store(f"buffer_store_dwordx2 v[44:45], v43, {WS}, {sXSo} offen", pre_cmp=True)
            a(f"""s_mov_b64 exec, -1
            ds_write_b32 v3, v40
            s_cmp_eq_u32 {sWAVE}, 0
            s_cbranch_scc1 .Ls3
            s_waitcnt lgkmcnt(0)
            s_branch .Lloader""")
        self.ool.insert(0, s2cu)
        self.stamp()
        self.strip(self.sub_s3)
        a(f"""s_cmp_eq_u32 s2, 0
        s_cbranch_scc1 .Lret
        s_cmp_eq_u32 {sFAST}, 1
        s_mov_b32 exec_lo, 0x10001
        s_mov_b32 exec_hi, 0x10001""")
        self.local_store(f"buffer_store_dwordx4 v[40:43], v48, {WS}, {sQSP} offen", pre_cmp=True)
        a("s_mov_b64 exec, -1")
        self.stamp()
        a(f"v_lshlrev_b32 v49, 1, v1\nv_add_u32 v49, {QS - XS}, v49")
        def shadow():
            self.consts()
            a(f"v_add_u32 v50, {L_Q}, v1\nv_mov_b32 v51, {L_ML + 68}\nv_mov_b32 v52, 1")
            self.cinit(8, 0xc)
            a(f"s_cmp_lg_u32 {sL}, 0\ns_cbranch_scc1 .Lw0p1")
            self.call("sub_qkbpre")
            a.label(".Lw0p1")
            a(f"s_cmp_lg_u32 {sL}, 2\ns_cbranch_scc1 .Lw0p2\ns_cmp_ge_u32 {sC}, 28\ns_cbranch_scc1 .Lw0p2")
            self.call("sub_breg")
            a.label(".Lw0p2")
            self.advance()
        self.poll([f"buffer_load_dwordx4 v[40:43], v49, {XI}, 0 offen sc1", f"buffer_load_dwordx4 v[44:47], v49, {XI}, 0 offen offset:16 sc1"],
                  [self.q_check()], ["v48"], shadow=shadow)
        for i in range(4): a(f"v_perm_b32 v{40+i}, v{41+2*i}, v{40+2*i}, {sSELHI}")
        a(f"ds_write_b128 v50, v[40:43]\nds_write_b32 v51, v52\ns_cmp_eq_u32 {sL}, 2\ns_waitcnt lgkmcnt(0)")
        a.label(".Lqready")
        a("s_barrier")
        if self.stamps:
            self.stamp()
            a(f"s_cmp_eq_u32 {sL}, 2")
        a(f"s_cbranch_scc1 .LlayerA\ns_cmp_eq_u32 {sL}, 1\ns_cbranch_scc1 .Llayer1")
        a.label(".Llayer3")
        self.strip(self.sub_qk2)
        self.ldwo7()
        steps3 = [(t, r) for t in range(2) for r in range(4)]
        self.b_pv(steps3, 0, 8, self.srcA, prologue=True)
        a("s_cmp_eq_u32 s2, 2\ns_cbranch_scc0 .Lchain")
        a.label(".Lret")
        self.ret()
        n0 = len(a.lines)
        self.sub_qkb()
        del a.lines[-1]
        i = a.lines.index("sub_qkb:"); a.lines[i] = ".Llayer1:"
        self.fine()
        a("s_waitcnt vmcnt(0)\ns_barrier")
        self.fine()
        self.sub_pvlds()
        del a.lines[-1]
        self.retif0()
        self.ldwo7()
        a("s_branch .Lchain")
        a.label(".Lloader")
        a(f"s_cmp_eq_u32 {sL}, 3\ns_cbranch_scc1 .Lfin")
        self.setw()
        self.consts()
        a(f"s_cmp_lg_u32 {sL}, 0\ns_cbranch_scc1 .Lld_n0")
        a(f"s_cmp_ge_u32 {sC}, 28\ns_cbranch_scc1 .Lld_pre")
        a(f"""v_mov_b32 v44, {L_ML + 80}
        ds_read_b32 v45, v44
        s_lshl_b32 {sT}, {sWAVE}, 18
        s_sub_u32 {sRS}, {sBoff}, {sT}
        s_mov_b32 {sRL}, {L_BB}
        s_waitcnt lgkmcnt(0)
        v_readfirstlane_b32 {sT4}, v45
        s_cmp_eq_u32 {sWAVE}, 1
        s_cbranch_scc1 .Lj_rep
        s_sub_u32 {sT2}, {sWAVE}, 2
        s_cmp_gt_u32 {sT4}, {sT2}
        s_cbranch_scc1 .Lj_own
        s_cmp_eq_u32 {sWAVE}, 3
        s_cbranch_scc1 .Lj_w1""")
        self.call("sub_dmaV")
        a("s_branch .Lj_own")
        a.label(".Lj_w1")
        self.call("sub_dmaV1")
        a("s_branch .Lj_own")
        a.label(".Lj_rep")
        self.call("sub_repair")
        a.label(".Lj_own")
        a(f"s_mov_b32 {sRS}, {sBoff}\ns_mov_b32 {sRL}, {sPV}\ns_cmp_ge_u32 {sVB}, 1\ns_cbranch_scc1 .Lj_o1")
        self.call("sub_dmaV")
        a.label(".Lj_o1")
        a(f"s_cmp_ge_u32 {sVB}, 2\ns_cbranch_scc1 .Lld_pre")
        self.call("sub_dmaV1")
        a.label(".Lld_pre")
        self.call("sub_qkbpre")
        a("s_branch .Lld_done2")
        a.label(".Lld_n0")
        a(f"s_cmp_ge_u32 {sC}, 28\ns_cbranch_scc1 .Lld_done\ns_call_b64 s[0:1], .Ljobs\ns_branch .Lld_done")
        a.label(".Ljobs")
        a(f"s_cmp_eq_u32 {sL}, 1\ns_cbranch_scc1 .Lld_1")
        self.call("sub_breg")
        a("s_waitcnt lgkmcnt(0)\ns_setpc_b64 s[0:1]")
        a.label(".Lld_1")
        L = self.only_wave(1)
        self.call("sub_repair")
        a("s_waitcnt vmcnt(0)")
        a.label(L)
        L = self.only_wave(2)
        a("s_mov_b32 s2, 2")
        self.call(".Llayer3")
        self.call("sub_pv67a")
        a("s_mov_b32 s2, 1\ns_waitcnt vmcnt(0) lgkmcnt(0)\ns_nop 7")
        a.label(L)
        a("s_setpc_b64 s[0:1]")
        a.label(".Lld_done")
        self.cinit(8, 0xc)
        a.label(".Lld_done2")
        self.stamp(); self.stamp()
        self.advance()
        a(f"s_cmp_eq_u32 {sL}, 2\ns_branch .Lqready")
        a.label(".Lout")
        a(f"""s_mov_b32 s36, s48
        s_mov_b32 s37, s49
        s_mov_b32 s38, 896
        s_mov_b32 exec_lo, 0xff
        s_mov_b32 exec_hi, 0xff
        buffer_store_dword v40, v42, {XI}, 0 offen
        s_mov_b64 exec, 1
        s_cmp_lg_u32 {sCB}, 0
        s_cbranch_scc1 .Lnoep
        v_mov_b32 v43, {EPOCH}
        buffer_store_dword v41, v43, {WS}, 0 offen""")
        a.label(".Lnoep")
        a("s_mov_b64 exec, -1")
        a.label(".Lfin")
        if self.stamps:
            a(f"s_mov_b32 {sT5}, {NSTAMP-1}")
            self.stamp(True)
            n = NSTAMP
            a(f"""s_lshl_b32 {sT}, {sC}, 3
            s_add_u32 {sT}, {sT}, {sG}
            s_lshl_b32 {sT}, {sT}, 2
            s_add_u32 {sT}, {sT}, {sWAVE}
            s_mul_i32 {sT}, {sT}, {n*8}
            s_add_u32 {sT}, {sT}, {STAMP}
            v_mov_b32 v8, 0""")
            for i in range(n):
                a(f"v_mov_b32 v10, s{ST0+i}\nv_mov_b32 v11, 0\nbuffer_store_dwordx2 v[10:11], v8, {WS}, {sT} offen offset:{i*8}\ns_nop 1")
        a.label(".Lend")
        a("s_endpgm")
        k = 0
        while k < len(self.ool): self.ool[k](); k += 1
        self.sub_s3pre()
        a.label("sub_repair")
        for w in range(4):
            a(f"s_add_u32 {sRS}, {sBoff}, {TILE + (w-1)*262144}")
            for n in range(2):
                a(f"s_mov_b32 m0, {L_BB + w*16384 + 8192 + n*1024 - n*256}\ns_nop 0")
                a(f"buffer_load_dwordx4 v3, {VBs}, {sRS} offen offset:{n*256} {self.nt} lds")
        self.ret()
        a.label("sub_dmaV1")
        a(f"s_add_u32 {sT}, {sRS}, {TILE}")
        for n in range(2, 8):
            imm = (n >> 1) * 512 + (n & 1) * 256
            a(f"s_add_u32 m0, {sRL}, {8192 + n*1024 - imm}\ns_nop 0")
            a(f"buffer_load_dwordx4 v3, {VBs}, {sT} offen offset:{imm} {self.nt} lds")
        self.ret()
        a.label("sub_breg")
        a(f"v_add_u32 v12, {sLDSW}, v1\nv_add_u32 v13, {sPV}, v1")
        for n in range(16): a(f"ds_read_b128 a[{128+4*n}:{131+4*n}], v12 offset:{n*1024}")
        for n in list(range(8)) + list(range(10, 16)): a(f"ds_read_b128 v[{64+4*n}:{67+4*n}], v13 offset:{n*1024}")
        self.ret()
        self.sub_dma("K"); self.sub_dma("V"); self.sub_dma("V", True); self.sub_wq(); self.sub_g0()
        return wrap(a.text())
    def early_vb(self):
        a = self.a
        a(f"""s_cmp_ge_u32 {sVB}, 2
        s_cbranch_scc1 .Lev_x
        v_cmp_ne_u32 s[0:1], 0, v58
        s_nop 1
        s_bcnt1_i32_b64 {sT2}, s[0:1]
        s_cmp_lt_u32 {sT2}, {2 * self.o["thr"]}
        s_cbranch_scc1 .Lev_x
        s_mov_b64 exec, -1
        s_mov_b32 {sRS}, {sBoff}
        s_mov_b32 {sRL}, {sPV}
        s_cmp_eq_u32 {sVB}, 0
        s_add_u32 {sVB}, {sVB}, 1
        s_cmp_eq_u32 {sVB}, 1
        s_cbranch_scc0 .Lev_1""")
        self.call("sub_dmaV")
        a("s_branch .Lev_x")
        a.label(".Lev_1")
        self.call("sub_dmaV1")
        a.label(".Lev_x")
    def advance(self):
        self.a(f"""s_add_u32 {sL}, {sL}, 1
        s_mov_b32 {sVB}, 2
        s_add_u32 {sN}, {sN}, 1
        s_{"xor_b32" if self.o.get("ypar", 1) else "add_u32"} {sYXP}, {sYXP}, {BLK}
        s_{"xor_b32" if self.o.get("ypar", 1) else "add_u32"} {sYXG}, {sYXG}, {BLK}
        s_{"xor_b32" if self.o.get("ypar", 1) else "add_u32"} {sYXG2}, {sYXG2}, {BLK}""")
    def setw(self):
        a = self.a
        a(f"""s_bitcmp1_b32 {sL}, 0
        s_cselect_b32 s32, s44, s46
        s_cselect_b32 s33, s45, s47
        s_cselect_b32 {sWQ}, 0, 14336
        s_add_u32 {sWQ}, {sWQ}, {L_WQA}""")
    def w0prep(self):
        a = self.a
        self.setw()
        a(f"""s_and_b32 {sH0}, {sN}, 0xffff
        s_lshr_b32 {sH1}, {sN}, 16
        v_bfe_u32 v6, v1, 8, 2
        v_mul_u32_u24 v7, 448, v6
        v_mul_u32_u24 v6, 3584, v6
        v_bfe_u32 v4, v1, 4, 4
        v_lshl_add_u32 v6, v4, 3, v6
        v_add_u32 v6, {sWQ}, v6
        v_lshl_add_u32 v7, v4, 5, v7
        v_cmp_gt_u32 vcc, 14, v4
        v_mov_b32 v4, 0x10000
        s_add_u32 s36, s24, {sXSo}
        v_cndmask_b32 v7, v4, v7, vcc
        s_addc_u32 s37, s25, 0
        s_mov_b32 s38, {QS - XS + 2048}""")
        for kk in range(10):
            b = self.wbuf(kk)
            a(f"ds_read_b64_tr_b16 v[{b}:{b+1}], v6 offset:{kk*256}")
            a(f"ds_read_b64_tr_b16 v[{b+2}:{b+3}], v6 offset:{kk*256+128}")
    def ldwo7(self):
        a = self.a
        a(f"""v_bfe_u32 v16, v1, 4, 3
        v_bfe_u32 v17, v1, 7, 1
        v_lshl_add_u32 v16, v17, 5, v16
        v_mul_u32_u24 v16, 896, v16
        v_bfe_u32 v17, v1, 8, 2
        v_lshl_add_u32 v16, v17, 4, v16""")
        for k in range(4):
            a(f"buffer_load_dwordx4 v[{self.WB+4*k}:{self.WB+3+4*k}], v16, {WO}, {sWOr[k]} offen")
    WB = 24
    def b_s2(self):
        a = self.a
        a(f"""v_lshrrev_b32 v2, 7, v1
        v_mul_u32_u24 v2, 1792, v2
        v_and_b32 v3, 0x70, v1
        v_add_u32 v2, v2, v3""")
        def shadow():
            a(f"""v_lshrrev_b32 v42, 1, v3
            v_lshrrev_b32 v3, 9, v1
            v_lshl_add_u32 v42, v3, 2, v42
            s_lshl_b32 {sT2}, {sCB}, 6
            v_add_u32 v42, {sT2}, v42
            v_lshlrev_b32 v43, 1, v42
            v_lshrrev_b32 v3, 2, v1
            s_lshl_b32 {sT2}, {sWAVE}, 8
            s_add_u32 {sT2}, {sT2}, {L_XO2}
            v_add_u32 v3, {sT2}, v3
            ds_read_b32 v52, v3
            v_bfe_u32 v5, v1, 4, 2
            v_lshlrev_b32 v5, 3, v5
            v_bfe_u32 v5, {sN}, v5, 8
            v_mov_b32 v41, {sN}
            s_waitcnt lgkmcnt(0)
            v_lshlrev_b32 v53, 16, v52
            v_and_b32 v52, 0xffff0000, v52""")
            self.w0prep()
        self.poll([f"buffer_load_dwordx4 v[44:47], v2, {WS}, {sYXG} offen sc1",
                   f"buffer_load_dwordx4 v[48:51], v2, {WS}, {sYXG2} offen sc1"],
                  [(0xff, [("v44", "v5"), ("v48", "v5")], True)], ["v4"], shadow=shadow)
        a(f"""v_add_f32 v44, v44, v48
        v_add_f32 v46, v46, v50
        v_add_f32 v45, v45, v49
        v_add_f32 v47, v47, v51
        v_permlane32_swap_b32 v44, v46
        s_nop 0
        v_permlane32_swap_b32 v45, v47
        v_add_f32 v44, v44, v46
        v_add_f32 v45, v45, v47
        s_nop 0
        v_add_f32_dpp v44, v44, v44 row_ror:8 {DPPALL}
        v_add_f32_dpp v45, v45, v45 row_ror:8 {DPPALL}
        v_mov_b32 v46, v44
        v_mov_b32 v47, v45
        s_nop 0
        v_permlane16_swap_b32 v44, v46
        v_permlane16_swap_b32 v45, v47
        v_add_f32 v44, v44, v46
        v_add_f32 v45, v45, v47
        v_cvt_pk_bf16_f32 v44, v44, v45
        v_and_b32 v45, 0xffff0000, v44
        v_lshlrev_b32 v44, 16, v44
        v_add_f32 v44, v44, v53
        v_add_f32 v45, v45, v52
        v_cvt_pk_bf16_f32 v40, v44, v45""")


def variant(out, A="nt", XY="", XY2="", B="nt", W="", **kw):
    t = K9(nt="@P", **kw).build()
    i0 = t.index("sub_dmaV:"); i1 = t.index("sub_dmaVp:")
    sub = t[i0:i1]
    t = t[:i0] + sub.replace("sub_dmaV:", "sub_dmaX:").replace("@P", XY) + t[i0:]
    t = t.replace("sub_dmaV\n", "sub_dmaX\n", 2)
    lines = []
    for l in t.split("\n"):
        if "@P" in l:
            if "s[8:11]" in l: p = A
            elif "s[12:15]" in l: p = XY2 if " a[" in l else A
            elif "s[16:19]" in l or "s[20:23]" in l or ("s[28:31]" in l and "v3," in l): p = B
            else: p = W
            l = l.replace("@P", p)
        lines.append(l.rstrip())
    open(out, "w").write("\n".join(lines))
if __name__ == "__main__":
    variant("k9a.s", stamps=(0, 1))
    variant("k9a_t4.s", stamps=(0, 1), thr=4)
    variant("k9a_t8.s", stamps=(0, 1), thr=8)
    variant("k9a_t14.s", stamps=(0, 1), thr=14)
    variant("k9a_t1.s", stamps=(0, 1), thr=1)
    variant("k9.s", thr=8)
```

```python
import gen6, gen9
from gen9 import *

def kimm(n): return (n & 1) * 1024 + (n >> 1) * 128

def consts(self):
    a = self.a
    a(f"""v_bfe_u32 v58, v1, 4, 4
    v_bfe_u32 v59, v1, 8, 2
    v_lshlrev_b32 v3, 11, v59
    v_lshl_add_u32 v3, v58, 4, v3
    v_bfe_u32 v63, v1, 5, 1
    v_lshlrev_b32 v63, 9, v63
    v_lshl_add_u32 v63, v59, 4, v63
    v_and_b32 v59, 16, v1
    v_lshl_add_u32 v63, v59, 2, v63
    v_lshrrev_b32 v58, 2, v58
    v_lshl_add_u32 v2, v58, 11, v63
    v_add_u32 v63, {L_Q}, v63
    v_mov_b32 {vPM}, 0xffff
    v_lshlrev_b32 {vPM}, v59, {vPM}""")
    for b in range(4): a(f"v_mov_b32 v{4+b}, {L_Z}")
    a("s_nop 0")
    for b in range(4): a(f"v_mov_b32_dpp v{4+b}, v63 quad_perm:[0,1,2,3] row_mask:0xf bank_mask:{hex(1<<b)}")
def loadK_reg(self, t):
    self.aoff(t, sT)
    for n in range(8):
        tok = self.vmem(f"buffer_load_dwordx4 a[{t*32+n*4}:{t*32+n*4+3}], v2, {KA}, {sT} offen offset:{kimm(n)} {self.nt}")
    return tok
def sub_dma(self, kind, paced=False):
    a = self.a
    a.label(f"sub_dma{kind}{'p' if paced else ''}")
    for n in range(8):
        imm = kimm(n) if kind == "K" else (n >> 1) * 512 + (n & 1) * 256
        a(f"s_add_u32 m0, {sRL}, {n*1024 - imm}")
        a(f"s_waitcnt vmcnt({self.o['pace']})" if paced else "s_nop 0")
        a(f"buffer_load_dwordx4 {'v2' if kind=='K' else 'v3'}, {KBs if kind=='K' else RL}, {sRS} offen offset:{imm} {self.nt} lds")
    self.ret()
def pfwo(self):
    self.a(f"""v_lshlrev_b32 v58, 3, v1
    s_mov_b32 m0, {L_SCR}
    s_lshl_b32 {sT2}, {sG}, 5
    s_add_u32 {sT2}, {sT2}, {sC}
    s_mul_i32 {sT2}, {sT2}, 14336
    s_add_u32 {sT3}, {sT2}, 6144
    buffer_load_dword v58, {WO}, {sT2} offen {self.nt} lds
    buffer_load_dword v58, {WO}, {sT3} offen {self.nt} lds""")
ACC = 16
def softmax(self, sregs):
    a = self.a
    n = len(sregs)
    base = int(sregs[0][1:])
    for i in range(8): a(f"v_mov_b32 v{40+i}, 0")
    for i, r in enumerate(sregs):
        g = (base - 8) // 4 + i // 4; rp = i % 4
        src = ACC + 8 * g + 4 * (rp >> 1) + 2 * (rp & 1)
        a(f"v_add_f32_dpp {r}, v{src+1}, v{src} quad_perm:[1,1,3,3] {DPPALL}")
    a(f"v_max3_f32 {vNM}, {sregs[0]}, {sregs[1]}, {sregs[2]}")
    k = 3
    while k < n:
        if k + 1 < n: a(f"v_max3_f32 {vNM}, {vNM}, {sregs[k]}, {sregs[k+1]}"); k += 2
        else: a(f"v_max_f32 {vNM}, {vNM}, {sregs[k]}"); k += 1
    z = iter(range(48, 60))
    def zz(k):
        for _ in range(k): a(f"v_mov_b32 v{next(z)}, 0")
    zz(2)
    a(f"v_max_f32_dpp {vNM}, {vNM}, {vNM} row_ror:4 {DPPALL}")
    zz(2)
    a(f"v_max_f32_dpp {vNM}, {vNM}, {vNM} row_ror:8 {DPPALL}")
    for sw in ("v_permlane16_swap_b32", "v_permlane32_swap_b32"):
        a(f"v_mov_b32 v63, {vNM}")
        zz(2)
        a(f"{sw} {vNM}, v63\nv_max_f32 {vNM}, {vNM}, v63")
    a(f"v_mul_f32 {vNM}, {sSC}, {vNM}\nv_sub_f32 {vNM}, 0, {vNM}")
    for r in sregs: a(f"v_fma_f32 {r}, {r}, {sSC}, {vNM}")
    for r in sregs: a(f"v_exp_f32 {r}, {r}")
    zz(4)
    a(f"v_add_f32 {vL}, {sregs[0]}, {sregs[1]}\nv_add_f32 v63, {sregs[2]}, {sregs[3]}")
    for i in range(4, n, 2): a(f"v_add_f32 {vL}, {vL}, {sregs[i]}\nv_add_f32 v63, v63, {sregs[i+1]}")
    for r in sregs: a(f"v_cvt_pk_bf16_f32 {r}, {r}, {r}")
    a(f"v_add_f32 {vL}, {vL}, v63")
    for r in sregs: a(f"v_and_b32_dpp {r}, {r}, {vPM} quad_perm:[0,0,2,2] {DPPALL}")
def cinit(self, base, bankmask):
    a = self.a
    b = ACC + 2 * (base - 8)
    a(f"v_mov_b32 v63, {hex(f2u(-1e30))}")
    for i in range(8): a(f"v_mov_b32 v{b+i}, 0")
    for i in range(8): a(f"v_mov_b32_dpp v{b+i}, v63 quad_perm:[0,1,2,3] row_mask:0xf bank_mask:{hex(bankmask)}")
def b_qka(self, part):
    a = self.a
    NB = 6
    seq = [(cp, 2 * p + bb) for p in range(2) for cp in range(4) for bb in range(2)]
    def rd(k):
        cp, b = seq[k]; q = 32 + 4 * (k % NB)
        a(f"ds_read_b128 v[{q}:{q+3}], v{4+b} offset:{cp*128}")
    if part == 0:
        for k in range(NB): rd(k)
    for k in range(8 * part, 8 * part + 8):
        cp, b = seq[k]
        issued = NB if k == 0 else min(16, NB + k - 1)
        a(f"s_waitcnt lgkmcnt({issued - k - 1})")
        q = 32 + 4 * (k % NB)
        for grp in range(2):
            for s_ in range(2):
                t = b + 4 * grp; d = ACC + 8 * grp + 4 * s_; n = cp * 2 + s_
                c = "0" if k == 0 else f"v[{d}:{d+3}]"
                a(f"v_mfma_f32_16x16x32_bf16 v[{d}:{d+3}], a[{t*32+n*4}:{t*32+n*4+3}], v[{q}:{q+3}], {c}")
        if k >= 1 and k - 1 + NB < 16: rd(k - 1 + NB)
def sub_qk2(self):
    a = self.a
    a.label("sub_qk2")
    seq = [(cp, b) for cp in range(4) for b in range(2)]
    for k, (cp, b) in enumerate(seq): a(f"ds_read_b128 v[{24+4*k}:{27+4*k}], v{4+b} offset:{cp*128}")
    for k, (cp, b) in enumerate(seq):
        a(f"s_waitcnt lgkmcnt({7-k})")
        for s_ in range(2):
            d = ACC + 4 * s_; n = cp * 2 + s_
            a(f"v_mfma_f32_16x16x32_bf16 v[{d}:{d+3}], a[{(4+b)*32+n*4}:{(4+b)*32+n*4+3}], v[{24+4*k}:{27+4*k}], v[{d}:{d+3}]")
    self.softmax([f"v{8+i}" for i in range(4)])
    self.ret()
def sub_qkb(self):
    a = self.a
    kseq = [(cp, b, s_) for cp in range(4) for b in range(2) for s_ in range(2)]
    NK, NQ = 6, 5
    kb = [8, 12, 16, 20, 32, 36]
    def rk(k):
        cp, b, s_ = kseq[k]; r = kb[k % NK]
        a(f"ds_read_b128 v[{r}:{r+3}], v61 offset:{b*8192 + (cp*2+s_)*1024}")
    def rq(j):
        cp, b = j >> 1, j & 1; q = 40 + 4 * (j % NQ)
        a(f"ds_read_b128 v[{q}:{q+3}], v{6+b} offset:{cp*128}")
    a.label("sub_qkbpre")
    a(f"v_add_u32 v61, {sLDSW}, v1")
    for k in range(NK): rk(k)
    self.cinit(12, 0x3)
    self.ret()
    a.label("sub_qkb")
    order = []
    for j in range(NQ): rq(j); order.append(("q", j))
    for k in range(16):
        j = k >> 1
        need = max([i for i, x in enumerate(order) if x in (("q", j), ("k", k))])
        a(f"s_waitcnt lgkmcnt({len(order) - need - 1})")
        r = kb[k % NK]; q = 40 + 4 * (j % NQ); d = ACC + 8 + 4 * kseq[k][2]
        a(f"v_mfma_f32_16x16x32_bf16 v[{d}:{d+3}], v[{r}:{r+3}], v[{q}:{q+3}], v[{d}:{d+3}]")
        if k >= 1 and k - 1 + NK < 16: rk(k - 1 + NK); order.append(("k", k - 1 + NK))
        if k >= 2 and k % 2 == 0 and j - 1 + NQ < 8: rq(j - 1 + NQ); order.append(("q", j - 1 + NQ))
    self.softmax([f"v{12+i}" for i in range(4)])
    self.ret()

for name, fn in dict(consts=consts, loadK_reg=loadK_reg, sub_dma=sub_dma, softmax=softmax, cinit=cinit, sub_qk2=sub_qk2, sub_qkb=sub_qkb, pfwo=pfwo).items():
    setattr(gen6.K, name, fn)
gen9.K9.b_qka = b_qka
_b_s0 = gen9.K9.b_s0
def b_s0(self):
    n0 = len(self.a.lines)
    _b_s0(self)
    L = self.a.lines
    i = L.index(f"    v_add_u32 v11, {sT}, v11", n0)
    L[i+1:i+1] = []
    j = L.index("    ds_write_b64 v11, v[60:61]", n0)
    L[j:j+1] = ["    s_mov_b32 exec_lo, 0x55555555", "    s_mov_b32 exec_hi, 0x55555555", "    ds_write_b64 v11, v[60:61]", "    s_mov_b64 exec, -1"]
gen9.K9.b_s0 = b_s0

if __name__ == "__main__":
    variant("k11a.s", stamps=(0, 1), thr=8)
    variant("k11d.s", stamps=(2, 3), thr=8)
    variant("k11.s", thr=8)
```

```python
import sys, struct
from asmlib import *

BLK = 0x100000
REC = 0
YX  = 0x80000
LAM = 0xC0000
XS  = 0xC2000
QS  = 0xC8000
XCCS = 0xCC000
EPOCH = 0xD0000
STAMP = 0x600000
WS_SIZE = 0x800000
L_KB = 0
L_BB = 65536
L_WQA = 131072
L_WQB = L_WQA + 14336
L_ML = L_WQB + 14336
L_Q = L_ML + 128
L_YP = L_Q + 1024
L_SCR = L_YP + 512
L_Z = L_SCR + 256
L_XO = L_Z + 512
LDS_TOTAL = 163840
assert L_XO + 1024 <= LDS_TOTAL
SCALE = 0.0625 * 1.4426950408889634
STEP = 0x01010101
def f2u(x): return struct.unpack("<I", struct.pack("<f", x))[0]

sWAVE, sG, sC = "s3", "s4", "s5"
sSELLO, sSELHI = "s6", "s7"
KA, VA, KBs, VBs, WS, RL, WO, XI = "s[8:11]", "s[12:15]", "s[16:19]", "s[20:23]", "s[24:27]", "s[28:31]", "s[32:35]", "s[36:39]"
EXS = "s[40:41]"
sRS, sRL, sWQ, sONES = "s50", "s51", "s52", "s53"
sAoff, sBoff, sT, sSC, sFAST, sL = "s54", "s55", "s56", "s57", "s58", "s59"
sT2, sT3, sSPIN, sLDSW = "s60", "s61", "s62", "s63"
RET = "s[64:65]"
sPV, sT4, sT5 = "s66", "s67", "s68"
sRECP, sLAMP, sLAMG, sYXP, sYXG, sYXG2, sXSo, sQSG, sQSP = ["s%d" % i for i in range(69, 78)]
sRECG = ["s78", "s79", "s80", "s81"]
sWOr = ["s82", "s83", "s84", "s85"]
sH0, sH1, sCB, sVB, sN = "s86", "s87", "s88", "s89", "s90"
ST0, NSTAMP = 91, 11
TILE = 1048576
vNM, vL, vPM = "v60", "v61", "v62"
DPPALL = "row_mask:0xf bank_mask:0xf"
ACC = 16
def kimm(n): return (n & 1) * 1024 + (n >> 1) * 128
def vimm(n): return (n >> 1) * 512 + (n & 1) * 256

class G:
    def __init__(self, stamps=None, **opt):
        self.a = Asm(); self.stamps = stamps; self.vm = 0; self.ool = []
        self.o = dict(g0=3, thr=8, kbpre=2, pA="nt", pXY="", pXY2="", pB="nt", pWT="", pWQ="nt")
        self.o.update(opt)
    def stamp(self, always=False):
        if not self.stamps: return
        a = self.a; L = a.newlabel("st")
        if not always:
            a(f"s_cmp_lt_u32 {sL}, {self.stamps[0]}\ns_cbranch_scc1 {L}\ns_cmp_gt_u32 {sL}, {self.stamps[1]}\ns_cbranch_scc1 {L}")
        a(f"s_cmp_ge_u32 {sT5}, {NSTAMP}\ns_cbranch_scc1 {L}")
        a(f"s_memrealtime s[0:1]\ns_mov_b32 m0, {sT5}\ns_waitcnt lgkmcnt(0)\ns_movreld_b32 s{ST0}, s0\ns_add_u32 {sT5}, {sT5}, 1")
        a.label(L)
    def vmem(self, ins): self.a(ins); self.vm += 1; return self.vm
    def waitvm(self, tok):
        n = self.vm - tok
        if n <= 63: self.a(f"s_waitcnt vmcnt({n})")
    def call(self, name): self.a(f"s_call_b64 {RET}, {name}")
    def ret(self): self.a(f"s_setpc_b64 {RET}")
    def only_wave(self, w):
        L = self.a.newlabel("ow"); self.a(f"s_cmp_lg_u32 {sWAVE}, {w}\ns_cbranch_scc1 {L}"); return L
    def retif0(self): self.a(f"s_cmp_eq_u32 {sL}, 0\ns_cbranch_scc1 .Lret")
    def local_store(self, ins):
        a = self.a; Ls, Lb = a.newlabel("ss"), a.newlabel("sb")
        a(f"s_cbranch_scc0 {Ls}\n{ins}"); a.label(Lb)
        self.ool.append(lambda: (a.label(Ls), a(f"{ins} sc1\ns_branch {Lb}")))
    def validate(self, groups, tmp):
        a = self.a; accs = []
        for gi, (mask, items, inplace) in enumerate(groups):
            t = tmp[gi]
            if inplace:
                for r, tg in items: a(f"v_xor_b32 {r}, {tg}, {r}")
                rs = [r for r, _ in items]
                if len(rs) == 1: accs.append(rs[0]); continue
                if len(rs) == 2: a(f"v_or_b32 {t}, {rs[0]}, {rs[1]}")
                else:
                    a(f"v_or3_b32 {t}, {rs[0]}, {rs[1]}, {rs[2]}"); k = 3
                    while k < len(rs):
                        if k + 1 < len(rs): a(f"v_or3_b32 {t}, {t}, {rs[k]}, {rs[k+1]}"); k += 2
                        else: a(f"v_or_b32 {t}, {t}, {rs[k]}"); k += 1
            else:
                a(f"v_xor_b32 {t}, {items[0][1]}, {items[0][0]}")
                for r, tg in items[1:]: a(f"v_bitop3_b32 {t}, {t}, {r}, {tg} bitop3:0xf6")
            if mask != 0xffffffff: a(f"v_and_b32 {t}, {hex(mask)}, {t}")
            accs.append(t)
        for t in accs[1:]: a(f"v_or_b32 {accs[0]}, {accs[0]}, {t}")
        a(f"v_cmp_ne_u32 vcc, 0, {accs[0]}")
    def poll(self, loads, groups, tmp, shadow=None, lanemask=None, hook=None, mid=None):
        a = self.a
        Lr, Ld, Lw = a.newlabel("pr"), a.newlabel("pd"), a.newlabel("pw")
        for l in loads: a(l)
        if shadow: shadow()
        if lanemask is not None: a(f"s_mov_b32 exec_lo, {hex(lanemask)}\ns_mov_b32 exec_hi, {hex(lanemask)}")
        if mid: a(f"s_mov_b64 {EXS}, -1")
        a.label(Lw)
        if mid:
            a(f"s_waitcnt vmcnt({len(loads)-1})"); mid(); a(f"s_mov_b64 exec, {EXS}")
        a("s_waitcnt vmcnt(0)")
        self.validate(groups, tmp)
        a(f"s_cbranch_vccnz {Lr}")
        a.label(Ld)
        a("s_mov_b64 exec, -1")
        if self.o.get("pst"): self.stamp()
        def retry():
            a.label(Lr)
            if hook: hook()
            a("s_wqm_b64 exec, vcc" if groups[0][0] == 0xff else "s_mov_b64 exec, vcc")
            for l in loads: a(l)
            if mid: a(f"s_mov_b64 {EXS}, exec\ns_mov_b64 exec, -1")
            a(f"s_sub_u32 {sSPIN}, {sSPIN}, 1\ns_cbranch_scc0 {Lw}\ns_mov_b32 {sSPIN}, 0\ns_waitcnt vmcnt(0)\ns_branch {Ld}")
        self.ool.append(retry)
    def t16(self, regs): return (0xffff, [(r, sH0 if i % 2 == 0 else sH1) for i, r in enumerate(regs)], False)
    def consts(self):
        a = self.a
        a(f"""v_bfe_u32 v58, v1, 4, 4
        v_bfe_u32 v59, v1, 8, 2
        v_lshlrev_b32 v3, 11, v59
        v_lshl_add_u32 v3, v58, 4, v3
        v_bfe_u32 v63, v1, 5, 1
        v_lshlrev_b32 v63, 9, v63
        v_lshl_add_u32 v63, v59, 4, v63
        v_and_b32 v59, 16, v1
        v_lshl_add_u32 v63, v59, 2, v63
        v_lshrrev_b32 v58, 2, v58
        v_lshl_add_u32 v2, v58, 11, v63
        v_add_u32 v63, {L_Q}, v63
        v_mov_b32 {vPM}, 0xffff
        v_lshlrev_b32 {vPM}, v59, {vPM}""")
        for b in range(4): a(f"v_mov_b32 v{4+b}, {L_Z}")
        a("s_nop 0")
        for b in range(4): a(f"v_mov_b32_dpp v{4+b}, v63 quad_perm:[0,1,2,3] row_mask:0xf bank_mask:{hex(1<<b)}")
    def cinit(self):
        a = self.a
        a(f"v_mov_b32 v63, {hex(f2u(-1e30))}\nv_mov_b32 v{ACC}, 0\nv_mov_b32 v{ACC+8}, 0")
        a(f"v_mov_b32_dpp v{ACC}, v63 quad_perm:[0,1,2,3] row_mask:0xf bank_mask:0xc")
        a(f"v_mov_b32_dpp v{ACC+8}, v63 quad_perm:[0,1,2,3] row_mask:0xf bank_mask:0x3")
        for i in range(1, 8): a(f"v_mov_b32 v{ACC+i}, v{ACC}\nv_mov_b32 v{ACC+8+i}, v{ACC+8}")
    def advance(self):
        self.a(f"""s_add_u32 {sL}, {sL}, 1
        s_mov_b32 {sVB}, 4
        s_add_u32 {sN}, {sN}, {hex(STEP)}
        s_xor_b32 {sYXP}, {sYXP}, {BLK}
        s_xor_b32 {sYXG}, {sYXG}, {BLK}
        s_xor_b32 {sYXG2}, {sYXG2}, {BLK}""")
    def setw(self):
        self.a(f"""s_bitcmp1_b32 {sL}, 0
        s_cselect_b32 s32, s44, s46
        s_cselect_b32 s33, s45, s47
        s_cselect_b32 {sWQ}, 0, 14336
        s_add_u32 {sWQ}, {sWQ}, {L_WQA}""")
    def aoff(self, t, dst):
        self.a(f"s_add_u32 {dst}, {sG}, {t}\ns_and_b32 {dst}, {dst}, 7\ns_lshl_b32 {dst}, {dst}, 18\ns_add_u32 {dst}, {dst}, {sAoff}")
    def loadK(self, t):
        self.aoff(t, sT)
        for n in range(8): tok = self.vmem(f"buffer_load_dwordx4 a[{t*32+n*4}:{t*32+n*4+3}], v2, {KA}, {sT} offen offset:{kimm(n)} {self.o['pA']}")
        return tok
    def loadV(self, t):
        self.aoff(t, sT)
        for n in range(8):
            b = 64 + t * 32 + n * 4
            tok = self.vmem(f"buffer_load_dwordx4 v[{b}:{b+3}], v3, {VA}, {sT} offen offset:{vimm(n)} {self.o['pA']}")
        return tok
    def dma_body(self, vaddr, srd, soff, immf, pol, units=range(8), loff=0):
        for n in units:
            self.a(f"s_add_u32 m0, {sRL}, {loff + n*1024 - immf(n)}\ns_nop 0\nbuffer_load_dwordx4 {vaddr}, {srd}, {soff} offen offset:{immf(n)} {pol} lds")
    def job(self, jn, base, lds):
        self.a(f"s_mov_b32 {sRS}, {base}\ns_mov_b32 {sRL}, {lds}\ns_mov_b32 {sT4}, {jn}"); self.call("sub_job")
    def subs_mem(self):
        a = self.a; o = self.o
        a.label("sub_dmaX"); self.dma_body("v3", VA, sRS, vimm, o["pXY"]); self.ret()
        a.label("sub_job")
        a(f"""s_cmp_ge_u32 {sT4}, 2
        s_cbranch_scc1 .Ljob_v
        s_lshl_b32 {sT}, {sT4}, 20
        s_add_u32 {sRS}, {sRS}, {sT}
        s_lshl_b32 {sT}, {sT4}, 13
        s_add_u32 {sRL}, {sRL}, {sT}""")
        self.dma_body("v2", KBs, sRS, kimm, o["pB"]); self.ret()
        a.label(".Ljob_v")
        a(f"s_cmp_eq_u32 {sT4}, 2\ns_cbranch_scc0 .Ljob_v1")
        self.dma_body("v3", VBs, sRS, vimm, o["pB"], loff=L_BB); self.ret()
        a.label(".Ljob_v1")
        a(f"s_add_u32 {sRS}, {sRS}, {TILE}")
        self.dma_body("v3", VBs, sRS, vimm, o["pB"], units=range(2, 8), loff=L_BB + 8192); self.ret()
        a.label("sub_repair")
        for w in range(4):
            a(f"s_add_u32 {sRS}, {sBoff}, {TILE + (w-1)*262144}")
            for n in range(2):
                a(f"s_mov_b32 m0, {L_BB + w*16384 + 8192 + n*1024 - n*256}\ns_nop 0\nbuffer_load_dwordx4 v3, {VBs}, {sRS} offen offset:{n*256} {o['pB']} lds")
        self.ret()
        a.label("sub_breg")
        a(f"v_add_u32 v40, {sLDSW}, v1\nv_add_u32 v41, {sPV}, v1")
        for n in range(16): a(f"ds_read_b128 a[{128+4*n}:{131+4*n}], v40 offset:{n*1024}")
        for n in list(range(8)) + list(range(10, 16)): a(f"ds_read_b128 v[{64+4*n}:{67+4*n}], v41 offset:{n*1024}")
        self.ret()
        a.label("sub_wq")
        a(f"""v_lshrrev_b32 v58, 5, v1
        v_lshlrev_b32 v58, 13, v58
        v_and_b32 v59, 16, v1
        v_add_u32 v58, v58, v59
        s_lshl_b32 {sT}, {sG}, 10
        s_lshl_b32 {sT2}, {sC}, 5
        s_add_u32 {sT}, {sT}, {sT2}
        s_lshl_b32 {sT2}, {sWAVE}, 18
        s_add_u32 {sT}, {sT}, {sT2}
        s_lshl_b32 {sT2}, {sWAVE}, 10
        s_add_u32 m0, {sRL}, {sT2}""")
        for n in range(4):
            if n == 3: a(f"s_cmp_ge_u32 {sWAVE}, 2\ns_cbranch_scc1 .Lwq_end")
            a(f"s_nop 0\nbuffer_load_dwordx4 v58, {RL}, {sT} offen {o['pWQ']} lds")
            if n < 3: a(f"s_add_u32 {sT}, {sT}, {4*262144}\ns_add_u32 m0, m0, 4096")
        a.label(".Lwq_end")
        self.ret()
    def ldwo(self):
        a = self.a
        a("""v_bfe_u32 v16, v1, 4, 3
        v_bfe_u32 v17, v1, 7, 1
        v_lshl_add_u32 v16, v17, 5, v16
        v_mul_u32_u24 v16, 896, v16
        v_bfe_u32 v17, v1, 8, 2
        v_lshl_add_u32 v16, v17, 4, v16""")
        for k in range(4): a(f"buffer_load_dwordx4 v[{24+4*k}:{27+4*k}], v16, {WO}, {sWOr[k]} offen")
    def softmax(self, base, n):
        a = self.a
        sregs = [f"v{base+i}" for i in range(n)]
        for i in range(8): a(f"v_mov_b32 v{40+i}, 0")
        for i, r in enumerate(sregs):
            g = (base - 8) // 4 + i // 4; rp = i % 4
            src = ACC + 8 * g + 4 * (rp >> 1) + 2 * (rp & 1)
            a(f"v_add_f32_dpp {r}, v{src+1}, v{src} quad_perm:[1,1,3,3] {DPPALL}")
        a(f"v_max3_f32 {vNM}, {sregs[0]}, {sregs[1]}, {sregs[2]}"); k = 3
        while k < n:
            if k + 1 < n: a(f"v_max3_f32 {vNM}, {vNM}, {sregs[k]}, {sregs[k+1]}"); k += 2
            else: a(f"v_max_f32 {vNM}, {vNM}, {sregs[k]}"); k += 1
        z = iter(range(48, 60))
        def zz(k):
            for _ in range(k): a(f"v_mov_b32 v{next(z)}, 0")
        zz(2); a(f"v_max_f32_dpp {vNM}, {vNM}, {vNM} row_ror:4 {DPPALL}")
        zz(2); a(f"v_max_f32_dpp {vNM}, {vNM}, {vNM} row_ror:8 {DPPALL}")
        for sw in ("v_permlane16_swap_b32", "v_permlane32_swap_b32"):
            a(f"v_mov_b32 v63, {vNM}"); zz(2); a(f"{sw} {vNM}, v63\nv_max_f32 {vNM}, {vNM}, v63")
        a(f"v_mul_f32 {vNM}, {sSC}, {vNM}\nv_sub_f32 {vNM}, 0, {vNM}")
        for r in sregs: a(f"v_fma_f32 {r}, {r}, {sSC}, {vNM}")
        for r in sregs: a(f"v_exp_f32 {r}, {r}")
        zz(4)
        a(f"v_add_f32 {vL}, {sregs[0]}, {sregs[1]}\nv_add_f32 v63, {sregs[2]}, {sregs[3]}")
        for i in range(4, n, 2): a(f"v_add_f32 {vL}, {vL}, {sregs[i]}\nv_add_f32 v63, v63, {sregs[i+1]}")
        for r in sregs: a(f"v_cvt_pk_bf16_f32 {r}, {r}, {r}")
        a(f"v_add_f32 {vL}, {vL}, v63")
        for r in sregs: a(f"v_and_b32_dpp {r}, {r}, {vPM} quad_perm:[0,0,2,2] {DPPALL}")
    def qka(self, part):
        a = self.a; NB = 6
        seq = [(cp, 2 * p + bb) for p in range(2) for cp in range(4) for bb in range(2)]
        def rd(k):
            cp, b = seq[k]; q = 32 + 4 * (k % NB); a(f"ds_read_b128 v[{q}:{q+3}], v{4+b} offset:{cp*128}")
        if part == 0:
            for k in range(NB): rd(k)
        for k in range(8 * part, 8 * part + 8):
            cp, b = seq[k]
            issued = NB if k == 0 else min(16, NB + k - 1)
            a(f"s_waitcnt lgkmcnt({issued - k - 1})")
            q = 32 + 4 * (k % NB)
            for grp in range(2):
                for s_ in range(2):
                    t = b + 4 * grp; d = ACC + 8 * grp + 4 * s_; n = cp * 2 + s_
                    c = "0" if k == 0 else f"v[{d}:{d+3}]"
                    a(f"v_mfma_f32_16x16x32_bf16 v[{d}:{d+3}], a[{t*32+n*4}:{t*32+n*4+3}], v[{q}:{q+3}], {c}")
            if k >= 1 and k - 1 + NB < 16: rd(k - 1 + NB)
    def qk2(self):
        a = self.a
        seq = [(cp, b) for cp in range(4) for b in range(2)]
        for k, (cp, b) in enumerate(seq): a(f"ds_read_b128 v[{24+4*k}:{27+4*k}], v{4+b} offset:{cp*128}")
        for k, (cp, b) in enumerate(seq):
            a(f"s_waitcnt lgkmcnt({7-k})")
            for s_ in range(2):
                d = ACC + 4 * s_; n = cp * 2 + s_
                a(f"v_mfma_f32_16x16x32_bf16 v[{d}:{d+3}], a[{(4+b)*32+n*4}:{(4+b)*32+n*4+3}], v[{24+4*k}:{27+4*k}], v[{d}:{d+3}]")
        self.softmax(8, 4)
    def qkb(self):
        a = self.a
        kseq = [(cp, b, s_) for cp in range(4) for b in range(2) for s_ in range(2)]
        NK, NQ = 6, 5; kb = [8, 12, 16, 20, 32, 36]; order = []
        def rk(k):
            cp, b, s_ = kseq[k]; r = kb[k % NK]; a(f"ds_read_b128 v[{r}:{r+3}], v61 offset:{b*8192 + (cp*2+s_)*1024}"); order.append(("k", k))
        def rq(j):
            q = 40 + 4 * (j % NQ); a(f"ds_read_b128 v[{q}:{q+3}], v{6+(j&1)} offset:{(j>>1)*128}"); order.append(("q", j))
        a(f"v_add_u32 v61, {sLDSW}, v1")
        rq(0); rk(0); rk(1); rq(1); rk(2); rk(3); rq(2); rk(4); rk(5); rq(3); rq(4)
        for k in range(16):
            j = k >> 1
            need = max([i for i, x in enumerate(order) if x in (("q", j), ("k", k))])
            a(f"s_waitcnt lgkmcnt({len(order) - need - 1})")
            r = kb[k % NK]; q = 40 + 4 * (j % NQ); d = ACC + 8 + 4 * kseq[k][2]
            a(f"v_mfma_f32_16x16x32_bf16 v[{d}:{d+3}], v[{r}:{r+3}], v[{q}:{q+3}], v[{d}:{d+3}]")
            if k >= 1 and k - 1 + NK < 16: rk(k - 1 + NK)
            if k >= 2 and k % 2 == 0 and j - 1 + NQ < 8: rq(j - 1 + NQ)
        self.softmax(12, 4)
    def bop(self, t, r, bb):
        grp, b = t // 4, t % 4; out = []
        for tt in range(4):
            ctl = "quad_perm:[0,1,2,3]" if tt == b else (f"row_shr:{4*(tt-b)}" if tt > b else f"row_shl:{4*(b-tt)}")
            out.append(f"v_mov_b32_dpp v{bb+tt}, v{8+4*grp+r} {ctl} row_mask:0xf bank_mask:{hex(1<<tt)}")
        return out
    def srcA(self, t, r, hf):
        if t >= 6: vb = (t - 6) * 32 + (r * 2 + hf) * 4; return f"a[{vb}:{vb+3}]"
        vb = 64 + t * 32 + (r * 2 + hf) * 4; return f"v[{vb}:{vb+3}]"
    def pv(self, steps, k0, k1, prologue=False):
        a = self.a; bb = lambda k: 48 + 4 * (k % 3)
        if prologue:
            for k in range(k0, k0 + 2):
                for i in self.bop(*steps[k], bb(k)): a(i)
        for k in range(k0, k1):
            t, r = steps[k]
            nx = self.bop(*steps[k + 2], bb(k + 2)) if k + 2 < len(steps) else []
            for hf in range(2):
                a(f"v_mfma_f32_16x16x32_bf16 v[{40+4*hf}:{43+4*hf}], {self.srcA(t, r, hf)}, v[{bb(k)}:{bb(k)+3}], v[{40+4*hf}:{43+4*hf}]")
                for i in nx[2*hf:2*hf+2]: a(i)
    def pvlds(self):
        a = self.a
        a(f"v_add_u32 v63, {sPV}, v1")
        steps = [(t, r) for t in (6, 7) for r in range(4)]; bb = lambda k: 48 + 4 * (k % 3)
        def rd(k):
            t, r = steps[k]; b = 16 + 8 * (k % 3)
            for hf in range(2): a(f"ds_read_b128 v[{b+4*hf}:{b+4*hf+3}], v63 offset:{(t-6)*8192 + (r*2+hf)*1024}")
        rd(0); rd(1); rd(2)
        for k in range(2):
            for i in self.bop(*steps[k], bb(k)): a(i)
        for k in range(8):
            nx = self.bop(*steps[k + 2], bb(k + 2)) if k + 2 < 8 else []
            issued = 3 if k == 0 else min(8, k + 2)
            a(f"s_waitcnt lgkmcnt({(issued - k - 1)*2})")
            b = 16 + 8 * (k % 3)
            for hf in range(2):
                a(f"v_mfma_f32_16x16x32_bf16 v[{40+4*hf}:{43+4*hf}], v[{b+4*hf}:{b+4*hf+3}], v[{bb(k)}:{bb(k)+3}], v[{40+4*hf}:{43+4*hf}]")
                for i in nx[2*hf:2*hf+2]: a(i)
            if k >= 1 and k + 2 < 8: rd(k + 2)
    def s0(self):
        a = self.a
        a(f"""v_add_f32_dpp {vL}, {vL}, {vL} row_ror:4 {DPPALL}
        s_add_u32 {sT}, {sPV}, 8192
        v_add_u32 v58, {sT}, v1
        v_add_f32_dpp {vL}, {vL}, {vL} row_ror:8 {DPPALL}
        v_bfe_u32 v11, v1, 5, 1
        v_mov_b32 v63, {vL}
        v_lshlrev_b32 v11, 5, v11
        s_lshl_b32 {sT}, {sWAVE}, 3
        v_permlane16_swap_b32 {vL}, v63
        ds_write_b128 v58, v[40:43]
        ds_write_b128 v58, v[44:47] offset:1024
        v_add_f32 {vL}, {vL}, v63
        v_mov_b32 v63, {vL}
        s_add_u32 {sT}, {sT}, {L_ML}
        v_add_u32 v11, {sT}, v11
        v_permlane32_swap_b32 {vL}, v63
        v_add_f32 {vL}, {vL}, v63
        s_mov_b64 exec, 5
        ds_write_b64 v11, v[60:61]
        s_mov_b64 exec, -1
        v_lshlrev_b32 v56, 3, v0
        v_add_u32 v56, {L_BB + 8192}, v56
        v_bfe_u32 v10, v0, 2, 1
        v_lshlrev_b32 v11, 5, v10
        v_add_u32 v11, {L_ML}, v11
        s_waitcnt lgkmcnt(0)
        s_barrier
        ds_read_b128 v[16:19], v11
        ds_read_b128 v[20:23], v11 offset:16
        ds_read_b64 v[48:49], v56
        ds_read_b64 v[50:51], v56 offset:16384
        ds_read_b64 v[52:53], v56 offset:32768
        ds_read_b64 v[54:55], v56 offset:49152
        v_bfe_u32 v57, v0, 1, 1
        v_bfe_u32 v8, v0, 3, 2
        v_lshl_add_u32 v57, v8, 1, v57
        v_lshrrev_b32 v8, 5, v0
        v_lshlrev_b32 v9, 4, v57
        v_lshl_add_u32 v9, v8, 7, v9
        v_lshl_add_u32 v9, v10, 10, v9
        v_and_b32 v57, 3, v57
        v_lshlrev_b32 v57, 3, v57
        v_bfe_u32 v57, {sN}, v57, 8
        v_mov_b32 v8, 0xff
        s_sub_u32 {sT}, {sLAMP}, {sRECP}
        v_lshl_add_u32 v10, v10, 9, {sT}
        s_cmp_eq_u32 {sWAVE}, 0
        s_cselect_b32 {sT2}, 0x22, 0
        s_or_b32 {sT2}, {sT2}, 0x55555555
        s_waitcnt lgkmcnt(4)
        v_min3_f32 v12, v16, v18, v20
        v_min_f32 v12, v12, v22
        v_sub_f32 v16, v12, v16
        v_sub_f32 v18, v12, v18
        v_sub_f32 v20, v12, v20
        v_sub_f32 v22, v12, v22
        v_exp_f32 v16, v16
        v_exp_f32 v18, v18
        v_exp_f32 v20, v20
        v_exp_f32 v22, v22
        s_waitcnt lgkmcnt(0)
        v_mul_f32 v48, v48, v16
        v_mul_f32 v49, v49, v16
        v_fmac_f32 v48, v50, v18
        v_fmac_f32 v49, v51, v18
        v_fmac_f32 v48, v52, v20
        v_fmac_f32 v49, v53, v20
        v_fmac_f32 v48, v54, v22
        v_fmac_f32 v49, v55, v22
        v_mul_f32 v13, v16, v17
        v_fmac_f32 v13, v18, v19
        v_mov_b32_dpp v50, v48 quad_perm:[1,1,3,3] {DPPALL}
        v_mov_b32_dpp v51, v49 quad_perm:[1,1,3,3] {DPPALL}
        v_bfi_b32 v48, v8, v57, v48
        s_mov_b64 exec, 0x22
        v_fmac_f32 v13, v20, v21
        v_fma_f32 v49, v22, v23, v13
        v_mov_b32 v48, v12
        v_mov_b32 v50, {sN}
        v_mov_b32 v9, v10
        s_cmp_eq_u32 {sFAST}, 1
        s_mov_b32 exec_lo, {sT2}
        s_mov_b32 exec_hi, 0x55555555""")
        self.local_store(f"buffer_store_dwordx4 v[48:51], v9, {WS}, {sRECP} offen")
        a("s_mov_b64 exec, -1")
    def perm_inplace(self):
        a = self.a; free = 59; m = [[None] * 8, [None] * 8]
        for p in range(2):
            for w in range(4):
                A = 24 + p * 8 + w; B = A + 4
                a(f"v_perm_b32 v{free}, v{B}, v{A}, {sSELLO}\nv_perm_b32 v{A}, v{B}, v{A}, {sSELHI}")
                m[p][2 * w] = free; m[p][2 * w + 1] = A; free = B
        return m
    def early_job(self):
        a = self.a
        a(f"""s_cmp_ge_u32 {sVB}, 4
        s_cbranch_scc1 .Lev_x
        v_cmp_ne_u32 s[0:1], 0, v58
        s_nop 1
        s_bcnt1_i32_b64 {sT2}, s[0:1]
        s_cmp_lt_u32 {sT2}, {2 * self.o["thr"]}
        s_cbranch_scc1 .Lev_x
        s_mov_b64 exec, -1""")
        self.job(sVB, sBoff, sLDSW)
        a(f"s_add_u32 {sVB}, {sVB}, 1")
        a.label(".Lev_x")
    def s1(self):
        a = self.a
        a("""v_bfe_u32 v62, v1, 8, 2
        v_lshlrev_b32 v63, 7, v62
        v_and_b32 v61, 0x70, v1
        v_add_u32 v63, v63, v61
        v_lshlrev_b32 v62, 14, v62
        v_and_b32 v61, 0xf0, v1
        v_add_u32 v62, v62, v61""")
        oregs = [8, 12, 16, 20, 40, 44, 4, 52]
        loads = [f"buffer_load_dwordx3 v[56:58], v63, {WS}, {sLAMG} offen sc1"]
        for k in range(8): loads.append(f"buffer_load_dwordx4 v[{oregs[k]}:{oregs[k]+3}], v62, {WS}, {sRECG[k>>1]} offen offset:{(k&1)*2048} sc1")
        pm = []
        def shadow():
            a(f"""v_bfe_u32 v61, v1, 4, 2
            v_lshlrev_b32 v61, 3, v61
            v_bfe_u32 v61, {sN}, v61, 8
            s_waitcnt vmcnt(9)""")
            pm.append(self.perm_inplace())
        W, WL, T = "v39", "v48", "v49"
        def mid():
            a(f"""v_min_f32_dpp {W}, v56, v56 row_ror:1 {DPPALL}
            v_and_b32 v50, 0x70, v1
            v_add_u32 v51, {L_YP}, v50
            v_min_f32_dpp {W}, {W}, {W} row_ror:2 {DPPALL}
            v_lshrrev_b32 {T}, 7, v1
            v_lshl_add_u32 v50, {T}, 15, v50
            v_min_f32_dpp {W}, {W}, {W} row_ror:4 {DPPALL}
            v_mov_b32 {T}, {W}
            s_nop 1
            v_permlane16_swap_b32 {W}, {T}
            v_min_f32 {W}, {W}, {T}
            v_mov_b32 {T}, {W}
            s_nop 1
            v_permlane32_swap_b32 {W}, {T}
            v_min_f32 {W}, {W}, {T}
            v_sub_f32 {W}, {W}, v56
            v_exp_f32 {W}, {W}
            s_nop 0
            v_mul_f32 {WL}, {W}, v57""")
        self.poll(loads, [(0xff, [(f"v{o_}", "v61") for o_ in oregs], True), (0xffffffff, [("v58", sN)], True)], ["v60", None],
                  shadow=shadow, hook=self.early_job if self.o.get("thr") else None, mid=mid)
        m = pm[0]
        wsum = [f"v_add_f32_dpp {WL}, {WL}, {WL} row_ror:1 {DPPALL}", f"v_add_f32_dpp {WL}, {WL}, {WL} row_ror:2 {DPPALL}",
                f"v_add_f32_dpp {WL}, {WL}, {WL} row_ror:4 {DPPALL}\nv_mov_b32 {T}, {WL}",
                f"v_permlane16_swap_b32 {WL}, {T}\nv_add_f32 {WL}, {WL}, {T}\nv_mov_b32 {T}, {WL}",
                f"v_permlane32_swap_b32 {WL}, {T}\nv_add_f32 {WL}, {WL}, {T}", f"v_rcp_f32 {WL}, {WL}", "", ""]
        for k in range(8):
            for i in (0, 2, 1, 3):
                if k == 0: a(f"v_mul_f32_dpp v{8+i}, {W}, v{8+i} row_newbcast:0 {DPPALL}")
                else: a(f"v_fmac_f32_dpp v{8+i}, {W}, v{oregs[k]+i} row_newbcast:{k} {DPPALL}")
            if wsum[k]: a(wsum[k])
        a(f"""v_permlane32_swap_b32 v8, v10
        s_lshl_b32 {sT}, {sWAVE}, 7
        v_permlane32_swap_b32 v9, v11
        v_add_f32 v8, v8, v10
        v_add_f32 v9, v9, v11
        v_mov_b32 v10, v8
        v_mov_b32 v11, v9
        s_add_u32 {sT}, {sT}, {L_YP}
        v_permlane16_swap_b32 v8, v10
        v_permlane16_swap_b32 v9, v11
        v_add_f32 v8, v8, v10
        v_add_f32 v9, v9, v11
        v_mul_f32 v8, v8, {WL}
        v_mul_f32 v9, v9, {WL}
        v_cvt_pk_bf16_f32 v8, v8, v9
        v_mov_b32 v9, v8
        v_lshrrev_b32 {T}, 6, v1
        v_lshl_add_u32 {T}, {T}, 3, {sT}
        v_permlane32_swap_b32 v8, v9""")
        for k in range(8): a(f"v_dot2_f32_bf16 v{40+k}, v{m[0][k]}, v8, 0")
        for k in range(8): a(f"v_dot2_f32_bf16 v{40+k}, v{m[1][k]}, v9, v{40+k}")
        for k in range(4): a(f"v_add_f32_dpp v{40+k}, v{40+k}, v{40+k} row_ror:8 row_mask:0xf bank_mask:0x3")
        for k in range(4): a(f"v_add_f32_dpp v{40+k}, v{44+k}, v{44+k} row_ror:8 row_mask:0xf bank_mask:0xc")
        for k in range(2): a(f"v_add_f32_dpp v{40+k}, v{40+k}, v{40+k} row_shl:4 row_mask:0xf bank_mask:0x5")
        for k in range(2): a(f"v_add_f32_dpp v{40+k}, v{42+k}, v{42+k} row_shr:4 row_mask:0xf bank_mask:0xa")
        a(f"v_mov_b32 v2, {L_ML + 80}")
        for k in range(2): a(f"v_add_f32_dpp v{40+k}, v{40+k}, v{40+k} quad_perm:[2,3,0,1] {DPPALL}")
        a(f"s_cmp_lg_u32 {sWAVE}, 0")
        for k in range(2): a(f"v_add_f32_dpp v{40+k}, v{40+k}, v{40+k} quad_perm:[1,0,3,2] {DPPALL}")
        a(f"""ds_write_b64 {T}, v[40:41]
        s_cbranch_scc1 .Ls1_other
        v_mov_b32 v3, {sVB}
        ds_write_b32 v2, v3
        v_mov_b32 v48, 0xff
        s_cmp_eq_u32 {sL}, 3
        s_waitcnt lgkmcnt(0)
        s_barrier
        ds_read_b128 v[8:11], v51
        ds_read_b128 v[12:15], v51 offset:128
        ds_read_b128 v[16:19], v51 offset:256
        ds_read_b128 v[20:23], v51 offset:384
        s_cselect_b64 exec, 0xff, -1
        s_waitcnt lgkmcnt(2)""")
        for i in range(4): a(f"v_add_f32 v{8+i}, v{8+i}, v{12+i}")
        a("s_waitcnt lgkmcnt(0)")
        for i in range(4): a(f"v_add_f32 v{16+i}, v{16+i}, v{20+i}")
        for i in range(4): a(f"v_add_f32 v{8+i}, v{8+i}, v{16+i}")
        a(f"v_bfi_b32 v8, v48, v61, v8\nbuffer_store_dwordx4 v[8:11], v50, {WS}, {sYXP} offen sc1\ns_mov_b64 exec, -1")
        def other():
            a.label(".Ls1_other"); a("s_waitcnt lgkmcnt(0)\ns_barrier"); self.stamp(); a("s_branch .Lloader")
        self.ool.append(other)
    def wbuf(self, kk): return 8 + 4 * kk if kk < 8 else (56 + 4 * (kk - 8) if kk < 10 else 8 + 4 * (kk - 10))
    def s3addr(self, oob):
        self.a(f"""v_bfe_u32 v6, v1, 8, 2
        v_mul_u32_u24 v7, 448, v6
        v_mul_u32_u24 v6, 3584, v6
        v_bfe_u32 v4, v1, 4, 4
        v_lshl_add_u32 v6, v4, 3, v6
        v_add_u32 v6, {sWQ}, v6
        v_lshl_add_u32 v7, v4, 5, v7
        v_cmp_gt_u32 vcc, 14, v4
        v_mov_b32 v4, {oob}
        s_nop 0
        v_cndmask_b32 v7, v4, v7, vcc""")
    def s3w(self):
        for kk in range(10):
            b = self.wbuf(kk)
            self.a(f"ds_read_b64_tr_b16 v[{b}:{b+1}], v6 offset:{kk*256}\nds_read_b64_tr_b16 v[{b+2}:{b+3}], v6 offset:{kk*256+128}")
    def w0prep(self):
        self.setw()
        self.a(f"""s_and_b32 {sH0}, {sN}, 0xffff
        s_lshr_b32 {sH1}, {sN}, 16
        s_add_u32 s36, s24, {sXSo}
        s_addc_u32 s37, s25, 0
        s_mov_b32 s38, {QS - XS + 2048}""")
        self.s3addr(0x10000); self.s3w()
    def s2(self):
        a = self.a
        a("v_lshrrev_b32 v2, 7, v1\nv_mul_u32_u24 v2, 1792, v2\nv_and_b32 v3, 0x70, v1\nv_add_u32 v2, v2, v3")
        def shadow():
            a(f"""v_lshrrev_b32 v42, 1, v3
            v_lshrrev_b32 v3, 9, v1
            v_lshl_add_u32 v42, v3, 2, v42
            s_lshl_b32 {sT2}, {sCB}, 6
            v_add_u32 v42, {sT2}, v42
            v_lshlrev_b32 v43, 1, v42
            v_lshrrev_b32 v3, 2, v1
            s_lshl_b32 {sT2}, {sWAVE}, 8
            s_add_u32 {sT2}, {sT2}, {L_XO}
            v_add_u32 v3, {sT2}, v3
            ds_read_b32 v52, v3
            v_bfe_u32 v5, v1, 4, 2
            v_lshlrev_b32 v5, 3, v5
            v_bfe_u32 v5, {sN}, v5, 8
            v_mov_b32 v41, {sN}
            s_waitcnt lgkmcnt(0)
            v_lshlrev_b32 v53, 16, v52
            v_and_b32 v52, 0xffff0000, v52""")
            self.w0prep()
        self.poll([f"buffer_load_dwordx4 v[44:47], v2, {WS}, {sYXG} offen sc1", f"buffer_load_dwordx4 v[48:51], v2, {WS}, {sYXG2} offen sc1"],
                  [(0xff, [("v44", "v5"), ("v48", "v5")], True)], ["v4"], shadow=shadow)
        a(f"""v_add_f32 v44, v44, v48
        v_add_f32 v46, v46, v50
        v_add_f32 v45, v45, v49
        v_add_f32 v47, v47, v51
        v_permlane32_swap_b32 v44, v46
        s_cmp_eq_u32 {sL}, 3
        v_permlane32_swap_b32 v45, v47
        v_add_f32 v44, v44, v46
        v_add_f32 v45, v45, v47
        s_nop 0
        v_add_f32_dpp v44, v44, v44 row_ror:8 {DPPALL}
        v_add_f32_dpp v45, v45, v45 row_ror:8 {DPPALL}
        v_mov_b32 v46, v44
        v_mov_b32 v47, v45
        s_nop 0
        v_permlane16_swap_b32 v44, v46
        v_permlane16_swap_b32 v45, v47
        v_add_f32 v44, v44, v46
        v_add_f32 v45, v45, v47
        v_cvt_pk_bf16_f32 v44, v44, v45
        v_and_b32 v45, 0xffff0000, v44
        v_lshlrev_b32 v44, 16, v44
        v_add_f32 v44, v44, v53
        v_add_f32 v45, v45, v52
        v_cvt_pk_bf16_f32 v40, v44, v45""")
    def s3(self):
        a = self.a
        self.poll([f"buffer_load_dwordx4 v[44:47], v7, {XI}, 0 offen sc1", f"buffer_load_dwordx4 v[48:51], v7, {XI}, 0 offen offset:16 sc1"],
                  [self.t16([f"v{44+i}" for i in range(8)])], ["v40"], lanemask=0x3fff3fff)
        for i in range(4): a(f"v_perm_b32 v{40+i}, v{45+2*i}, v{44+2*i}, {sSELHI}")
        a.label("sub_s3b")
        for i in range(8): a(f"v_mov_b32 v{44+i}, {sONES}")
        a("s_waitcnt lgkmcnt(0)")
        def bc(kk):
            bb = 44 + 4 * (kk & 1)
            for i in (0, 2): a(f"v_mov_b64_dpp v[{bb+i}:{bb+i+1}], v[{40+i}:{41+i}] row_newbcast:{kk} row_mask:0xf bank_mask:0x3")
        S, Q2, T1, T2 = "v2", "v3", "v4", "v5"
        st = [[f"v_dot2_f32_bf16 {S}, v40, {sONES}, 0", f"v_dot2_f32_bf16 {Q2}, v40, v40, 0", f"v_dot2_f32_bf16 {S}, v41, {sONES}, {S}", f"v_dot2_f32_bf16 {Q2}, v41, v41, {Q2}"],
              [f"v_dot2_f32_bf16 {S}, v42, {sONES}, {S}", f"v_dot2_f32_bf16 {Q2}, v42, v42, {Q2}", f"v_dot2_f32_bf16 {S}, v43, {sONES}, {S}", f"v_dot2_f32_bf16 {Q2}, v43, v43, {Q2}"]]
        for ctl in ["row_ror:8", "row_ror:4", "row_ror:2", "row_ror:1"]:
            st.append([f"v_add_f32_dpp {S}, {S}, {S} {ctl} {DPPALL}", f"v_add_f32_dpp {Q2}, {Q2}, {Q2} {ctl} {DPPALL}"])
        st[-1] += [f"v_mov_b32 {T1}, {S}", f"v_mov_b32 {T2}, {Q2}"]
        st.append([f"v_permlane16_swap_b32 {S}, {T1}", f"v_permlane16_swap_b32 {Q2}, {T2}", f"v_add_f32 {S}, {S}, {T1}", f"v_add_f32 {Q2}, {Q2}, {T2}", f"v_mov_b32 {T1}, {S}", f"v_mov_b32 {T2}, {Q2}"])
        st.append([f"v_permlane32_swap_b32 {S}, {T1}", f"v_permlane32_swap_b32 {Q2}, {T2}", f"v_add_f32 {S}, {S}, {T1}", f"v_add_f32 {Q2}, {Q2}, {T2}"])
        st.append([f"v_mul_f32 {S}, {hex(f2u(1.0/448))}, {S}", f"v_mul_f32 {Q2}, {hex(f2u(1.0/448))}, {Q2}", f"v_fma_f32 {Q2}, -{S}, {S}, {Q2}"])
        st.append([f"v_max_f32 {Q2}, 0, {Q2}", f"v_add_f32 {Q2}, {hex(f2u(1e-5))}, {Q2}", f"v_rsq_f32 {Q2}, {Q2}"])
        st.append([f"v_mul_f32 {S}, {S}, {Q2}"])
        bc(0)
        for kk in range(14):
            if kk + 1 < 14: bc(kk + 1)
            else: a("s_nop 1")
            if kk >= 10: a(f"s_waitcnt lgkmcnt({(13-kk)*2})")
            b = self.wbuf(kk); bb = 44 + 4 * (kk & 1)
            a(f"v_mfma_f32_16x16x32_bf16 v[52:55], v[{b}:{b+3}], v[{bb}:{bb+3}], {'0' if kk == 0 else 'v[52:55]'}")
            if 1 <= kk <= 4:
                k2 = kk + 9; b2 = self.wbuf(k2)
                a(f"ds_read_b64_tr_b16 v[{b2}:{b2+1}], v6 offset:{k2*256}\nds_read_b64_tr_b16 v[{b2+2}:{b2+3}], v6 offset:{k2*256+128}")
            if kk < len(st):
                for i in st[kk]: a(i)
        a(f"""v_lshrrev_b32 v48, 4, v1
        v_mov_b32 v49, {sN}
        v_lshlrev_b32 v50, 1, v1
        v_add_u32 v50, {QS - XS}, v50
        s_mov_b32 {sT}, 0x10001
        s_nop 2""")
        for i in range(4): a(f"v_mul_f32_dpp v{44+i}, v{52+i}, {S} row_shl:8 {DPPALL}")
        for i in range(4): a(f"v_fma_f32 v{52+i}, v{52+i}, {Q2}, -v{44+i}")
        a(f"""v_cvt_pk_bf16_f32 v52, v52, v53
        v_cvt_pk_bf16_f32 v53, v54, v55
        v_perm_b32 v40, v52, v49, {sSELLO}
        v_perm_b32 v41, v52, v49, {sSELHI}
        v_perm_b32 v42, v53, v49, {sSELLO}
        v_perm_b32 v43, v53, v49, {sSELHI}""")
    def q_check(self): return self.t16(["v40", "v41", "v44", "v45"])
    def sub_g0(self):
        a = self.a
        a.label("sub_g0issue")
        a(f"""s_add_u32 {sT4}, {sQSG}, {XCCS - QS}
        v_and_b32 v52, 0x1ff, v1
        v_lshlrev_b32 v49, 1, v1
        buffer_load_dwordx2 v[50:51], v52, {WS}, {sT4} offen sc1
        buffer_load_dwordx4 v[40:43], v49, {WS}, {sQSG} offen sc1
        buffer_load_dwordx4 v[44:47], v49, {WS}, {sQSG} offen offset:16 sc1""")
        self.ret()
        a.label("sub_g0check")
        self.validate([self.q_check(), (0xffffffff, [("v51", sN)], True)], ["v48", None])
        a(f"s_cbranch_vccz .Lg0ok\ns_cmp_eq_u32 {sSPIN}, 0\ns_cbranch_scc1 .Lg0bail\ns_sub_u32 {sSPIN}, {sSPIN}, 1")
        self.ret()
        a.label(".Lg0ok")
        a(f"""s_getreg_b32 {sT2}, hwreg(HW_REG_XCC_ID, 0, 4)
        v_cmp_ne_u32 vcc, {sT2}, v50
        s_nop 1
        s_cmp_eq_u64 vcc, 0
        s_cselect_b32 {sFAST}, 1, 0""")
        a.label(".Lg0bail")
        for i in range(4): a(f"v_perm_b32 v{40+i}, v{41+2*i}, v{40+2*i}, {sSELHI}")
        a(f"""v_add_u32 v48, {L_Q}, v1
        ds_write_b128 v48, v[40:43]
        s_add_u32 {sT}, {sFAST}, 1
        v_mov_b32 v50, {sT}
        v_mov_b32 v53, {L_ML + 64}
        s_waitcnt lgkmcnt(0)
        ds_write_b32 v53, v50
        s_mov_b32 s2, 1""")
        self.ret()

    def prologue(self):
        a = self.a; o = self.o
        a(f"""s_cmp_ge_u32 s2, 256
        s_cbranch_scc1 .Lend
        s_load_dwordx16 s[64:79], s[0:1], 0
        s_load_dwordx8 s[80:87], s[0:1], 64
        s_load_dwordx2 s[88:89], s[0:1], 96
        {"s_memrealtime s[94:95]" if self.stamps else ""}
        v_lshrrev_b32 v1, 6, v0
        s_and_b32 {sG}, s2, 7
        v_readfirstlane_b32 {sWAVE}, v1
        s_lshr_b32 {sC}, s2, 3
        v_and_b32 v1, 63, v0
        v_lshlrev_b32 v1, 4, v1
        s_mov_b32 {sSELLO}, 0x05040100
        s_mov_b32 {sSELHI}, 0x07060302
        s_mov_b32 {sSC}, {hex(f2u(SCALE))}
        s_mov_b32 {sONES}, 0x3f803f80
        s_mov_b32 {sSPIN}, 0x40000
        s_mov_b32 {sFAST}, 0
        s_mov_b32 {sL}, 0
        s_mov_b32 {sWQ}, {L_WQA}
        s_lshl_b32 {sLDSW}, {sWAVE}, 14
        s_lshl_b32 {sAoff}, {sG}, 23
        s_lshl_b32 {sT}, {sC}, 13
        s_add_u32 {sAoff}, {sAoff}, {sT}
        s_add_u32 {sBoff}, {sAoff}, {12288*512}
        s_lshl_b32 {sT}, {sWAVE}, 21
        s_add_u32 {sAoff}, {sAoff}, {sT}
        s_lshl_b32 {sT}, {sWAVE}, 18
        s_add_u32 {sBoff}, {sBoff}, {sT}""")
        self.consts()
        a("s_waitcnt lgkmcnt(0)")
        def srd(d, lo, size): a(f"s_mov_b32 s{d}, s{lo}\ns_mov_b32 s{d+1}, s{lo+1}\ns_mov_b32 s{d+2}, {hex(size)}\ns_mov_b32 s{d+3}, 0x20000")
        a(f"s_load_dword {sN}, s[88:89], {EPOCH}")
        srd(28, 70, 3670016); srd(32, 72, 3670016); srd(36, 64, 896)
        a(f"""s_cmp_eq_u32 {sWAVE}, 1
        s_cselect_b32 s28, s80, s28
        s_cselect_b32 s29, s81, s29
        s_cmp_eq_u32 {sWAVE}, 3
        s_cselect_b32 s32, s82, s32
        s_cselect_b32 s33, s83, s33
        s_mov_b32 m0, {L_SCR}
        s_cmp_ge_u32 {sWAVE}, 2
        s_cbranch_scc1 .Lst_wo
        v_lshrrev_b32 v58, 7, v1
        v_lshlrev_b32 v58, 13, v58
        v_and_b32 v59, 0x70, v1
        v_lshl_add_u32 v58, v59, 3, v58
        s_lshl_b32 {sT}, {sG}, 10
        s_mul_i32 {sT2}, {sC}, {14*8192}
        s_add_u32 {sT}, {sT}, {sT2}
        s_add_u32 {sT2}, {sT}, {6*8192}
        buffer_load_dword v58, {RL}, {sT} offen {o['pWT']} lds
        buffer_load_dword v58, {RL}, {sT2} offen {o['pWT']} lds
        s_branch .Lst_j""")
        a.label(".Lst_wo")
        a(f"""v_lshlrev_b32 v58, 3, v1
        s_lshl_b32 {sT2}, {sG}, 5
        s_add_u32 {sT2}, {sT2}, {sC}
        s_mul_i32 {sT2}, {sT2}, 14336
        s_add_u32 {sT3}, {sT2}, 6144
        buffer_load_dword v58, {WO}, {sT2} offen lds
        buffer_load_dword v58, {WO}, {sT3} offen lds""")
        a.label(".Lst_j")
        a(f"s_mov_b64 s[28:29], s[70:71]\ns_mov_b32 {sRL}, {L_WQA}")
        self.call("sub_wq")
        L = self.only_wave(0)
        self.s3addr(0x1000)
        a(f"v_lshrrev_b32 v47, 1, v7\nbuffer_load_dwordx4 v[40:43], v47, {XI}, 0 offen")
        a.label(L)
        a(f"""v_and_b32 v48, 0x70, v1
        v_lshrrev_b32 v48, 1, v48
        v_lshrrev_b32 v49, 9, v1
        v_lshl_add_u32 v48, v49, 2, v48
        s_sub_u32 {sT2}, {sC}, 28
        s_lshl_b32 {sT2}, {sT2}, 2
        s_add_u32 {sT2}, {sT2}, {sWAVE}
        s_lshl_b32 {sT2}, {sT2}, 6
        v_add_u32 v48, {sT2}, v48
        buffer_load_dword v53, v48, {XI}, 0 offen""")
        tok0 = self.vm
        srd(8, 66, 0x4000000); srd(12, 68, 0x4000000)
        def dmaX(t, loff):
            self.aoff(t, sRS); a(f"s_add_u32 {sRL}, {sLDSW}, {loff}"); self.call("sub_dmaX"); self.vm += 8
        dmaX(6, L_BB)
        srd(24, 88, WS_SIZE); srd(16, 76, 0x4000000); srd(20, 78, 0x4000000)
        a(f"""s_mov_b64 s[44:45], s[72:73]
        s_mov_b64 s[46:47], s[82:83]
        s_mov_b64 s[48:49], s[84:85]
        s_mov_b64 s[32:33], s[72:73]
        s_mov_b64 s[28:29], s[80:81]
        s_mov_b32 s2, 0
        s_add_u32 {sPV}, {sLDSW}, {L_BB}
        s_mov_b32 {sT5}, 1""")
        if self.stamps: a(f"s_mov_b32 s{ST0}, s94")
        a(f"""s_cmp_ge_u32 {sC}, 14
        s_cselect_b32 {sT2}, 1, 0
        s_mul_i32 {sT3}, {sT2}, 14
        s_sub_u32 {sT3}, {sC}, {sT3}
        s_lshl_b32 {sT4}, {sG}, 1
        s_add_u32 {sT4}, {sT4}, {sT2}
        s_mul_i32 {sT4}, {sT4}, {256*896}
        s_lshl_b32 {sT3}, {sT3}, 6
        s_add_u32 {sT4}, {sT4}, {sT3}
        s_mul_i32 {sT}, {sWAVE}, {64*896}
        s_add_u32 {sWOr[0]}, {sT4}, {sT}
        s_add_u32 {sWOr[1]}, {sWOr[0]}, {8*896}
        s_add_u32 {sWOr[2]}, {sWOr[0]}, {16*896}
        s_add_u32 {sWOr[3]}, {sWOr[0]}, {24*896}
        s_lshl_b32 {sT}, {sG}, 16
        s_lshl_b32 {sT3}, {sC}, 11
        s_add_u32 {sRECP}, {sT}, {sT3}
        s_lshl_b32 {sT3}, {sT2}, 10
        s_add_u32 {sT}, {sT}, {sT3}
        s_lshl_b32 {sT3}, {sWAVE}, 8
        s_add_u32 {sRECG[0]}, {sT}, {sT3}
        s_add_u32 {sRECG[1]}, {sRECG[0]}, 4096
        s_add_u32 {sRECG[2]}, {sRECG[0]}, 8192
        s_add_u32 {sRECG[3]}, {sRECG[0]}, 12288
        s_lshl_b32 {sT}, {sG}, 10
        s_add_u32 {sT}, {sT}, {LAM}
        s_lshl_b32 {sT3}, {sC}, 4
        s_add_u32 {sLAMP}, {sT}, {sT3}
        s_lshl_b32 {sT3}, {sT2}, 9
        s_add_u32 {sLAMG}, {sT}, {sT3}
        s_mul_i32 {sT}, {sG}, 28
        s_add_u32 {sT}, {sT}, {sC}
        s_lshl_b32 {sT}, {sT}, 7
        s_add_u32 {sYXP}, {sT}, {YX}
        s_lshl_b32 {sT}, {sG}, 11
        s_add_u32 {sXSo}, {sT}, {XS}
        s_add_u32 {sQSG}, {sT}, {QS}
        s_lshl_b32 {sT3}, {sC}, 6
        s_add_u32 {sQSP}, {sQSG}, {sT3}
        s_waitcnt lgkmcnt(0)
        s_sub_u32 {sCB}, {sC}, 28
        s_lshl_b32 {sCB}, {sCB}, 2
        s_add_u32 {sCB}, {sCB}, {sWAVE}
        s_lshl_b32 {sT}, {sG}, 15
        s_lshl_b32 {sT3}, {sCB}, 7
        s_add_u32 {sT}, {sT}, {sT3}
        s_add_u32 {sYXG}, {sT}, {YX}
        s_add_u32 {sYXG2}, {sYXG}, {8*1792}
        s_add_u32 {sN}, {sN}, {hex(STEP)}
        s_and_b32 {sH0}, {sN}, 0xffff
        s_lshr_b32 {sH1}, {sN}, 16
        s_mov_b32 {sVB}, {o['kbpre']}""")
        dmaX(7, L_BB + 8192)
        a(f"s_mov_b32 {sRL}, {L_WQB}")
        self.call("sub_wq")
        a(f"""v_mov_b32 v46, 0
        v_mov_b32 v47, 0
        v_mov_b32 v45, {L_ML + 64}
        ds_write_b64 v45, v[46:47]
        v_lshrrev_b32 v45, 1, v1
        v_add_u32 v45, {L_Z}, v45
        ds_write_b64 v45, v[46:47]
        s_waitcnt lgkmcnt(0)""")
        self.waitvm(tok0)
        a(f"""s_barrier
        v_lshrrev_b32 v48, 2, v1
        s_lshl_b32 {sT}, {sWAVE}, 8
        s_add_u32 {sT}, {sT}, {L_XO}
        v_add_u32 v48, {sT}, v48
        ds_write_b32 v48, v53""")
        L = self.only_wave(0)
        self.s3w()
        self.call("sub_s3b")
        a(f"""s_getreg_b32 {sT2}, hwreg(HW_REG_XCC_ID, 0, 4)
        s_mul_i32 {sT3}, {sC}, 48
        s_sub_u32 {sT3}, {XCCS - QS}, {sT3}
        v_writelane_b32 v40, {sT2}, 1
        v_writelane_b32 v41, {sN}, 1
        v_writelane_b32 v48, {sT3}, 1
        s_mov_b32 exec_lo, 0x10003
        s_mov_b32 exec_hi, 0x10001
        buffer_store_dwordx4 v[40:43], v48, {WS}, {sQSP} offen sc1
        s_mov_b64 exec, -1""")
        self.consts()
        a.label(L)
        g0 = o["g0"]
        for t in range(g0): self.loadK(t)
        L = self.only_wave(0); self.call("sub_g0issue"); a.label(L)
        for t in range(g0, 8):
            self.loadK(t)
            L = self.only_wave(0)
            a(f"s_cmp_lg_u32 s2, 0\ns_cbranch_scc1 {L}\ns_waitcnt vmcnt(8)")
            if t == 7: a.label(".Lg0loop")
            self.call("sub_g0check")
            a(f"s_cmp_lg_u32 s2, 0\ns_cbranch_scc1 {L}")
            self.call("sub_g0issue")
            if t == 7: a("s_waitcnt vmcnt(0)\ns_branch .Lg0loop")
            a.label(L)
        tokK = self.vm
        a(f"s_add_u32 {sN}, {sN}, {hex(STEP)}")
        self.loadV(0); tokV1 = self.loadV(1)
        a(f"v_mov_b32 v46, {L_ML + 64}")
        a.label(".Lqflag")
        a(f"""ds_read_b32 v44, v46
        s_waitcnt lgkmcnt(0)
        v_readfirstlane_b32 {sFAST}, v44
        s_nop 3
        s_cmp_eq_u32 {sFAST}, 0
        s_cbranch_scc1 .Lqflag
        s_sub_u32 {sFAST}, {sFAST}, 1""")
        self.waitvm(tokK)
        self.call("sub_qka0"); self.loadV(2)
        self.call("sub_qka1"); self.call("sub_sma")
        tokV3 = self.loadV(3)
        self.call("sub_pvlds")
        self.waitvm(tokV1); self.call("sub_pv01")
        for t in range(o["kbpre"]): self.job(t, sBoff, sLDSW)
        tokV4 = self.loadV(4)
        self.waitvm(tokV3); self.call("sub_pv23")
        self.loadV(5)
        self.waitvm(tokV4); self.call("sub_pv4")
        a("s_waitcnt vmcnt(0)\ns_branch sub_pv5")
    def build(self):
        a = self.a; o = self.o
        self.prologue()
        stepsA = [(t, r) for t in range(8) for r in range(4)]
        def xy(part):
            t, half = part >> 1, part & 1
            self.aoff(6 + t, sT)
            for n in range(4 * half, 4 * half + 4):
                a(f"buffer_load_dwordx4 a[{t*32+n*4}:{t*32+n*4+3}], v3, {VA}, {sT} offen offset:{vimm(n)} {o['pXY2']}")
        a.label(".LlayerA")
        a.label("sub_qka0"); self.qka(0); self.retif0(); xy(0)
        a.label("sub_qka1"); self.qka(1); self.retif0(); xy(1)
        a.label("sub_sma"); self.softmax(8, 8); self.retif0(); xy(2)
        a.label("sub_pv01"); self.pv(stepsA, 0, 8, prologue=True); self.retif0(); xy(3)
        a(f"v_add_u32 v23, {sPV}, v1")
        for n in range(8, 10): a(f"ds_read_b128 v[{64+4*n}:{67+4*n}], v23 offset:{n*1024}")
        a.label("sub_pv23"); self.pv(stepsA, 8, 16); self.retif0()
        a.label("sub_pv4"); self.pv(stepsA, 16, 20); self.retif0()
        a.label("sub_pv5"); self.ldwo(); self.pv(stepsA, 20, 24)
        a(f"s_cmp_eq_u32 {sL}, 0\ns_cbranch_scc1 .Lchain\ns_waitcnt vmcnt(4) lgkmcnt(0)")
        a.label("sub_pv67a"); self.pv(stepsA, 24, 32)
        a("s_cmp_eq_u32 s2, 2\ns_cbranch_scc1 .Lret")
        a.label(".Lchain")
        self.stamp(); self.s0(); self.stamp()
        a(f"s_cmp_ge_u32 {sC}, 28\ns_cbranch_scc1 .Lno_s1")
        self.s1()
        self.stamp()
        a(f"s_cmp_eq_u32 {sL}, 3\ns_cbranch_scc1 .Lfin\ns_cmp_lg_u32 {sL}, 2\ns_cbranch_scc1 .Lprep")
        self.call("sub_breg")
        a.label(".Lprep")
        self.w0prep()
        a.label(".Ls3")
        def s2cu():
            a.label(".Lno_s1")
            a("s_waitcnt vmcnt(0)\ns_barrier")
            self.stamp()
            a(f"s_cmp_lg_u32 {sL}, 0\ns_cbranch_scc1 .Ls2a")
            for t in range(o["kbpre"], 4): self.job(t, sBoff, sLDSW)
            L = self.only_wave(1); self.call("sub_repair"); a.label(L)
            a("s_branch .Ls2b")
            a.label(".Ls2a")
            a(f"s_cmp_eq_u32 {sL}, 3\ns_cbranch_scc1 .Ls2b\ns_call_b64 s[0:1], .Ljobs")
            a.label(".Ls2b")
            a(f"""s_cmp_lt_u32 {sCB}, 14
            s_cbranch_scc0 .Lloader
            s_cmp_lg_u32 {sL}, 3
            s_cbranch_scc1 .Ls2
            s_cmp_lg_u32 {sG}, 0
            s_cbranch_scc1 .Lfin""")
            a.label(".Ls2")
            self.s2()
            a(f"""s_cbranch_scc1 .Lout
            v_perm_b32 v44, v40, v41, {sSELLO}
            v_perm_b32 v45, v40, v41, {sSELHI}
            s_cmp_eq_u32 {sFAST}, 1
            s_mov_b32 exec_lo, 0xff
            s_mov_b32 exec_hi, 0xff""")
            self.local_store(f"buffer_store_dwordx2 v[44:45], v43, {WS}, {sXSo} offen")
            a(f"""s_mov_b64 exec, -1
            ds_write_b32 v3, v40
            s_cmp_eq_u32 {sWAVE}, 0
            s_cbranch_scc1 .Ls3
            s_waitcnt lgkmcnt(0)
            s_branch .Lloader""")
        self.ool.insert(0, s2cu)
        self.stamp()
        self.s3()
        a(f"""s_cmp_eq_u32 s2, 0
        s_cbranch_scc1 .Lret
        s_cmp_eq_u32 {sFAST}, 1
        s_mov_b32 exec_lo, {sT}
        s_mov_b32 exec_hi, {sT}""")
        self.local_store(f"buffer_store_dwordx4 v[40:43], v48, {WS}, {sQSP} offen")
        a("s_mov_b64 exec, -1")
        self.stamp()
        def shadow():
            self.consts()
            a(f"v_add_u32 v51, {L_Q}, v1")
            self.cinit(); self.advance()
        self.poll([f"buffer_load_dwordx4 v[40:43], v50, {XI}, 0 offen sc1", f"buffer_load_dwordx4 v[44:47], v50, {XI}, 0 offen offset:16 sc1"],
                  [self.q_check()], ["v48"], shadow=shadow)
        for i in range(4): a(f"v_perm_b32 v{40+i}, v{41+2*i}, v{40+2*i}, {sSELHI}")
        a(f"ds_write_b128 v51, v[40:43]\ns_cmp_eq_u32 {sL}, 2\ns_waitcnt lgkmcnt(0)")
        a.label(".Lqready")
        a("s_barrier")
        if self.stamps: self.stamp(); a(f"s_cmp_eq_u32 {sL}, 2")
        a(f"s_cbranch_scc1 .LlayerA\ns_cmp_eq_u32 {sL}, 1\ns_cbranch_scc1 .Llayer1")
        a.label(".Llayer3")
        self.qk2(); self.ldwo()
        self.pv([(t, r) for t in range(2) for r in range(4)], 0, 8, prologue=True)
        a("s_cmp_eq_u32 s2, 2\ns_cbranch_scc0 .Lchain")
        a.label(".Lret"); self.ret()
        a.label(".Llayer1")
        self.qkb()
        a("s_waitcnt vmcnt(0)\ns_barrier")
        a.label("sub_pvlds"); self.pvlds(); self.retif0(); self.ldwo()
        a("s_branch .Lchain")
        a.label(".Lloader")
        a(f"s_cmp_eq_u32 {sL}, 3\ns_cbranch_scc1 .Lfin")
        self.setw(); self.consts()
        a(f"s_cmp_ge_u32 {sC}, 28\ns_cbranch_scc1 .Lld_pre\ns_cmp_lg_u32 {sL}, 0\ns_cbranch_scc1 .Lld_n0")
        a(f"""v_mov_b32 v44, {L_ML + 80}
        ds_read_b32 v45, v44
        s_waitcnt lgkmcnt(0)
        v_readfirstlane_b32 s0, v45
        s_lshl_b32 s1, {sWAVE}, 18
        s_sub_u32 s1, {sBoff}, s1""")
        def own(jn):
            L = a.newlabel("jo"); a(f"s_cmp_gt_u32 {sVB}, {jn}\ns_cbranch_scc1 {L}"); self.job(jn, sBoff, sLDSW); a.label(L)
        def w0s(jn, w):
            L = self.only_wave(w); a(f"s_cmp_gt_u32 s0, {jn}\ns_cbranch_scc1 {L}"); self.job(jn, "s1", 0); a.label(L)
        if o["kbpre"] < 1: own(0); w0s(0, 1)
        if o["kbpre"] < 2: own(1); w0s(1, 2)
        own(2); w0s(2, 3); w0s(3, 2)
        L = self.only_wave(1); self.call("sub_repair"); a.label(L)
        a(f"s_cmp_gt_u32 {sVB}, 3\ns_cbranch_scc1 .Lld_pre")
        own(3)
        a("s_waitcnt vmcnt(6)\ns_branch .Lld_done" if o["kbpre"] < 2 else "s_branch .Lld_done")
        a.label(".Lld_pre")
        a("s_waitcnt vmcnt(0)\ns_branch .Lld_done" if o["kbpre"] < 2 else "s_branch .Lld_done")
        a.label(".Lld_n0")
        a("s_call_b64 s[0:1], .Ljobs")
        a.label(".Lld_done")
        self.cinit()
        self.stamp(); self.stamp()
        self.advance()
        a(f"s_cmp_eq_u32 {sL}, 2\ns_branch .Lqready")
        a.label(".Ljobs")
        a(f"s_cmp_eq_u32 {sL}, 1\ns_cbranch_scc1 .Lld_1")
        self.call("sub_breg")
        a("s_waitcnt lgkmcnt(0)\ns_setpc_b64 s[0:1]")
        a.label(".Lld_1")
        L = self.only_wave(1); self.call("sub_repair"); a("s_waitcnt vmcnt(0)"); a.label(L)
        L = self.only_wave(2)
        a("s_mov_b32 s2, 2")
        self.call(".Llayer3"); self.call("sub_pv67a")
        a("s_mov_b32 s2, 1\ns_waitcnt vmcnt(0) lgkmcnt(0)\ns_nop 7")
        a.label(L)
        a("s_setpc_b64 s[0:1]")
        a.label(".Lout")
        a(f"""s_mov_b32 s36, s48
        s_mov_b32 s37, s49
        s_mov_b32 s38, 896
        s_mov_b32 exec_lo, 0xff
        s_mov_b32 exec_hi, 0xff
        buffer_store_dword v40, v42, {XI}, 0 offen
        s_mov_b64 exec, 1
        s_cmp_lg_u32 {sCB}, 0
        s_cbranch_scc1 .Lnoep
        v_mov_b32 v43, {EPOCH}
        buffer_store_dword v41, v43, {WS}, 0 offen""")
        a.label(".Lnoep")
        a("s_mov_b64 exec, -1")
        a.label(".Lfin")
        if self.stamps:
            a(f"s_mov_b32 {sT5}, {NSTAMP-1}")
            self.stamp(True)
            a(f"""s_lshl_b32 {sT}, {sC}, 3
            s_add_u32 {sT}, {sT}, {sG}
            s_lshl_b32 {sT}, {sT}, 2
            s_add_u32 {sT}, {sT}, {sWAVE}
            s_mul_i32 {sT}, {sT}, {NSTAMP*8}
            s_add_u32 {sT}, {sT}, {STAMP}
            v_mov_b32 v8, 0""")
            for i in range(NSTAMP):
                a(f"v_mov_b32 v10, s{ST0+i}\nv_mov_b32 v11, 0\nbuffer_store_dwordx2 v[10:11], v8, {WS}, {sT} offen offset:{i*8}\ns_nop 1")
        a.label(".Lend")
        a("s_endpgm")
        k = 0
        while k < len(self.ool): self.ool[k](); k += 1
        self.subs_mem(); self.sub_g0()
        return "\n".join(l.rstrip() for l in wrap(a.text()).split("\n"))

if __name__ == "__main__":
    open("m_a.s", "w").write(G(stamps=(0, 1)).build())
    open("m_d.s", "w").write(G(stamps=(2, 3), pst=1).build())
    open("m.s", "w").write(G().build())
```

```python
import sys, struct
from asmlib import *

BLK = 0x100000
REC = 0
YX  = 0x80000
LAM = 0xC0000
XS  = 0xC2000
QS  = 0xC8000
XCCS = 0xCC000
EPOCH = 0xD0000
STAMP = 0x600000
WS_SIZE = 0x800000
L_KB = 0
L_BB = 65536
L_WQA = 131072
L_WQB = L_WQA + 14336
L_ML = L_WQB + 14336
L_Q = L_ML + 128
L_YP = L_Q + 1024
L_SCR = L_YP + 512
L_Z = L_SCR + 256
L_XO = L_Z + 512
LDS_TOTAL = 163840
assert L_XO + 1024 <= LDS_TOTAL
SCALE = 0.0625 * 1.4426950408889634
STEP = 0x01010101
def f2u(x): return struct.unpack("<I", struct.pack("<f", x))[0]

sWAVE, sG, sC = "s3", "s4", "s5"
sSELLO, sSELHI = "s6", "s7"
KA, VA, KBs, VBs, WS, RL, WO, XI = "s[8:11]", "s[12:15]", "s[16:19]", "s[20:23]", "s[24:27]", "s[28:31]", "s[32:35]", "s[36:39]"
EXS = "s[40:41]"
sRS, sRL, sWQ, sONES = "s50", "s51", "s52", "s53"
sAoff, sBoff, sT, sSC, sFAST, sL = "s54", "s55", "s56", "s57", "s58", "s59"
sT2, sT3, sSPIN, sLDSW = "s60", "s61", "s62", "s63"
RET = "s[64:65]"
sPV, sT4, sT5 = "s66", "s67", "s68"
sRECP, sLAMP, sLAMG, sYXP, sYXG, sYXG2, sXSo, sQSG, sQSP = ["s%d" % i for i in range(69, 78)]
sRECG = ["s78", "s79", "s80", "s81"]
sWOr = ["s82", "s83", "s84", "s85"]
sH0, sH1, sCB, sVB, sN = "s86", "s87", "s88", "s89", "s90"
ST0, NSTAMP = 91, 11
TILE = 1048576
vNM, vL, vPM = "v60", "v61", "v62"
DPPALL = "row_mask:0xf bank_mask:0xf"
ACC = 16
def kimm(n): return (n & 1) * 1024 + (n >> 1) * 128
def vimm(n): return (n >> 1) * 512 + (n & 1) * 256

class G:
    def __init__(self, stamps=None, **opt):
        self.a = Asm(); self.stamps = stamps; self.vm = 0; self.ool = []
        self.o = dict(g0=5, gw=3, wob=1, s2pre=3, thr=8, kbpre=0, dry=0, pA="nt", pXY="", pXY2="", pB="nt", pWT="", pWQ="nt")
        self.o.update(opt)
    def stamp(self, always=False):
        if not self.stamps: return
        a = self.a; L = a.newlabel("st")
        if not always:
            a(f"s_cmp_lt_u32 {sL}, {self.stamps[0]}\ns_cbranch_scc1 {L}\ns_cmp_gt_u32 {sL}, {self.stamps[1]}\ns_cbranch_scc1 {L}")
        a(f"s_cmp_ge_u32 {sT5}, {NSTAMP}\ns_cbranch_scc1 {L}")
        a(f"s_memrealtime s[0:1]\ns_mov_b32 m0, {sT5}\ns_waitcnt lgkmcnt(0)\ns_movreld_b32 s{ST0}, s0\ns_add_u32 {sT5}, {sT5}, 1")
        a.label(L)
    def vmem(self, ins): self.a(ins); self.vm += 1; return self.vm
    def waitvm(self, tok):
        n = self.vm - tok
        if n <= 63: self.a(f"s_waitcnt vmcnt({n})")
    def call(self, name): self.a(f"s_call_b64 {RET}, {name}")
    def ret(self): self.a(f"s_setpc_b64 {RET}")
    def only_wave(self, w):
        L = self.a.newlabel("ow"); self.a(f"s_cmp_lg_u32 {sWAVE}, {w}\ns_cbranch_scc1 {L}"); return L
    def retif0(self): self.a(f"s_cmp_eq_u32 {sL}, 0\ns_cbranch_scc1 .Lret")
    def local_store(self, ins):
        a = self.a; Ls, Lb = a.newlabel("ss"), a.newlabel("sb")
        a(f"s_cbranch_scc0 {Ls}\n{ins}"); a.label(Lb)
        self.ool.append(lambda: (a.label(Ls), a(f"{ins} sc1\ns_branch {Lb}")))
    def validate(self, groups, tmp):
        a = self.a; accs = []
        for gi, (mask, items, inplace) in enumerate(groups):
            t = tmp[gi]
            if inplace:
                for r, tg in items: a(f"v_xor_b32 {r}, {tg}, {r}")
                rs = [r for r, _ in items]
                if len(rs) == 1: accs.append(rs[0]); continue
                if len(rs) == 2: a(f"v_or_b32 {t}, {rs[0]}, {rs[1]}")
                else:
                    a(f"v_or3_b32 {t}, {rs[0]}, {rs[1]}, {rs[2]}"); k = 3
                    while k < len(rs):
                        if k + 1 < len(rs): a(f"v_or3_b32 {t}, {t}, {rs[k]}, {rs[k+1]}"); k += 2
                        else: a(f"v_or_b32 {t}, {t}, {rs[k]}"); k += 1
            else:
                a(f"v_xor_b32 {t}, {items[0][1]}, {items[0][0]}")
                for r, tg in items[1:]: a(f"v_bitop3_b32 {t}, {t}, {r}, {tg} bitop3:0xf6")
            if mask != 0xffffffff: a(f"v_and_b32 {t}, {hex(mask)}, {t}")
            accs.append(t)
        for t in accs[1:]: a(f"v_or_b32 {accs[0]}, {accs[0]}, {t}")
        a(f"v_cmp_ne_u32 vcc, 0, {accs[0]}")
    def poll(self, loads, groups, tmp, shadow=None, lanemask=None, hook=None, mid=None):
        a = self.a
        Lr, Ld, Lw = a.newlabel("pr"), a.newlabel("pd"), a.newlabel("pw")
        for l in loads: a(l)
        if shadow: shadow()
        if lanemask is not None: a(f"s_mov_b32 exec_lo, {hex(lanemask)}\ns_mov_b32 exec_hi, {hex(lanemask)}")
        if mid: a(f"s_mov_b64 {EXS}, -1")
        a.label(Lw)
        if mid:
            a(f"s_waitcnt vmcnt({len(loads)-1})"); mid(); a(f"s_mov_b64 exec, {EXS}")
        a("s_waitcnt vmcnt(0)")
        self.validate(groups, tmp)
        a(f"s_cbranch_vccnz {Lr}")
        a.label(Ld)
        a("s_mov_b64 exec, -1")
        if self.o.get("pst"): self.stamp()
        def retry():
            a.label(Lr)
            if hook: hook()
            a("s_wqm_b64 exec, vcc" if groups[0][0] == 0xff else "s_mov_b64 exec, vcc")
            for l in loads: a(l)
            if mid: a(f"s_mov_b64 {EXS}, exec\ns_mov_b64 exec, -1")
            a(f"s_sub_u32 {sSPIN}, {sSPIN}, 1\ns_cbranch_scc0 {Lw}\ns_mov_b32 {sSPIN}, 0\ns_waitcnt vmcnt(0)\ns_branch {Ld}")
        self.ool.append(retry)
    def t16(self, regs): return (0xffff, [(r, sH0 if i % 2 == 0 else sH1) for i, r in enumerate(regs)], False)
    def consts(self):
        a = self.a
        a(f"""v_bfe_u32 v58, v1, 4, 4
        v_bfe_u32 v59, v1, 8, 2
        v_lshlrev_b32 v3, 11, v59
        v_lshl_add_u32 v3, v58, 4, v3
        v_bfe_u32 v63, v1, 5, 1
        v_lshlrev_b32 v63, 9, v63
        v_lshl_add_u32 v63, v59, 4, v63
        v_and_b32 v59, 16, v1
        v_lshl_add_u32 v63, v59, 2, v63
        v_lshrrev_b32 v58, 2, v58
        v_lshl_add_u32 v2, v58, 11, v63
        v_add_u32 v63, {L_Q}, v63
        v_mov_b32 {vPM}, 0xffff
        v_lshlrev_b32 {vPM}, v59, {vPM}""")
        for b in range(4): a(f"v_mov_b32 v{4+b}, {L_Z}")
        a("s_nop 0")
        for b in range(4): a(f"v_mov_b32_dpp v{4+b}, v63 quad_perm:[0,1,2,3] row_mask:0xf bank_mask:{hex(1<<b)}")
    def cinit(self):
        a = self.a
        a(f"v_mov_b32 v63, {hex(f2u(-1e30))}\nv_mov_b32 v{ACC}, 0\nv_mov_b32 v{ACC+8}, 0")
        a(f"v_mov_b32_dpp v{ACC}, v63 quad_perm:[0,1,2,3] row_mask:0xf bank_mask:0xc")
        a(f"v_mov_b32_dpp v{ACC+8}, v63 quad_perm:[0,1,2,3] row_mask:0xf bank_mask:0x3")
        for i in range(1, 8): a(f"v_mov_b32 v{ACC+i}, v{ACC}\nv_mov_b32 v{ACC+8+i}, v{ACC+8}")
    def advance(self):
        self.a(f"""s_add_u32 {sL}, {sL}, 1
        s_mov_b32 {sVB}, 4
        s_add_u32 {sN}, {sN}, {hex(STEP)}
        s_xor_b32 {sYXP}, {sYXP}, {BLK}
        s_xor_b32 {sYXG}, {sYXG}, {BLK}
        s_xor_b32 {sYXG2}, {sYXG2}, {BLK}""")
    def setw(self):
        self.a(f"""s_bitcmp1_b32 {sL}, 0
        s_cselect_b32 s32, s44, s46
        s_cselect_b32 s33, s45, s47
        s_cselect_b32 {sWQ}, 0, 14336
        s_add_u32 {sWQ}, {sWQ}, {L_WQA}""")
    def aoff(self, t, dst):
        self.a(f"s_add_u32 {dst}, {sG}, {t}\ns_and_b32 {dst}, {dst}, 7\ns_lshl_b32 {dst}, {dst}, 18\ns_add_u32 {dst}, {dst}, {sAoff}")
    def loadK(self, t):
        self.aoff(t, sT)
        for n in range(8): tok = self.vmem(f"buffer_load_dwordx4 a[{t*32+n*4}:{t*32+n*4+3}], v2, {KA}, {sT} offen offset:{kimm(n)} {self.o['pA']}")
        return tok
    def loadV(self, t):
        self.aoff(t, sT)
        for n in range(8):
            b = 64 + t * 32 + n * 4
            tok = self.vmem(f"buffer_load_dwordx4 v[{b}:{b+3}], v3, {VA}, {sT} offen offset:{vimm(n)} {self.o['pA']}")
        return tok
    def dma_body(self, vaddr, srd, soff, immf, pol, units=range(8), loff=0):
        for n in units:
            self.a(f"s_add_u32 m0, {sRL}, {loff + n*1024 - immf(n)}\ns_nop 0\nbuffer_load_dwordx4 {vaddr}, {srd}, {soff} offen offset:{immf(n)} {pol} lds")
    def job(self, jn, base, lds):
        self.a(f"s_mov_b32 {sRS}, {base}\ns_mov_b32 {sRL}, {lds}\ns_mov_b32 {sT4}, {jn}"); self.call("sub_job")
    def subs_mem(self):
        a = self.a; o = self.o
        a.label("sub_dmaX"); self.dma_body("v3", VA, sRS, vimm, o["pXY"]); self.ret()
        a.label("sub_job")
        a(f"""s_cmp_ge_u32 {sT4}, 2
        s_cbranch_scc1 .Ljob_v
        s_lshl_b32 {sT}, {sT4}, 20
        s_add_u32 {sRS}, {sRS}, {sT}
        s_lshl_b32 {sT}, {sT4}, 13
        s_add_u32 {sRL}, {sRL}, {sT}""")
        self.dma_body("v2", KBs, sRS, kimm, o["pB"]); self.ret()
        a.label(".Ljob_v")
        a(f"s_cmp_eq_u32 {sT4}, 2\ns_cbranch_scc0 .Ljob_v1")
        self.dma_body("v3", VBs, sRS, vimm, o["pB"], loff=L_BB); self.ret()
        a.label(".Ljob_v1")
        a(f"s_add_u32 {sRS}, {sRS}, {TILE}")
        self.dma_body("v3", VBs, sRS, vimm, o["pB"], units=range(2, 8), loff=L_BB + 8192); self.ret()
        a.label("sub_repair")
        for w in range(4):
            a(f"s_add_u32 {sRS}, {sBoff}, {TILE + (w-1)*262144}")
            for n in range(2):
                a(f"s_mov_b32 m0, {L_BB + w*16384 + 8192 + n*1024 - n*256}\ns_nop 0\nbuffer_load_dwordx4 v3, {VBs}, {sRS} offen offset:{n*256} {o['pB']} lds")
        self.ret()
        a.label("sub_breg")
        a(f"v_add_u32 v40, {sLDSW}, v1\nv_add_u32 v41, {sPV}, v1")
        for n in range(16): a(f"ds_read_b128 a[{128+4*n}:{131+4*n}], v40 offset:{n*1024}")
        for n in list(range(8)) + list(range(10, 16)): a(f"ds_read_b128 v[{64+4*n}:{67+4*n}], v41 offset:{n*1024}")
        self.ret()
        a.label("sub_wq")
        a(f"""v_lshrrev_b32 v58, 5, v1
        v_lshlrev_b32 v58, 13, v58
        v_and_b32 v59, 16, v1
        v_add_u32 v58, v58, v59
        s_lshl_b32 {sT}, {sG}, 10
        s_lshl_b32 {sT2}, {sC}, 5
        s_add_u32 {sT}, {sT}, {sT2}
        s_lshl_b32 {sT2}, {sWAVE}, 18
        s_add_u32 {sT}, {sT}, {sT2}
        s_lshl_b32 {sT2}, {sWAVE}, 10
        s_add_u32 m0, {sRL}, {sT2}""")
        for n in range(4):
            if n == 3: a(f"s_cmp_ge_u32 {sWAVE}, 2\ns_cbranch_scc1 .Lwq_end")
            a(f"s_nop 0\nbuffer_load_dwordx4 v58, {RL}, {sT} offen {o['pWQ']} lds")
            if n < 3: a(f"s_add_u32 {sT}, {sT}, {4*262144}\ns_add_u32 m0, m0, 4096")
        a.label(".Lwq_end")
        self.ret()
    def ldwo(self):
        a = self.a
        a("""v_bfe_u32 v16, v1, 4, 3
        v_bfe_u32 v17, v1, 7, 1
        v_lshl_add_u32 v16, v17, 5, v16
        v_mul_u32_u24 v16, 896, v16
        v_bfe_u32 v17, v1, 8, 2
        v_lshl_add_u32 v16, v17, 4, v16""")
        for k in range(4): a(f"buffer_load_dwordx4 v[{24+4*k}:{27+4*k}], v16, {WO}, {sWOr[k]} offen")
    def softmax(self, base, n):
        a = self.a
        sregs = [f"v{base+i}" for i in range(n)]
        for i in range(8): a(f"v_mov_b32 v{40+i}, 0")
        for i, r in enumerate(sregs):
            g = (base - 8) // 4 + i // 4; rp = i % 4
            src = ACC + 8 * g + 4 * (rp >> 1) + 2 * (rp & 1)
            a(f"v_add_f32_dpp {r}, v{src+1}, v{src} quad_perm:[1,1,3,3] {DPPALL}")
        a(f"v_max3_f32 {vNM}, {sregs[0]}, {sregs[1]}, {sregs[2]}"); k = 3
        while k < n:
            if k + 1 < n: a(f"v_max3_f32 {vNM}, {vNM}, {sregs[k]}, {sregs[k+1]}"); k += 2
            else: a(f"v_max_f32 {vNM}, {vNM}, {sregs[k]}"); k += 1
        z = iter(range(48, 60))
        def zz(k):
            for _ in range(k): a(f"v_mov_b32 v{next(z)}, 0")
        zz(2); a(f"v_max_f32_dpp {vNM}, {vNM}, {vNM} row_ror:4 {DPPALL}")
        zz(2); a(f"v_max_f32_dpp {vNM}, {vNM}, {vNM} row_ror:8 {DPPALL}")
        for sw in ("v_permlane16_swap_b32", "v_permlane32_swap_b32"):
            a(f"v_mov_b32 v63, {vNM}"); zz(2); a(f"{sw} {vNM}, v63\nv_max_f32 {vNM}, {vNM}, v63")
        a(f"v_mul_f32 {vNM}, {sSC}, {vNM}\nv_sub_f32 {vNM}, 0, {vNM}")
        for r in sregs: a(f"v_fma_f32 {r}, {r}, {sSC}, {vNM}")
        for r in sregs: a(f"v_exp_f32 {r}, {r}")
        zz(4)
        a(f"v_add_f32 {vL}, {sregs[0]}, {sregs[1]}\nv_add_f32 v63, {sregs[2]}, {sregs[3]}")
        for i in range(4, n, 2): a(f"v_add_f32 {vL}, {vL}, {sregs[i]}\nv_add_f32 v63, v63, {sregs[i+1]}")
        for r in sregs: a(f"v_cvt_pk_bf16_f32 {r}, {r}, {r}")
        a(f"v_add_f32 {vL}, {vL}, v63")
        for r in sregs: a(f"v_and_b32_dpp {r}, {r}, {vPM} quad_perm:[0,0,2,2] {DPPALL}")
    def qka(self, part):
        a = self.a; NB = 6
        seq = [(cp, 2 * p + bb) for p in range(2) for cp in range(4) for bb in range(2)]
        def rd(k):
            cp, b = seq[k]; q = 32 + 4 * (k % NB); a(f"ds_read_b128 v[{q}:{q+3}], v{4+b} offset:{cp*128}")
        if part == 0:
            for k in range(NB): rd(k)
        for k in range(8 * part, 8 * part + 8):
            cp, b = seq[k]
            issued = NB if k == 0 else min(16, NB + k - 1)
            a(f"s_waitcnt lgkmcnt({issued - k - 1})")
            q = 32 + 4 * (k % NB)
            for grp in range(2):
                for s_ in range(2):
                    t = b + 4 * grp; d = ACC + 8 * grp + 4 * s_; n = cp * 2 + s_
                    c = "0" if k == 0 else f"v[{d}:{d+3}]"
                    a(f"v_mfma_f32_16x16x32_bf16 v[{d}:{d+3}], a[{t*32+n*4}:{t*32+n*4+3}], v[{q}:{q+3}], {c}")
            if k >= 1 and k - 1 + NB < 16: rd(k - 1 + NB)
    def qk2(self):
        a = self.a
        seq = [(cp, b) for cp in range(4) for b in range(2)]
        for k, (cp, b) in enumerate(seq): a(f"ds_read_b128 v[{24+4*k}:{27+4*k}], v{4+b} offset:{cp*128}")
        for k, (cp, b) in enumerate(seq):
            a(f"s_waitcnt lgkmcnt({7-k})")
            for s_ in range(2):
                d = ACC + 4 * s_; n = cp * 2 + s_
                a(f"v_mfma_f32_16x16x32_bf16 v[{d}:{d+3}], a[{(4+b)*32+n*4}:{(4+b)*32+n*4+3}], v[{24+4*k}:{27+4*k}], v[{d}:{d+3}]")
        self.softmax(8, 4)
    def qkb(self):
        a = self.a
        kseq = [(cp, b, s_) for cp in range(4) for b in range(2) for s_ in range(2)]
        NK, NQ = 6, 5; kb = [8, 12, 16, 20, 32, 36]; order = []
        def rk(k):
            cp, b, s_ = kseq[k]; r = kb[k % NK]; a(f"ds_read_b128 v[{r}:{r+3}], v61 offset:{b*8192 + (cp*2+s_)*1024}"); order.append(("k", k))
        def rq(j):
            q = 40 + 4 * (j % NQ); a(f"ds_read_b128 v[{q}:{q+3}], v{6+(j&1)} offset:{(j>>1)*128}"); order.append(("q", j))
        a(f"v_add_u32 v61, {sLDSW}, v1")
        rq(0); rk(0); rk(1); rq(1); rk(2); rk(3); rq(2); rk(4); rk(5); rq(3); rq(4)
        for k in range(16):
            j = k >> 1
            need = max([i for i, x in enumerate(order) if x in (("q", j), ("k", k))])
            a(f"s_waitcnt lgkmcnt({len(order) - need - 1})")
            r = kb[k % NK]; q = 40 + 4 * (j % NQ); d = ACC + 8 + 4 * kseq[k][2]
            a(f"v_mfma_f32_16x16x32_bf16 v[{d}:{d+3}], v[{r}:{r+3}], v[{q}:{q+3}], v[{d}:{d+3}]")
            if k >= 1 and k - 1 + NK < 16: rk(k - 1 + NK)
            if k >= 2 and k % 2 == 0 and j - 1 + NQ < 8: rq(j - 1 + NQ)
        self.softmax(12, 4)
    def bop(self, t, r, bb):
        grp, b = t // 4, t % 4; out = []
        for tt in range(4):
            ctl = "quad_perm:[0,1,2,3]" if tt == b else (f"row_shr:{4*(tt-b)}" if tt > b else f"row_shl:{4*(b-tt)}")
            out.append(f"v_mov_b32_dpp v{bb+tt}, v{8+4*grp+r} {ctl} row_mask:0xf bank_mask:{hex(1<<tt)}")
        return out
    def srcA(self, t, r, hf):
        if t >= 6: vb = (t - 6) * 32 + (r * 2 + hf) * 4; return f"a[{vb}:{vb+3}]"
        vb = 64 + t * 32 + (r * 2 + hf) * 4; return f"v[{vb}:{vb+3}]"
    def pv(self, steps, k0, k1, prologue=False):
        a = self.a; bb = lambda k: 48 + 4 * (k % 3)
        if prologue:
            for k in range(k0, k0 + 2):
                for i in self.bop(*steps[k], bb(k)): a(i)
        for k in range(k0, k1):
            t, r = steps[k]
            nx = self.bop(*steps[k + 2], bb(k + 2)) if k + 2 < len(steps) else []
            for hf in range(2):
                a(f"v_mfma_f32_16x16x32_bf16 v[{40+4*hf}:{43+4*hf}], {self.srcA(t, r, hf)}, v[{bb(k)}:{bb(k)+3}], v[{40+4*hf}:{43+4*hf}]")
                for i in nx[2*hf:2*hf+2]: a(i)
    def pvlds(self):
        a = self.a
        a(f"v_add_u32 v63, {sPV}, v1")
        steps = [(t, r) for t in (6, 7) for r in range(4)]; bb = lambda k: 48 + 4 * (k % 3)
        def rd(k):
            t, r = steps[k]; b = 16 + 8 * (k % 3)
            for hf in range(2): a(f"ds_read_b128 v[{b+4*hf}:{b+4*hf+3}], v63 offset:{(t-6)*8192 + (r*2+hf)*1024}")
        rd(0); rd(1); rd(2)
        for k in range(2):
            for i in self.bop(*steps[k], bb(k)): a(i)
        for k in range(8):
            nx = self.bop(*steps[k + 2], bb(k + 2)) if k + 2 < 8 else []
            issued = 3 if k == 0 else min(8, k + 2)
            a(f"s_waitcnt lgkmcnt({(issued - k - 1)*2})")
            b = 16 + 8 * (k % 3)
            for hf in range(2):
                a(f"v_mfma_f32_16x16x32_bf16 v[{40+4*hf}:{43+4*hf}], v[{b+4*hf}:{b+4*hf+3}], v[{bb(k)}:{bb(k)+3}], v[{40+4*hf}:{43+4*hf}]")
                for i in nx[2*hf:2*hf+2]: a(i)
            if k >= 1 and k + 2 < 8: rd(k + 2)
    def s0(self):
        a = self.a
        a(f"""v_add_f32_dpp {vL}, {vL}, {vL} row_ror:4 {DPPALL}
        s_add_u32 {sT}, {sPV}, 8192
        v_add_u32 v58, {sT}, v1
        v_add_f32_dpp {vL}, {vL}, {vL} row_ror:8 {DPPALL}
        v_bfe_u32 v11, v1, 5, 1
        v_mov_b32 v63, {vL}
        v_lshlrev_b32 v11, 5, v11
        s_lshl_b32 {sT}, {sWAVE}, 3
        v_permlane16_swap_b32 {vL}, v63
        ds_write_b128 v58, v[40:43]
        ds_write_b128 v58, v[44:47] offset:1024
        v_add_f32 {vL}, {vL}, v63
        v_mov_b32 v63, {vL}
        s_add_u32 {sT}, {sT}, {L_ML}
        v_add_u32 v11, {sT}, v11
        v_permlane32_swap_b32 {vL}, v63
        v_add_f32 {vL}, {vL}, v63
        s_mov_b64 exec, 5
        ds_write_b64 v11, v[60:61]
        s_mov_b64 exec, -1
        v_lshlrev_b32 v56, 3, v0
        v_add_u32 v56, {L_BB + 8192}, v56
        v_bfe_u32 v10, v0, 2, 1
        v_lshlrev_b32 v11, 5, v10
        v_add_u32 v11, {L_ML}, v11
        s_waitcnt lgkmcnt(0)
        s_barrier
        ds_read_b128 v[16:19], v11
        ds_read_b128 v[20:23], v11 offset:16
        ds_read_b64 v[48:49], v56
        ds_read_b64 v[50:51], v56 offset:16384
        ds_read_b64 v[52:53], v56 offset:32768
        ds_read_b64 v[54:55], v56 offset:49152
        v_bfe_u32 v57, v0, 1, 1
        v_bfe_u32 v8, v0, 3, 2
        v_lshl_add_u32 v57, v8, 1, v57
        v_lshrrev_b32 v8, 5, v0
        v_lshlrev_b32 v9, 4, v57
        v_lshl_add_u32 v9, v8, 7, v9
        v_lshl_add_u32 v9, v10, 10, v9
        v_and_b32 v57, 3, v57
        v_lshlrev_b32 v57, 3, v57
        v_bfe_u32 v57, {sN}, v57, 8
        v_mov_b32 v8, 0xff
        s_sub_u32 {sT}, {sLAMP}, {sRECP}
        v_lshl_add_u32 v10, v10, 9, {sT}
        s_cmp_eq_u32 {sWAVE}, 0
        s_cselect_b32 {sT2}, 0x22, 0
        s_or_b32 {sT2}, {sT2}, 0x55555555
        s_waitcnt lgkmcnt(4)
        v_min3_f32 v12, v16, v18, v20
        v_min_f32 v12, v12, v22
        v_sub_f32 v16, v12, v16
        v_sub_f32 v18, v12, v18
        v_sub_f32 v20, v12, v20
        v_sub_f32 v22, v12, v22
        v_exp_f32 v16, v16
        v_exp_f32 v18, v18
        v_exp_f32 v20, v20
        v_exp_f32 v22, v22
        s_waitcnt lgkmcnt(0)
        v_mul_f32 v48, v48, v16
        v_mul_f32 v49, v49, v16
        v_fmac_f32 v48, v50, v18
        v_fmac_f32 v49, v51, v18
        v_fmac_f32 v48, v52, v20
        v_fmac_f32 v49, v53, v20
        v_fmac_f32 v48, v54, v22
        v_fmac_f32 v49, v55, v22
        v_mul_f32 v13, v16, v17
        v_fmac_f32 v13, v18, v19
        v_mov_b32_dpp v50, v48 quad_perm:[1,1,3,3] {DPPALL}
        v_mov_b32_dpp v51, v49 quad_perm:[1,1,3,3] {DPPALL}
        v_bfi_b32 v48, v8, v57, v48
        s_mov_b64 exec, 0x22
        v_fmac_f32 v13, v20, v21
        v_fma_f32 v49, v22, v23, v13
        v_mov_b32 v48, v12
        v_mov_b32 v50, {sN}
        v_mov_b32 v9, v10
        s_cmp_eq_u32 {sFAST}, 1
        s_mov_b32 exec_lo, {sT2}
        s_mov_b32 exec_hi, 0x55555555""")
        self.local_store(f"buffer_store_dwordx4 v[48:51], v9, {WS}, {sRECP} offen")
        a("s_mov_b64 exec, -1")
    def perm_inplace(self):
        a = self.a; free = 59; m = [[None] * 8, [None] * 8]
        for p in range(2):
            for w in range(4):
                A = 24 + p * 8 + w; B = A + 4
                a(f"v_perm_b32 v{free}, v{B}, v{A}, {sSELLO}\nv_perm_b32 v{A}, v{B}, v{A}, {sSELHI}")
                m[p][2 * w] = free; m[p][2 * w + 1] = A; free = B
        return m
    def early_job(self):
        a = self.a
        a(f"""s_cmp_ge_u32 {sVB}, 4
        s_cbranch_scc1 .Lev_x
        v_cmp_ne_u32 s[0:1], 0, v58
        s_nop 1
        s_bcnt1_i32_b64 {sT2}, s[0:1]
        s_cmp_lt_u32 {sT2}, {2 * self.o["thr"]}
        s_cbranch_scc1 .Lev_x
        s_mov_b64 exec, -1""")
        self.job(sVB, sBoff, sLDSW)
        a(f"s_add_u32 {sVB}, {sVB}, 1")
        a.label(".Lev_x")
    def s1(self):
        a = self.a
        a("""v_bfe_u32 v62, v1, 8, 2
        v_lshlrev_b32 v63, 7, v62
        v_and_b32 v61, 0x70, v1
        v_add_u32 v63, v63, v61
        v_lshlrev_b32 v62, 14, v62
        v_and_b32 v61, 0xf0, v1
        v_add_u32 v62, v62, v61""")
        oregs = [8, 12, 16, 20, 40, 44, 4, 52]
        loads = [f"buffer_load_dwordx3 v[56:58], v63, {WS}, {sLAMG} offen sc1"]
        for k in range(8): loads.append(f"buffer_load_dwordx4 v[{oregs[k]}:{oregs[k]+3}], v62, {WS}, {sRECG[k>>1]} offen offset:{(k&1)*2048} sc1")
        pm = []
        def shadow():
            a(f"""v_bfe_u32 v61, v1, 4, 2
            v_lshlrev_b32 v61, 3, v61
            v_bfe_u32 v61, {sN}, v61, 8
            s_waitcnt vmcnt(9)""")
            pm.append(self.perm_inplace())
        W, WL, T = "v39", "v48", "v49"
        def mid():
            a(f"""v_min_f32_dpp {W}, v56, v56 row_ror:1 {DPPALL}
            v_and_b32 v50, 0x70, v1
            v_add_u32 v51, {L_YP}, v50
            v_min_f32_dpp {W}, {W}, {W} row_ror:2 {DPPALL}
            v_lshrrev_b32 {T}, 7, v1
            v_lshl_add_u32 v50, {T}, 15, v50
            v_min_f32_dpp {W}, {W}, {W} row_ror:4 {DPPALL}
            v_mov_b32 {T}, {W}
            s_nop 1
            v_permlane16_swap_b32 {W}, {T}
            v_min_f32 {W}, {W}, {T}
            v_mov_b32 {T}, {W}
            s_nop 1
            v_permlane32_swap_b32 {W}, {T}
            v_min_f32 {W}, {W}, {T}
            v_sub_f32 {W}, {W}, v56
            v_exp_f32 {W}, {W}
            s_nop 0
            v_mul_f32 {WL}, {W}, v57""")
        self.poll(loads, [(0xff, [(f"v{o_}", "v61") for o_ in oregs], True), (0xffffffff, [("v58", sN)], True)], ["v60", None],
                  shadow=shadow, hook=self.early_job if self.o.get("thr") else None, mid=mid)
        m = pm[0]
        wsum = [f"v_add_f32_dpp {WL}, {WL}, {WL} row_ror:1 {DPPALL}", f"v_add_f32_dpp {WL}, {WL}, {WL} row_ror:2 {DPPALL}",
                f"v_add_f32_dpp {WL}, {WL}, {WL} row_ror:4 {DPPALL}\nv_mov_b32 {T}, {WL}",
                f"v_permlane16_swap_b32 {WL}, {T}\nv_add_f32 {WL}, {WL}, {T}\nv_mov_b32 {T}, {WL}",
                f"v_permlane32_swap_b32 {WL}, {T}\nv_add_f32 {WL}, {WL}, {T}", f"v_rcp_f32 {WL}, {WL}", "", ""]
        for k in range(8):
            for i in (0, 2, 1, 3):
                if k == 0: a(f"v_mul_f32_dpp v{8+i}, {W}, v{8+i} row_newbcast:0 {DPPALL}")
                else: a(f"v_fmac_f32_dpp v{8+i}, {W}, v{oregs[k]+i} row_newbcast:{k} {DPPALL}")
            if wsum[k]: a(wsum[k])
        a(f"""v_permlane32_swap_b32 v8, v10
        s_lshl_b32 {sT}, {sWAVE}, 7
        v_permlane32_swap_b32 v9, v11
        v_add_f32 v8, v8, v10
        v_add_f32 v9, v9, v11
        v_mov_b32 v10, v8
        v_mov_b32 v11, v9
        s_add_u32 {sT}, {sT}, {L_YP}
        v_permlane16_swap_b32 v8, v10
        v_permlane16_swap_b32 v9, v11
        v_add_f32 v8, v8, v10
        v_add_f32 v9, v9, v11
        v_mul_f32 v8, v8, {WL}
        v_mul_f32 v9, v9, {WL}
        v_cvt_pk_bf16_f32 v8, v8, v9
        v_mov_b32 v9, v8
        v_lshrrev_b32 {T}, 6, v1
        v_lshl_add_u32 {T}, {T}, 3, {sT}
        v_permlane32_swap_b32 v8, v9""")
        for k in range(8): a(f"v_dot2_f32_bf16 v{40+k}, v{m[0][k]}, v8, 0")
        for k in range(8): a(f"v_dot2_f32_bf16 v{40+k}, v{m[1][k]}, v9, v{40+k}")
        for k in range(4): a(f"v_add_f32_dpp v{40+k}, v{40+k}, v{40+k} row_ror:8 row_mask:0xf bank_mask:0x3")
        for k in range(4): a(f"v_add_f32_dpp v{40+k}, v{44+k}, v{44+k} row_ror:8 row_mask:0xf bank_mask:0xc")
        for k in range(2): a(f"v_add_f32_dpp v{40+k}, v{40+k}, v{40+k} row_shl:4 row_mask:0xf bank_mask:0x5")
        for k in range(2): a(f"v_add_f32_dpp v{40+k}, v{42+k}, v{42+k} row_shr:4 row_mask:0xf bank_mask:0xa")
        a(f"v_mov_b32 v2, {L_ML + 80}")
        for k in range(2): a(f"v_add_f32_dpp v{40+k}, v{40+k}, v{40+k} quad_perm:[2,3,0,1] {DPPALL}")
        a(f"s_cmp_lg_u32 {sWAVE}, 0")
        for k in range(2): a(f"v_add_f32_dpp v{40+k}, v{40+k}, v{40+k} quad_perm:[1,0,3,2] {DPPALL}")
        a(f"""ds_write_b64 {T}, v[40:41]
        s_cbranch_scc1 .Ls1_other
        v_mov_b32 v3, {sVB}
        ds_write_b32 v2, v3
        v_mov_b32 v48, 0xff
        s_cmp_eq_u32 {sL}, 3
        s_waitcnt lgkmcnt(0)
        s_barrier
        ds_read_b128 v[8:11], v51
        ds_read_b128 v[12:15], v51 offset:128
        ds_read_b128 v[16:19], v51 offset:256
        ds_read_b128 v[20:23], v51 offset:384
        s_cselect_b64 exec, 0xff, -1
        s_waitcnt lgkmcnt(2)""")
        for i in range(4): a(f"v_add_f32 v{8+i}, v{8+i}, v{12+i}")
        a("s_waitcnt lgkmcnt(0)")
        for i in range(4): a(f"v_add_f32 v{16+i}, v{16+i}, v{20+i}")
        for i in range(4): a(f"v_add_f32 v{8+i}, v{8+i}, v{16+i}")
        a(f"v_bfi_b32 v8, v48, v61, v8\nbuffer_store_dwordx4 v[8:11], v50, {WS}, {sYXP} offen sc1\ns_mov_b64 exec, -1")
        def other():
            a.label(".Ls1_other"); a("s_waitcnt lgkmcnt(0)\ns_barrier"); self.stamp(); a("s_branch .Lloader")
        self.ool.append(other)
    def wbuf(self, kk): return 8 + 4 * kk if kk < 8 else (56 + 4 * (kk - 8) if kk < 10 else 8 + 4 * (kk - 10))
    def s3addr(self, oob):
        self.a(f"""v_bfe_u32 v6, v1, 8, 2
        v_mul_u32_u24 v7, 448, v6
        v_mul_u32_u24 v6, 3584, v6
        v_bfe_u32 v4, v1, 4, 4
        v_lshl_add_u32 v6, v4, 3, v6
        v_add_u32 v6, {sWQ}, v6
        v_lshl_add_u32 v7, v4, 5, v7
        v_cmp_gt_u32 vcc, 14, v4
        v_mov_b32 v4, {oob}
        s_nop 0
        v_cndmask_b32 v7, v4, v7, vcc""")
    def s3w(self):
        for kk in range(10):
            b = self.wbuf(kk)
            self.a(f"ds_read_b64_tr_b16 v[{b}:{b+1}], v6 offset:{kk*256}\nds_read_b64_tr_b16 v[{b+2}:{b+3}], v6 offset:{kk*256+128}")
    def w0prep(self):
        self.setw()
        self.a(f"""s_and_b32 {sH0}, {sN}, 0xffff
        s_lshr_b32 {sH1}, {sN}, 16
        s_add_u32 s36, s24, {sXSo}
        s_addc_u32 s37, s25, 0
        s_mov_b32 s38, {QS - XS + 2048}""")
        self.s3addr(0x10000); self.s3w()
    def s2(self):
        a = self.a
        a("v_lshrrev_b32 v2, 7, v1\nv_mul_u32_u24 v2, 1792, v2\nv_and_b32 v3, 0x70, v1\nv_add_u32 v2, v2, v3")
        def shadow():
            a(f"""v_lshrrev_b32 v42, 1, v3
            v_lshrrev_b32 v3, 9, v1
            v_lshl_add_u32 v42, v3, 2, v42
            s_lshl_b32 {sT2}, {sCB}, 6
            v_add_u32 v42, {sT2}, v42
            v_lshlrev_b32 v43, 1, v42
            v_lshrrev_b32 v3, 2, v1
            s_lshl_b32 {sT2}, {sWAVE}, 8
            s_add_u32 {sT2}, {sT2}, {L_XO}
            v_add_u32 v3, {sT2}, v3
            ds_read_b32 v52, v3
            v_bfe_u32 v5, v1, 4, 2
            v_lshlrev_b32 v5, 3, v5
            v_bfe_u32 v5, {sN}, v5, 8
            v_mov_b32 v41, {sN}
            s_waitcnt lgkmcnt(0)
            v_lshlrev_b32 v53, 16, v52
            v_and_b32 v52, 0xffff0000, v52""")
            self.w0prep()
        self.poll([f"buffer_load_dwordx4 v[44:47], v2, {WS}, {sYXG} offen sc1", f"buffer_load_dwordx4 v[48:51], v2, {WS}, {sYXG2} offen sc1"],
                  [(0xff, [("v44", "v5"), ("v48", "v5")], True)], ["v4"], shadow=shadow)
        a(f"""v_add_f32 v44, v44, v48
        v_add_f32 v46, v46, v50
        v_add_f32 v45, v45, v49
        v_add_f32 v47, v47, v51
        v_permlane32_swap_b32 v44, v46
        s_cmp_eq_u32 {sL}, 3
        v_permlane32_swap_b32 v45, v47
        v_add_f32 v44, v44, v46
        v_add_f32 v45, v45, v47
        s_nop 0
        v_add_f32_dpp v44, v44, v44 row_ror:8 {DPPALL}
        v_add_f32_dpp v45, v45, v45 row_ror:8 {DPPALL}
        v_mov_b32 v46, v44
        v_mov_b32 v47, v45
        s_nop 0
        v_permlane16_swap_b32 v44, v46
        v_permlane16_swap_b32 v45, v47
        v_add_f32 v44, v44, v46
        v_add_f32 v45, v45, v47
        v_cvt_pk_bf16_f32 v44, v44, v45
        v_and_b32 v45, 0xffff0000, v44
        v_lshlrev_b32 v44, 16, v44
        v_add_f32 v44, v44, v53
        v_add_f32 v45, v45, v52
        v_cvt_pk_bf16_f32 v40, v44, v45""")
    def s3(self):
        a = self.a
        self.poll([f"buffer_load_dwordx4 v[44:47], v7, {XI}, 0 offen sc1", f"buffer_load_dwordx4 v[48:51], v7, {XI}, 0 offen offset:16 sc1"],
                  [self.t16([f"v{44+i}" for i in range(8)])], ["v40"], lanemask=0x3fff3fff)
        for i in range(4): a(f"v_perm_b32 v{40+i}, v{45+2*i}, v{44+2*i}, {sSELHI}")
        if self.o.get("help"): a(f"v_mov_b32 v2, {L_ML + 68}\nds_write_b32 v2, v2")
        a.label("sub_s3b")
        for i in range(8): a(f"v_mov_b32 v{44+i}, {sONES}")
        a("s_waitcnt lgkmcnt(0)")
        def bc(kk):
            bb = 44 + 4 * (kk & 1)
            for i in (0, 2): a(f"v_mov_b64_dpp v[{bb+i}:{bb+i+1}], v[{40+i}:{41+i}] row_newbcast:{kk} row_mask:0xf bank_mask:0x3")
        S, Q2, T1, T2 = "v2", "v3", "v4", "v5"
        st = [[f"v_dot2_f32_bf16 {S}, v40, {sONES}, 0", f"v_dot2_f32_bf16 {Q2}, v40, v40, 0", f"v_dot2_f32_bf16 {S}, v41, {sONES}, {S}", f"v_dot2_f32_bf16 {Q2}, v41, v41, {Q2}"],
              [f"v_dot2_f32_bf16 {S}, v42, {sONES}, {S}", f"v_dot2_f32_bf16 {Q2}, v42, v42, {Q2}", f"v_dot2_f32_bf16 {S}, v43, {sONES}, {S}", f"v_dot2_f32_bf16 {Q2}, v43, v43, {Q2}"]]
        for ctl in ["row_ror:8", "row_ror:4", "row_ror:2", "row_ror:1"]:
            st.append([f"v_add_f32_dpp {S}, {S}, {S} {ctl} {DPPALL}", f"v_add_f32_dpp {Q2}, {Q2}, {Q2} {ctl} {DPPALL}"])
        st[-1] += [f"v_mov_b32 {T1}, {S}", f"v_mov_b32 {T2}, {Q2}"]
        st.append([f"v_permlane16_swap_b32 {S}, {T1}", f"v_permlane16_swap_b32 {Q2}, {T2}", f"v_add_f32 {S}, {S}, {T1}", f"v_add_f32 {Q2}, {Q2}, {T2}", f"v_mov_b32 {T1}, {S}", f"v_mov_b32 {T2}, {Q2}"])
        st.append([f"v_permlane32_swap_b32 {S}, {T1}", f"v_permlane32_swap_b32 {Q2}, {T2}", f"v_add_f32 {S}, {S}, {T1}", f"v_add_f32 {Q2}, {Q2}, {T2}"])
        st.append([f"v_mul_f32 {S}, {hex(f2u(1.0/448))}, {S}", f"v_mul_f32 {Q2}, {hex(f2u(1.0/448))}, {Q2}", f"v_fma_f32 {Q2}, -{S}, {S}, {Q2}"])
        st.append([f"v_max_f32 {Q2}, 0, {Q2}", f"v_add_f32 {Q2}, {hex(f2u(1e-5))}, {Q2}", f"v_rsq_f32 {Q2}, {Q2}"])
        st.append([f"v_mul_f32 {S}, {S}, {Q2}"])
        bc(0)
        for kk in range(14):
            if kk + 1 < 14: bc(kk + 1)
            else: a("s_nop 1")
            if kk >= 10: a(f"s_waitcnt lgkmcnt({(13-kk)*2})")
            b = self.wbuf(kk); bb = 44 + 4 * (kk & 1)
            a(f"v_mfma_f32_16x16x32_bf16 v[52:55], v[{b}:{b+3}], v[{bb}:{bb+3}], {'0' if kk == 0 else 'v[52:55]'}")
            if 1 <= kk <= 4:
                k2 = kk + 9; b2 = self.wbuf(k2)
                a(f"ds_read_b64_tr_b16 v[{b2}:{b2+1}], v6 offset:{k2*256}\nds_read_b64_tr_b16 v[{b2+2}:{b2+3}], v6 offset:{k2*256+128}")
            if kk < len(st):
                for i in st[kk]: a(i)
        a(f"""v_lshrrev_b32 v48, 4, v1
        v_mov_b32 v49, {sN}
        v_lshlrev_b32 v50, 1, v1
        v_add_u32 v50, {QS - XS}, v50
        s_mov_b32 {sT}, 0x10001
        s_nop 2""")
        for i in range(4): a(f"v_mul_f32_dpp v{44+i}, v{52+i}, {S} row_shl:8 {DPPALL}")
        for i in range(4): a(f"v_fma_f32 v{52+i}, v{52+i}, {Q2}, -v{44+i}")
        a(f"""v_cvt_pk_bf16_f32 v52, v52, v53
        v_cvt_pk_bf16_f32 v53, v54, v55
        v_perm_b32 v40, v52, v49, {sSELLO}
        v_perm_b32 v41, v52, v49, {sSELHI}
        v_perm_b32 v42, v53, v49, {sSELLO}
        v_perm_b32 v43, v53, v49, {sSELHI}""")
    def q_check(self): return self.t16(["v40", "v41", "v44", "v45"])
    def sub_g0(self):
        a = self.a
        a.label("sub_g0issue")
        a(f"""s_add_u32 {sT4}, {sQSG}, {XCCS - QS}
        v_and_b32 v52, 0x1ff, v1
        v_lshlrev_b32 v49, 1, v1
        buffer_load_dwordx2 v[50:51], v52, {WS}, {sT4} offen sc1
        buffer_load_dwordx4 v[40:43], v49, {WS}, {sQSG} offen sc1
        buffer_load_dwordx4 v[44:47], v49, {WS}, {sQSG} offen offset:16 sc1""")
        self.ret()
        a.label("sub_g0check")
        self.validate([self.q_check(), (0xffffffff, [("v51", sN)], True)], ["v48", None])
        a(f"s_cbranch_vccz .Lg0ok\ns_cmp_eq_u32 {sSPIN}, 0\ns_cbranch_scc1 .Lg0bail\ns_sub_u32 {sSPIN}, {sSPIN}, 1")
        self.ret()
        a.label(".Lg0ok")
        a(f"""s_getreg_b32 {sT2}, hwreg(HW_REG_XCC_ID, 0, 4)
        v_cmp_ne_u32 vcc, {sT2}, v50
        s_nop 1
        s_cmp_eq_u64 vcc, 0
        s_cselect_b32 {sFAST}, 1, 0""")
        a.label(".Lg0bail")
        for i in range(4): a(f"v_perm_b32 v{40+i}, v{41+2*i}, v{40+2*i}, {sSELHI}")
        a(f"""v_add_u32 v48, {L_Q}, v1
        ds_write_b128 v48, v[40:43]
        s_add_u32 {sT}, {sFAST}, 1
        v_mov_b32 v50, {sT}
        v_mov_b32 v53, {L_ML + 64}
        s_waitcnt lgkmcnt(0)
        ds_write_b32 v53, v50
        s_mov_b32 s2, 1""")
        self.ret()

    def prologue(self):
        a = self.a; o = self.o
        a(f"""s_cmp_ge_u32 s2, 256
        s_cbranch_scc1 .Lend
        s_load_dwordx16 s[64:79], s[0:1], 0
        s_load_dwordx8 s[80:87], s[0:1], 64
        s_load_dwordx2 s[88:89], s[0:1], 96
        {"s_memrealtime s[94:95]" if self.stamps else ""}
        v_lshrrev_b32 v1, 6, v0
        s_and_b32 {sG}, s2, 7
        v_readfirstlane_b32 {sWAVE}, v1
        s_lshr_b32 {sC}, s2, 3
        v_and_b32 v1, 63, v0
        v_lshlrev_b32 v1, 4, v1
        s_mov_b32 {sSELLO}, 0x05040100
        s_mov_b32 {sSELHI}, 0x07060302
        s_mov_b32 {sSC}, {hex(f2u(SCALE))}
        s_mov_b32 {sONES}, 0x3f803f80
        s_mov_b32 {sSPIN}, 0x40000
        s_mov_b32 {sFAST}, 0
        s_mov_b32 {sL}, 0
        s_mov_b32 {sWQ}, {L_WQA}
        s_lshl_b32 {sLDSW}, {sWAVE}, 14
        s_lshl_b32 {sAoff}, {sG}, 23
        s_lshl_b32 {sT}, {sC}, 13
        s_add_u32 {sAoff}, {sAoff}, {sT}
        s_add_u32 {sBoff}, {sAoff}, {12288*512}
        s_lshl_b32 {sT}, {sWAVE}, 21
        s_add_u32 {sAoff}, {sAoff}, {sT}
        s_lshl_b32 {sT}, {sWAVE}, 18
        s_add_u32 {sBoff}, {sBoff}, {sT}""")
        self.consts()
        a("s_waitcnt lgkmcnt(0)")
        def srd(d, lo, size): a(f"s_mov_b32 s{d}, s{lo}\ns_mov_b32 s{d+1}, s{lo+1}\ns_mov_b32 s{d+2}, {hex(size)}\ns_mov_b32 s{d+3}, 0x20000")
        a(f"s_load_dword {sN}, s[88:89], {EPOCH}")
        srd(28, 70, 3670016); srd(32, 72, 3670016); srd(36, 64, 896)
        a(f"""s_cmp_eq_u32 {sWAVE}, 1
        s_cselect_b32 s28, s80, s28
        s_cselect_b32 s29, s81, s29
        s_cmp_eq_u32 {sWAVE}, 3
        s_cselect_b32 s32, s82, s32
        s_cselect_b32 s33, s83, s33
        s_mov_b32 m0, {L_SCR}
        s_cmp_ge_u32 {sWAVE}, 2
        s_cbranch_scc1 .Lst_wo
        {"s_branch .Lst_j" if o.get("notwq") == 2 else ("s_cmp_eq_u32 " + sWAVE + ", 0" + chr(10) + "s_cbranch_scc1 .Lst_j" if o.get("notwq") == 1 else "")}
        v_lshrrev_b32 v58, 7, v1
        v_lshlrev_b32 v58, 13, v58
        v_and_b32 v59, 0x70, v1
        v_lshl_add_u32 v58, v59, 3, v58
        s_lshl_b32 {sT}, {sG}, 10
        s_mul_i32 {sT2}, {sC}, {14*8192}
        s_add_u32 {sT}, {sT}, {sT2}
        s_add_u32 {sT2}, {sT}, {6*8192}
        buffer_load_dword v58, {RL}, {sT} offen {o['pWT']} lds
        buffer_load_dword v58, {RL}, {sT2} offen {o['pWT']} lds
        s_branch .Lst_j""")
        a.label(".Lst_wo")
        if o.get("wob"): a(f"s_cmp_eq_u32 {sWAVE}, 3\ns_cbranch_scc1 .Lst_j")
        a(f"""v_lshlrev_b32 v58, 3, v1
        s_lshl_b32 {sT2}, {sG}, 5
        s_add_u32 {sT2}, {sT2}, {sC}
        s_mul_i32 {sT2}, {sT2}, 14336
        s_add_u32 {sT3}, {sT2}, 6144
        buffer_load_dword v58, {WO}, {sT2} offen lds
        buffer_load_dword v58, {WO}, {sT3} offen lds""")
        a.label(".Lst_j")
        a(f"s_mov_b64 s[28:29], s[70:71]\ns_mov_b32 {sRL}, {L_WQA}")
        self.call("sub_wq")
        L = self.only_wave(0)
        self.s3addr(0x1000)
        a(f"v_lshrrev_b32 v47, 1, v7\nbuffer_load_dwordx4 v[40:43], v47, {XI}, 0 offen")
        a.label(L)
        a(f"""v_and_b32 v48, 0x70, v1
        v_lshrrev_b32 v48, 1, v48
        v_lshrrev_b32 v49, 9, v1
        v_lshl_add_u32 v48, v49, 2, v48
        s_sub_u32 {sT2}, {sC}, 28
        s_lshl_b32 {sT2}, {sT2}, 2
        s_add_u32 {sT2}, {sT2}, {sWAVE}
        s_lshl_b32 {sT2}, {sT2}, 6
        v_add_u32 v48, {sT2}, v48
        buffer_load_dword v53, v48, {XI}, 0 offen""")
        tok0 = self.vm
        srd(8, 66, 0x4000000); srd(12, 68, 0x4000000)
        def dmaX(t, loff):
            self.aoff(t, sRS); a(f"s_add_u32 {sRL}, {sLDSW}, {loff}"); self.call("sub_dmaX"); self.vm += 8
        dmaX(6, L_BB)
        srd(24, 88, WS_SIZE); srd(16, 76, 0x4000000); srd(20, 78, 0x4000000)
        a(f"""s_mov_b64 s[44:45], s[72:73]
        s_mov_b64 s[46:47], s[82:83]
        s_mov_b64 s[48:49], s[84:85]
        s_mov_b64 s[32:33], s[72:73]
        s_mov_b64 s[28:29], s[80:81]
        s_mov_b32 s2, 0
        s_add_u32 {sPV}, {sLDSW}, {L_BB}
        s_mov_b32 {sT5}, 1""")
        if self.stamps: a(f"s_mov_b32 s{ST0}, s94")
        a(f"""s_cmp_ge_u32 {sC}, 14
        s_cselect_b32 {sT2}, 1, 0
        s_mul_i32 {sT3}, {sT2}, 14
        s_sub_u32 {sT3}, {sC}, {sT3}
        s_lshl_b32 {sT4}, {sG}, 1
        s_add_u32 {sT4}, {sT4}, {sT2}
        s_mul_i32 {sT4}, {sT4}, {256*896}
        s_lshl_b32 {sT3}, {sT3}, 6
        s_add_u32 {sT4}, {sT4}, {sT3}
        s_mul_i32 {sT}, {sWAVE}, {64*896}
        s_add_u32 {sWOr[0]}, {sT4}, {sT}
        s_add_u32 {sWOr[1]}, {sWOr[0]}, {8*896}
        s_add_u32 {sWOr[2]}, {sWOr[0]}, {16*896}
        s_add_u32 {sWOr[3]}, {sWOr[0]}, {24*896}
        s_lshl_b32 {sT}, {sG}, 16
        s_lshl_b32 {sT3}, {sC}, 11
        s_add_u32 {sRECP}, {sT}, {sT3}
        s_lshl_b32 {sT3}, {sT2}, 10
        s_add_u32 {sT}, {sT}, {sT3}
        s_lshl_b32 {sT3}, {sWAVE}, 8
        s_add_u32 {sRECG[0]}, {sT}, {sT3}
        s_add_u32 {sRECG[1]}, {sRECG[0]}, 4096
        s_add_u32 {sRECG[2]}, {sRECG[0]}, 8192
        s_add_u32 {sRECG[3]}, {sRECG[0]}, 12288
        s_lshl_b32 {sT}, {sG}, 10
        s_add_u32 {sT}, {sT}, {LAM}
        s_lshl_b32 {sT3}, {sC}, 4
        s_add_u32 {sLAMP}, {sT}, {sT3}
        s_lshl_b32 {sT3}, {sT2}, 9
        s_add_u32 {sLAMG}, {sT}, {sT3}
        s_mul_i32 {sT}, {sG}, 28
        s_add_u32 {sT}, {sT}, {sC}
        s_lshl_b32 {sT}, {sT}, 7
        s_add_u32 {sYXP}, {sT}, {YX}
        s_lshl_b32 {sT}, {sG}, 11
        s_add_u32 {sXSo}, {sT}, {XS}
        s_add_u32 {sQSG}, {sT}, {QS}
        s_lshl_b32 {sT3}, {sC}, 6
        s_add_u32 {sQSP}, {sQSG}, {sT3}
        s_waitcnt lgkmcnt(0)
        s_sub_u32 {sCB}, {sC}, 28
        s_lshl_b32 {sCB}, {sCB}, 2
        s_add_u32 {sCB}, {sCB}, {sWAVE}
        s_lshl_b32 {sT}, {sG}, 15
        s_lshl_b32 {sT3}, {sCB}, 7
        s_add_u32 {sT}, {sT}, {sT3}
        s_add_u32 {sYXG}, {sT}, {YX}
        s_add_u32 {sYXG2}, {sYXG}, {8*1792}
        s_add_u32 {sN}, {sN}, {hex(STEP)}
        s_and_b32 {sH0}, {sN}, 0xffff
        s_lshr_b32 {sH1}, {sN}, 16
        s_mov_b32 {sVB}, {o['kbpre']}""")
        dmaX(7, L_BB + 8192)
        a(f"s_mov_b32 {sRL}, {L_WQB}")
        if not o.get("nowqb"): self.call("sub_wq")
        a(f"""v_mov_b32 v46, 0
        v_mov_b32 v47, 0
        v_mov_b32 v45, {L_ML + 64}
        ds_write_b64 v45, v[46:47]
        v_lshrrev_b32 v45, 1, v1
        v_add_u32 v45, {L_Z}, v45
        ds_write_b64 v45, v[46:47]
        s_waitcnt lgkmcnt(0)""")
        self.waitvm(tok0)
        a(f"""s_barrier
        v_lshrrev_b32 v48, 2, v1
        s_lshl_b32 {sT}, {sWAVE}, 8
        s_add_u32 {sT}, {sT}, {L_XO}
        v_add_u32 v48, {sT}, v48
        ds_write_b32 v48, v53""")
        L = self.only_wave(0)
        self.s3w()
        self.call("sub_s3b")
        a(f"""s_getreg_b32 {sT2}, hwreg(HW_REG_XCC_ID, 0, 4)
        s_mul_i32 {sT3}, {sC}, 48
        s_sub_u32 {sT3}, {XCCS - QS}, {sT3}
        v_writelane_b32 v40, {sT2}, 1
        v_writelane_b32 v41, {sN}, 1
        v_writelane_b32 v48, {sT3}, 1
        s_mov_b32 exec_lo, 0x10003
        s_mov_b32 exec_hi, 0x10001
        buffer_store_dwordx4 v[40:43], v48, {WS}, {sQSP} offen sc1
        s_mov_b64 exec, -1""")
        if o.get("gw", 0): a("s_mov_b32 s2, 1")
        self.consts()
        a.label(L)
        if o.get("ss"): self.stamp()
        g0 = o["g0"]
        for t in range(g0): self.loadK(t)
        L = self.only_wave(o.get("gw", 0)); self.call("sub_g0issue"); a.label(L)
        for t in range(g0, 8):
            self.loadK(t)
            L = self.only_wave(o.get("gw", 0))
            a(f"s_cmp_lg_u32 s2, 0\ns_cbranch_scc1 {L}\ns_waitcnt vmcnt(8)")
            if t == 7: a.label(".Lg0loop")
            self.call("sub_g0check")
            a(f"s_cmp_lg_u32 s2, 0\ns_cbranch_scc1 {L}")
            self.call("sub_g0issue")
            if t == 7: a("s_waitcnt vmcnt(0)\ns_branch .Lg0loop")
            a.label(L)
        tokK = self.vm
        if o.get("ss"): self.stamp()
        a(f"s_add_u32 {sN}, {sN}, {hex(STEP)}")
        self.loadV(0); tokV1 = self.loadV(1)
        a(f"v_mov_b32 v46, {L_ML + 64}")
        a.label(".Lqflag")
        a(f"""ds_read_b32 v44, v46
        s_waitcnt lgkmcnt(0)
        v_readfirstlane_b32 {sFAST}, v44
        s_nop 3
        s_cmp_eq_u32 {sFAST}, 0
        s_cbranch_scc1 .Lqflag
        s_sub_u32 {sFAST}, {sFAST}, 1""")
        self.waitvm(tokK)
        self.call("sub_qka0"); self.loadV(2)
        self.call("sub_qka1"); self.call("sub_sma")
        tokV3 = self.loadV(3)
        self.call("sub_pvlds")
        self.waitvm(tokV1); self.call("sub_pv01")
        nt_ = o.get("kbtail", 0)
        for t in range(o["kbpre"] - nt_): self.job(t, sBoff, sLDSW)
        if o.get("kbw"):
            a(f"s_mov_b32 {sT}, {o['kbw']}\ns_bitcmp1_b32 {sT}, {sWAVE}\ns_cbranch_scc0 .Lkbw")
            self.job(o["kbpre"], sBoff, sLDSW)
            a(f"s_add_u32 {sVB}, {sVB}, 1")
            a.label(".Lkbw")
        tokV4 = self.loadV(4)
        self.waitvm(tokV3); self.call("sub_pv23")
        tokV5 = self.loadV(5)
        self.waitvm(tokV4); self.call("sub_pv4")
        for t in range(o["kbpre"] - nt_, o["kbpre"]): self.job(t, sBoff, sLDSW); self.vm += 8
        self.waitvm(tokV5)
        a("s_branch sub_pv5")
    def build(self):
        a = self.a; o = self.o
        self.prologue()
        stepsA = [(t, r) for t in range(8) for r in range(4)]
        def xy(part):
            t, half = part >> 1, part & 1
            self.aoff(6 + t, sT)
            for n in range(4 * half, 4 * half + 4):
                a(f"buffer_load_dwordx4 a[{t*32+n*4}:{t*32+n*4+3}], v3, {VA}, {sT} offen offset:{vimm(n)} {o['pXY2']}")
        a.label(".LlayerA")
        a.label("sub_qka0"); self.qka(0); self.retif0(); xy(0)
        a.label("sub_qka1"); self.qka(1); self.retif0(); xy(1)
        a.label("sub_sma"); self.softmax(8, 8); self.retif0(); xy(2)
        a.label("sub_pv01"); self.pv(stepsA, 0, 8, prologue=True); self.retif0(); xy(3)
        a(f"v_add_u32 v23, {sPV}, v1")
        for n in range(8, 10): a(f"ds_read_b128 v[{64+4*n}:{67+4*n}], v23 offset:{n*1024}")
        a.label("sub_pv23"); self.pv(stepsA, 8, 16); self.retif0()
        a.label("sub_pv4"); self.pv(stepsA, 16, 20); self.retif0()
        a.label("sub_pv5"); self.ldwo(); self.pv(stepsA, 20, 24)
        a(f"s_cmp_eq_u32 {sL}, 0\ns_cbranch_scc1 .Lchain\ns_waitcnt vmcnt(4) lgkmcnt(0)")
        a.label("sub_pv67a"); self.pv(stepsA, 24, 32)
        if o["dry"]: a("s_cmp_eq_u32 s2, 2\ns_cbranch_scc1 .Lret")
        a.label(".Lchain")
        self.stamp(); self.s0(); self.stamp()
        a(f"s_cmp_ge_u32 {sC}, 28\ns_cbranch_scc1 .Lno_s1")
        self.s1()
        self.stamp()
        a(f"s_cmp_eq_u32 {sL}, 3\ns_cbranch_scc1 .Lfin\ns_cmp_lg_u32 {sL}, 2\ns_cbranch_scc1 .Lprep")
        self.call("sub_breg")
        a.label(".Lprep")
        self.w0prep()
        a.label(".Ls3")
        def s2cu():
            a.label(".Lno_s1")
            a(f"v_mov_b32 v16, {L_ML + 80}\nv_mov_b32 v17, {max(o['s2pre'], o['kbpre'])}\nds_write_b32 v16, v17\ns_waitcnt vmcnt(0) lgkmcnt(0)\ns_barrier")
            self.stamp()
            a(f"s_cmp_lg_u32 {sL}, 0\ns_cbranch_scc1 .Ls2a")
            for t in range(o["kbpre"], o["s2pre"]): self.job(t, sBoff, sLDSW)
            a(f"s_mov_b32 {sVB}, {max(o['s2pre'], o['kbpre'])}\ns_branch .Ls2b")
            a.label(".Ls2a")
            a(f"s_cmp_eq_u32 {sL}, 3\ns_cbranch_scc1 .Ls2b\ns_call_b64 s[0:1], .Ljobs")
            a.label(".Ls2b")
            a(f"""s_cmp_lt_u32 {sCB}, 14
            s_cbranch_scc0 .Lloader
            s_cmp_lg_u32 {sL}, 3
            s_cbranch_scc1 .Ls2
            s_cmp_lg_u32 {sG}, 0
            s_cbranch_scc1 .Lfin""")
            a.label(".Ls2")
            self.s2()
            a(f"""s_cbranch_scc1 .Lout
            v_perm_b32 v44, v40, v41, {sSELLO}
            v_perm_b32 v45, v40, v41, {sSELHI}
            s_cmp_eq_u32 {sFAST}, 1
            s_mov_b32 exec_lo, 0xff
            s_mov_b32 exec_hi, 0xff""")
            self.local_store(f"buffer_store_dwordx2 v[44:45], v43, {WS}, {sXSo} offen")
            a(f"""s_mov_b64 exec, -1
            ds_write_b32 v3, v40
            s_cmp_eq_u32 {sWAVE}, 0
            s_cbranch_scc1 .Ls3
            s_waitcnt lgkmcnt(0)
            s_branch .Lloader""")
        self.ool.insert(0, s2cu)
        self.stamp()
        self.s3()
        a(f"""s_cmp_eq_u32 s2, 0
        s_cbranch_scc1 .Lret
        s_cmp_eq_u32 {sFAST}, 1
        s_mov_b32 exec_lo, {sT}
        s_mov_b32 exec_hi, {sT}""")
        self.local_store(f"buffer_store_dwordx4 v[40:43], v48, {WS}, {sQSP} offen")
        a("s_mov_b64 exec, -1")
        self.stamp()
        def shadow():
            self.consts()
            a(f"v_add_u32 v51, {L_Q}, v1")
            self.cinit(); self.advance()
        self.poll([f"buffer_load_dwordx4 v[40:43], v50, {XI}, 0 offen sc1", f"buffer_load_dwordx4 v[44:47], v50, {XI}, 0 offen offset:16 sc1"],
                  [self.q_check()], ["v48"], shadow=shadow)
        for i in range(4): a(f"v_perm_b32 v{40+i}, v{41+2*i}, v{40+2*i}, {sSELHI}")
        a(f"ds_write_b128 v51, v[40:43]\ns_cmp_eq_u32 {sL}, 2\ns_waitcnt lgkmcnt(0)")
        a.label(".Lqready")
        a("s_barrier")
        if self.stamps: self.stamp(); a(f"s_cmp_eq_u32 {sL}, 2")
        a(f"s_cbranch_scc1 .LlayerA\ns_cmp_eq_u32 {sL}, 1\ns_cbranch_scc1 .Llayer1")
        a.label(".Llayer3")
        self.qk2(); self.ldwo()
        self.pv([(t, r) for t in range(2) for r in range(4)], 0, 8, prologue=True)
        a("s_cmp_eq_u32 s2, 2\ns_cbranch_scc0 .Lchain" if o["dry"] else "s_branch .Lchain")
        a.label(".Lret"); self.ret()
        a.label(".Llayer1")
        self.qkb()
        a(f"s_waitcnt vmcnt({1 if o.get('wob') else 0})\ns_barrier")
        a.label("sub_pvlds"); self.pvlds(); self.retif0(); self.ldwo()
        a("s_branch .Lchain")
        a.label(".Lloader")
        a(f"s_cmp_eq_u32 {sL}, 3\ns_cbranch_scc1 .Lfin")
        self.setw(); self.consts()
        a(f"s_cmp_lg_u32 {sL}, 0\ns_cbranch_scc1 .Lld_n0")
        a(f"""v_mov_b32 v44, {L_ML + 80}
        ds_read_b32 v45, v44
        s_waitcnt lgkmcnt(0)
        v_readfirstlane_b32 s0, v45
        s_lshl_b32 s1, {sWAVE}, 18
        s_sub_u32 s1, {sBoff}, s1""")
        def own(jn):
            L = a.newlabel("jo"); a(f"s_cmp_gt_u32 {sVB}, {jn}\ns_cbranch_scc1 {L}"); self.job(jn, sBoff, sLDSW); a.label(L)
        def w0s(jn, w):
            L = self.only_wave(w); a(f"s_cmp_gt_u32 s0, {jn}\ns_cbranch_scc1 {L}"); self.job(jn, "s1", 0); a.label(L)
        if o["kbpre"] < 1: own(0); w0s(0, 1)
        if o["kbpre"] < 2: own(1); w0s(1, 2)
        own(2); w0s(2, 3); w0s(3, 2)
        L = self.only_wave(1); self.call("sub_repair"); a.label(L)
        a(f"s_cmp_gt_u32 {sVB}, 3\ns_cbranch_scc1 .Lld_pre")
        own(3)
        a("s_waitcnt vmcnt(6)\ns_branch .Lhelp" if o["kbpre"] < 2 else "s_branch .Lhelp")
        a.label(".Lld_pre")
        if o["kbpre"] < 2: a("s_waitcnt vmcnt(0)")
        a.label(".Lhelp")
        if o.get("wob"):
            a(f"""s_cmp_lg_u32 {sL}, 0
            s_cbranch_scc1 .Lld_done
            v_lshlrev_b32 v58, 3, v1
            s_lshl_b32 {sT2}, {sG}, 5
            s_add_u32 {sT2}, {sT2}, {sC}
            s_mul_i32 {sT2}, {sT2}, 14336
            s_mul_i32 {sT3}, {sWAVE}, 4864
            s_add_u32 {sT2}, {sT2}, {sT3}
            s_sub_u32 {sT2}, {sT2}, 4864
            s_mov_b32 m0, {L_SCR}
            s_mov_b32 exec_hi, 0x3f
            buffer_load_dword v58, {WO}, {sT2} offen lds
            s_mov_b64 exec, -1""")
        if o.get("help"):
            a(f"""s_cmp_lg_u32 {sL}, 0
            s_cbranch_scc1 .Lld_done
            v_mov_b32 v44, {L_ML + 68}
            v_lshlrev_b32 v46, 3, v1
            s_xor_b32 {sRS}, {sBoff}, {o.get('hx', 1) << 23}
            s_mov_b32 m0, {L_SCR}""")
            offs = [TILE, 0]
            for k, off in enumerate(offs[:o["help"]]):
                for extra in (0, 1):
                    Lx = a.newlabel("hp")
                    if extra: a(f"s_cmp_lg_u32 {sWAVE}, {1 + k}\ns_cbranch_scc1 {Lx}")
                    a(f"""s_waitcnt vmcnt(0)
                    ds_read_b32 v45, v44
                    s_waitcnt lgkmcnt(0)
                    v_readfirstlane_b32 {sT}, v45
                    s_nop 3
                    s_cmp_lg_u32 {sT}, 0
                    s_cbranch_scc1 .Lld_done""")
                    if extra: a(f"s_add_u32 {sT}, {sRS}, {off - (1 + k) * 262144 + (1 << 23)}\ns_sub_u32 {sT}, {sT}, {1 << 23}")
                    else: a(f"s_add_u32 {sT}, {sRS}, {off}")
                    a(f"buffer_load_dword v46, {VBs}, {sT} offen lds")
                    a.label(Lx)
        a("s_branch .Lld_done")
        a.label(".Lld_n0")
        a(f"s_cmp_ge_u32 {sC}, 28\ns_cbranch_scc1 .Lld_done\ns_call_b64 s[0:1], .Ljobs")
        a.label(".Lld_done")
        self.cinit()
        self.stamp(); self.stamp()
        self.advance()
        a(f"s_cmp_eq_u32 {sL}, 2\ns_branch .Lqready")
        a.label(".Ljobs")
        a(f"s_cmp_eq_u32 {sL}, 1\ns_cbranch_scc1 .Lld_1")
        self.call("sub_breg")
        a("s_waitcnt lgkmcnt(0)\ns_setpc_b64 s[0:1]")
        a.label(".Lld_1")
        L = self.only_wave(1); self.call("sub_repair"); a("s_waitcnt vmcnt(0)"); a.label(L)
        if o.get("dry", 1):
            L = self.only_wave(2)
            a("s_mov_b32 s2, 2")
            self.call(".Llayer3"); self.call("sub_pv67a")
            a("s_mov_b32 s2, 1\ns_waitcnt vmcnt(0) lgkmcnt(0)\ns_nop 7")
            a.label(L)
        a("s_setpc_b64 s[0:1]")
        a.label(".Lout")
        a(f"""s_mov_b32 s36, s48
        s_mov_b32 s37, s49
        s_mov_b32 s38, 896
        s_mov_b32 exec_lo, 0xff
        s_mov_b32 exec_hi, 0xff
        buffer_store_dword v40, v42, {XI}, 0 offen
        s_mov_b64 exec, 1
        s_cmp_lg_u32 {sCB}, 0
        s_cbranch_scc1 .Lnoep
        v_mov_b32 v43, {EPOCH}
        buffer_store_dword v41, v43, {WS}, 0 offen""")
        a.label(".Lnoep")
        a("s_mov_b64 exec, -1")
        a.label(".Lfin")
        if self.stamps:
            a(f"s_mov_b32 {sT5}, {NSTAMP-1}")
            self.stamp(True)
            a(f"""s_lshl_b32 {sT}, {sC}, 3
            s_add_u32 {sT}, {sT}, {sG}
            s_lshl_b32 {sT}, {sT}, 2
            s_add_u32 {sT}, {sT}, {sWAVE}
            s_mul_i32 {sT}, {sT}, {NSTAMP*8}
            s_add_u32 {sT}, {sT}, {STAMP}
            v_mov_b32 v8, 0""")
            for i in range(NSTAMP):
                a(f"v_mov_b32 v10, s{ST0+i}\nv_mov_b32 v11, 0\nbuffer_store_dwordx2 v[10:11], v8, {WS}, {sT} offen offset:{i*8}\ns_nop 1")
        a.label(".Lend")
        a("s_endpgm")
        k = 0
        while k < len(self.ool): self.ool[k](); k += 1
        self.subs_mem(); self.sub_g0()
        return "\n".join(l.rstrip() for l in wrap(a.text()).split("\n"))

if __name__ == "__main__":
    open("m_a.s", "w").write(G(stamps=(0, 1)).build())
    open("m_d.s", "w").write(G(stamps=(2, 3), pst=1).build())
    open("m.s", "w").write(G().build())
```

```python
import sys, struct
from asmlib import *

BLK = 0x100000
REC = 0
YX  = 0x80000
LAM = 0xC0000
XS  = 0xC2000
QS  = 0xC8000
XCCS = 0xCC000
EPOCH = 0xD0000
STAMP = 0x600000
WS_SIZE = 0x800000
L_KB = 0
L_BB = 65536
L_WQA = 131072
L_WQB = L_WQA + 14336
L_ML = L_WQB + 14336
L_Q = L_ML + 128
L_YP = L_Q + 1024
L_SCR = L_YP + 512
L_Z = L_SCR + 256
L_XO = L_Z + 512
LDS_TOTAL = 163840
assert L_XO + 1024 <= LDS_TOTAL
SCALE = 0.0625 * 1.4426950408889634
STEP = 0x01010101
def f2u(x): return struct.unpack("<I", struct.pack("<f", x))[0]

sWAVE, sG, sC = "s3", "s4", "s5"
sSELLO, sSELHI = "s6", "s7"
KA, VA, KBs, VBs, WS, RL, WO, XI = "s[8:11]", "s[12:15]", "s[16:19]", "s[20:23]", "s[24:27]", "s[28:31]", "s[32:35]", "s[36:39]"
EXS = "s[40:41]"
sRS, sRL, sWQ, sONES = "s50", "s51", "s52", "s53"
sAoff, sBoff, sT, sSC, sFAST, sL = "s54", "s55", "s56", "s57", "s58", "s59"
sT2, sT3, sSPIN, sLDSW = "s60", "s61", "s62", "s63"
RET = "s[64:65]"
sPV, sT4, sT5 = "s66", "s67", "s68"
sRECP, sLAMP, sLAMG, sYXP, sYXG, sYXG2, sXSo, sQSG, sQSP = ["s%d" % i for i in range(69, 78)]
sRECG = ["s78", "s79", "s80", "s81"]
sWOr = ["s82", "s83", "s84", "s85"]
sH0, sH1, sCB, sVB, sN = "s86", "s87", "s88", "s89", "s90"
ST0, NSTAMP = 91, 11
TILE = 1048576
vNM, vL, vPM = "v60", "v61", "v62"
DPPALL = "row_mask:0xf bank_mask:0xf"
ACC = 16
def kimm(n): return (n & 1) * 1024 + (n >> 1) * 128
def vimm(n): return (n >> 1) * 512 + (n & 1) * 256

class G:
    def __init__(self, stamps=None, **opt):
        self.a = Asm(); self.stamps = stamps; self.vm = 0; self.ool = []
        self.o = dict(g0=5, gw=3, wob=1, s2pre=3, thr=8, kbpre=0, dry=0, pA="nt", pXY="", pXY2="", pB="nt", pWT="", pWQ="nt")
        self.o.update(opt)
    def stamp(self, always=False):
        if not self.stamps: return
        a = self.a; L = a.newlabel("st")
        if not always:
            a(f"s_cmp_lt_u32 {sL}, {self.stamps[0]}\ns_cbranch_scc1 {L}\ns_cmp_gt_u32 {sL}, {self.stamps[1]}\ns_cbranch_scc1 {L}")
        a(f"s_cmp_ge_u32 {sT5}, {NSTAMP}\ns_cbranch_scc1 {L}")
        a(f"s_memrealtime s[0:1]\ns_mov_b32 m0, {sT5}\ns_waitcnt lgkmcnt(0)\ns_movreld_b32 s{ST0}, s0\ns_add_u32 {sT5}, {sT5}, 1")
        a.label(L)
    def vmem(self, ins): self.a(ins); self.vm += 1; return self.vm
    def waitvm(self, tok):
        n = self.vm - tok
        if n <= 63: self.a(f"s_waitcnt vmcnt({n})")
    def call(self, name): self.a(f"s_call_b64 {RET}, {name}")
    def ret(self): self.a(f"s_setpc_b64 {RET}")
    def only_wave(self, w):
        L = self.a.newlabel("ow"); self.a(f"s_cmp_lg_u32 {sWAVE}, {w}\ns_cbranch_scc1 {L}"); return L
    def retif0(self): self.a(f"s_cmp_eq_u32 {sL}, 0\ns_cbranch_scc1 .Lret")
    def local_store(self, ins):
        a = self.a; Ls, Lb = a.newlabel("ss"), a.newlabel("sb")
        a(f"s_cbranch_scc0 {Ls}\n{ins}"); a.label(Lb)
        self.ool.append(lambda: (a.label(Ls), a(f"{ins} sc1\ns_branch {Lb}")))
    def validate(self, groups, tmp):
        a = self.a; accs = []
        for gi, (mask, items, inplace) in enumerate(groups):
            t = tmp[gi]
            if inplace:
                for r, tg in items: a(f"v_xor_b32 {r}, {tg}, {r}")
                rs = [r for r, _ in items]
                if len(rs) == 1: accs.append(rs[0]); continue
                if len(rs) == 2: a(f"v_or_b32 {t}, {rs[0]}, {rs[1]}")
                else:
                    a(f"v_or3_b32 {t}, {rs[0]}, {rs[1]}, {rs[2]}"); k = 3
                    while k < len(rs):
                        if k + 1 < len(rs): a(f"v_or3_b32 {t}, {t}, {rs[k]}, {rs[k+1]}"); k += 2
                        else: a(f"v_or_b32 {t}, {t}, {rs[k]}"); k += 1
            else:
                a(f"v_xor_b32 {t}, {items[0][1]}, {items[0][0]}")
                for r, tg in items[1:]: a(f"v_bitop3_b32 {t}, {t}, {r}, {tg} bitop3:0xf6")
            if mask != 0xffffffff: a(f"v_and_b32 {t}, {hex(mask)}, {t}")
            accs.append(t)
        for t in accs[1:]: a(f"v_or_b32 {accs[0]}, {accs[0]}, {t}")
        a(f"v_cmp_ne_u32 vcc, 0, {accs[0]}")
    def poll(self, loads, groups, tmp, shadow=None, lanemask=None, hook=None, mid=None):
        a = self.a
        Lr, Ld, Lw = a.newlabel("pr"), a.newlabel("pd"), a.newlabel("pw")
        for l in loads: a(l)
        if shadow: shadow()
        if lanemask is not None: a(f"s_mov_b32 exec_lo, {hex(lanemask)}\ns_mov_b32 exec_hi, {hex(lanemask)}")
        if mid: a(f"s_mov_b64 {EXS}, -1")
        a.label(Lw)
        if mid:
            a(f"s_waitcnt vmcnt({len(loads)-1})"); mid(); a(f"s_mov_b64 exec, {EXS}")
        a("s_waitcnt vmcnt(0)")
        self.validate(groups, tmp)
        a(f"s_cbranch_vccnz {Lr}")
        a.label(Ld)
        a("s_mov_b64 exec, -1")
        if self.o.get("pst"): self.stamp()
        def retry():
            a.label(Lr)
            if hook: hook()
            a("s_wqm_b64 exec, vcc" if groups[0][0] == 0xff else "s_mov_b64 exec, vcc")
            for l in loads: a(l)
            if mid: a(f"s_mov_b64 {EXS}, exec\ns_mov_b64 exec, -1")
            a(f"s_sub_u32 {sSPIN}, {sSPIN}, 1\ns_cbranch_scc0 {Lw}\ns_mov_b32 {sSPIN}, 0\ns_waitcnt vmcnt(0)\ns_branch {Ld}")
        self.ool.append(retry)
    def t16(self, regs): return (0xffff, [(r, sH0 if i % 2 == 0 else sH1) for i, r in enumerate(regs)], False)
    def consts(self):
        a = self.a
        a(f"""v_bfe_u32 v58, v1, 4, 4
        v_bfe_u32 v59, v1, 8, 2
        v_lshlrev_b32 v3, 11, v59
        v_lshl_add_u32 v3, v58, 4, v3
        v_bfe_u32 v63, v1, 5, 1
        v_lshlrev_b32 v63, 9, v63
        v_lshl_add_u32 v63, v59, 4, v63
        v_and_b32 v59, 16, v1
        v_lshl_add_u32 v63, v59, 2, v63
        v_lshrrev_b32 v58, 2, v58
        v_lshl_add_u32 v2, v58, 11, v63
        v_add_u32 v63, {L_Q}, v63
        v_mov_b32 {vPM}, 0xffff
        v_lshlrev_b32 {vPM}, v59, {vPM}""")
        for b in range(4): a(f"v_mov_b32 v{4+b}, {L_Z}")
        a("s_nop 0")
        for b in range(4): a(f"v_mov_b32_dpp v{4+b}, v63 quad_perm:[0,1,2,3] row_mask:0xf bank_mask:{hex(1<<b)}")
    def cinit(self):
        a = self.a
        a(f"v_mov_b32 v63, {hex(f2u(-1e30))}\nv_mov_b32 v{ACC}, 0\nv_mov_b32 v{ACC+8}, 0")
        a(f"v_mov_b32_dpp v{ACC}, v63 quad_perm:[0,1,2,3] row_mask:0xf bank_mask:0xc")
        a(f"v_mov_b32_dpp v{ACC+8}, v63 quad_perm:[0,1,2,3] row_mask:0xf bank_mask:0x3")
        for i in range(1, 8): a(f"v_mov_b32 v{ACC+i}, v{ACC}\nv_mov_b32 v{ACC+8+i}, v{ACC+8}")
    def advance(self):
        self.a(f"""s_add_u32 {sL}, {sL}, 1
        s_mov_b32 {sVB}, 4
        s_add_u32 {sN}, {sN}, {hex(STEP)}
        s_xor_b32 {sYXP}, {sYXP}, {BLK}
        s_xor_b32 {sYXG}, {sYXG}, {BLK}
        s_xor_b32 {sYXG2}, {sYXG2}, {BLK}""")
    def setw(self):
        self.a(f"""s_bitcmp1_b32 {sL}, 0
        s_cselect_b32 s32, s44, s46
        s_cselect_b32 s33, s45, s47
        s_cselect_b32 {sWQ}, 0, 14336
        s_add_u32 {sWQ}, {sWQ}, {L_WQA}""")
    def aoff(self, t, dst):
        self.a(f"s_add_u32 {dst}, {sG}, {t}\ns_and_b32 {dst}, {dst}, 7\ns_lshl_b32 {dst}, {dst}, 18\ns_add_u32 {dst}, {dst}, {sAoff}")
    def loadK(self, t):
        self.aoff(t, sT)
        for n in range(8): tok = self.vmem(f"buffer_load_dwordx4 a[{t*32+n*4}:{t*32+n*4+3}], v2, {KA}, {sT} offen offset:{kimm(n)} {self.o['pA']}")
        return tok
    def loadV(self, t):
        self.aoff(t, sT)
        for n in range(8):
            b = 64 + t * 32 + n * 4
            tok = self.vmem(f"buffer_load_dwordx4 v[{b}:{b+3}], v3, {VA}, {sT} offen offset:{vimm(n)} {self.o['pA']}")
        return tok
    def dma_body(self, vaddr, srd, soff, immf, pol, units=range(8), loff=0):
        for n in units:
            self.a(f"s_add_u32 m0, {sRL}, {loff + n*1024 - immf(n)}\ns_nop 0\nbuffer_load_dwordx4 {vaddr}, {srd}, {soff} offen offset:{immf(n)} {pol} lds")
    def job(self, jn, base, lds):
        self.a(f"s_mov_b32 {sRS}, {base}\ns_mov_b32 {sRL}, {lds}\ns_mov_b32 {sT4}, {jn}"); self.call("sub_job")
    def subs_mem(self):
        a = self.a; o = self.o
        a.label("sub_dmaX"); self.dma_body("v3", VA, sRS, vimm, o["pXY"]); self.ret()
        a.label("sub_job")
        a(f"""s_cmp_ge_u32 {sT4}, 2
        s_cbranch_scc1 .Ljob_v
        s_lshl_b32 {sT}, {sT4}, 20
        s_add_u32 {sRS}, {sRS}, {sT}
        s_lshl_b32 {sT}, {sT4}, 13
        s_add_u32 {sRL}, {sRL}, {sT}""")
        self.dma_body("v2", KBs, sRS, kimm, o["pB"]); self.ret()
        a.label(".Ljob_v")
        a(f"s_cmp_eq_u32 {sT4}, 2\ns_cbranch_scc0 .Ljob_v1")
        self.dma_body("v3", VBs, sRS, vimm, o["pB"], loff=L_BB); self.ret()
        a.label(".Ljob_v1")
        a(f"s_add_u32 {sRS}, {sRS}, {TILE}")
        self.dma_body("v3", VBs, sRS, vimm, o["pB"], units=range(2, 8), loff=L_BB + 8192); self.ret()
        a.label("sub_repair")
        for w in range(4):
            a(f"s_add_u32 {sRS}, {sBoff}, {TILE + (w-1)*262144}")
            for n in range(2):
                a(f"s_mov_b32 m0, {L_BB + w*16384 + 8192 + n*1024 - n*256}\ns_nop 0\nbuffer_load_dwordx4 v3, {VBs}, {sRS} offen offset:{n*256} {o['pB']} lds")
        self.ret()
        a.label("sub_breg")
        a(f"v_add_u32 v40, {sLDSW}, v1\nv_add_u32 v41, {sPV}, v1")
        for n in range(16): a(f"ds_read_b128 a[{128+4*n}:{131+4*n}], v40 offset:{n*1024}")
        for n in list(range(8)) + list(range(10, 16)): a(f"ds_read_b128 v[{64+4*n}:{67+4*n}], v41 offset:{n*1024}")
        self.ret()
        a.label("sub_wq")
        a(f"""v_lshrrev_b32 v58, 5, v1
        v_lshlrev_b32 v58, 13, v58
        v_and_b32 v59, 16, v1
        v_add_u32 v58, v58, v59
        s_lshl_b32 {sT}, {sG}, 10
        s_lshl_b32 {sT2}, {sC}, 5
        s_add_u32 {sT}, {sT}, {sT2}
        s_lshl_b32 {sT2}, {sWAVE}, 18
        s_add_u32 {sT}, {sT}, {sT2}
        s_lshl_b32 {sT2}, {sWAVE}, 10
        s_add_u32 m0, {sRL}, {sT2}""")
        for n in range(4):
            if n == 3: a(f"s_cmp_ge_u32 {sWAVE}, 2\ns_cbranch_scc1 .Lwq_end")
            a(f"s_nop 0\nbuffer_load_dwordx4 v58, {RL}, {sT} offen {o['pWQ']} lds")
            if n < 3: a(f"s_add_u32 {sT}, {sT}, {4*262144}\ns_add_u32 m0, m0, 4096")
        a.label(".Lwq_end")
        self.ret()
    def ldwo(self):
        a = self.a
        a("""v_bfe_u32 v16, v1, 4, 3
        v_bfe_u32 v17, v1, 7, 1
        v_lshl_add_u32 v16, v17, 5, v16
        v_mul_u32_u24 v16, 896, v16
        v_bfe_u32 v17, v1, 8, 2
        v_lshl_add_u32 v16, v17, 4, v16""")
        for k in range(4): a(f"buffer_load_dwordx4 v[{24+4*k}:{27+4*k}], v16, {WO}, {sWOr[k]} offen")
    def softmax(self, base, n):
        a = self.a
        sregs = [f"v{base+i}" for i in range(n)]
        for i in range(8): a(f"v_mov_b32 v{40+i}, 0")
        for i, r in enumerate(sregs):
            g = (base - 8) // 4 + i // 4; rp = i % 4
            src = ACC + 8 * g + 4 * (rp >> 1) + 2 * (rp & 1)
            a(f"v_add_f32_dpp {r}, v{src+1}, v{src} quad_perm:[1,1,3,3] {DPPALL}")
        a(f"v_max3_f32 {vNM}, {sregs[0]}, {sregs[1]}, {sregs[2]}"); k = 3
        while k < n:
            if k + 1 < n: a(f"v_max3_f32 {vNM}, {vNM}, {sregs[k]}, {sregs[k+1]}"); k += 2
            else: a(f"v_max_f32 {vNM}, {vNM}, {sregs[k]}"); k += 1
        z = iter(range(48, 60))
        def zz(k):
            for _ in range(k): a(f"v_mov_b32 v{next(z)}, 0")
        zz(2); a(f"v_max_f32_dpp {vNM}, {vNM}, {vNM} row_ror:4 {DPPALL}")
        zz(2); a(f"v_max_f32_dpp {vNM}, {vNM}, {vNM} row_ror:8 {DPPALL}")
        for sw in ("v_permlane16_swap_b32", "v_permlane32_swap_b32"):
            a(f"v_mov_b32 v63, {vNM}"); zz(2); a(f"{sw} {vNM}, v63\nv_max_f32 {vNM}, {vNM}, v63")
        a(f"v_mul_f32 {vNM}, {sSC}, {vNM}\nv_sub_f32 {vNM}, 0, {vNM}")
        for r in sregs: a(f"v_fma_f32 {r}, {r}, {sSC}, {vNM}")
        for r in sregs: a(f"v_exp_f32 {r}, {r}")
        zz(4)
        a(f"v_add_f32 {vL}, {sregs[0]}, {sregs[1]}\nv_add_f32 v63, {sregs[2]}, {sregs[3]}")
        for i in range(4, n, 2): a(f"v_add_f32 {vL}, {vL}, {sregs[i]}\nv_add_f32 v63, v63, {sregs[i+1]}")
        for r in sregs: a(f"v_cvt_pk_bf16_f32 {r}, {r}, {r}")
        a(f"v_add_f32 {vL}, {vL}, v63")
        for r in sregs: a(f"v_and_b32_dpp {r}, {r}, {vPM} quad_perm:[0,0,2,2] {DPPALL}")
    def qka(self, part, extra=()):
        a = self.a; NB = 6; extra = list(extra)
        seq = [(cp, 2 * p + bb) for p in range(2) for cp in range(4) for bb in range(2)]
        def rd(k):
            cp, b = seq[k]; q = 32 + 4 * (k % NB); a(f"ds_read_b128 v[{q}:{q+3}], v{4+b} offset:{cp*128}")
        if part == 0:
            for k in range(NB): rd(k)
        for k in range(8 * part, 8 * part + 8):
            cp, b = seq[k]
            issued = NB if k == 0 else min(16, NB + k - 1)
            a(f"s_waitcnt lgkmcnt({issued - k - 1})")
            q = 32 + 4 * (k % NB)
            for grp in range(2):
                for s_ in range(2):
                    t = b + 4 * grp; d = ACC + 8 * grp + 4 * s_; n = cp * 2 + s_
                    c = "0" if k == 0 else f"v[{d}:{d+3}]"
                    a(f"v_mfma_f32_16x16x32_bf16 v[{d}:{d+3}], a[{t*32+n*4}:{t*32+n*4+3}], v[{q}:{q+3}], {c}")
                if grp == 0 and extra: a(extra.pop(0))
            if k >= 1 and k - 1 + NB < 16: rd(k - 1 + NB)
    def qk2(self):
        a = self.a
        seq = [(cp, b) for cp in range(4) for b in range(2)]
        for k, (cp, b) in enumerate(seq): a(f"ds_read_b128 v[{24+4*k}:{27+4*k}], v{4+b} offset:{cp*128}")
        for k, (cp, b) in enumerate(seq):
            a(f"s_waitcnt lgkmcnt({7-k})")
            for s_ in range(2):
                d = ACC + 4 * s_; n = cp * 2 + s_
                a(f"v_mfma_f32_16x16x32_bf16 v[{d}:{d+3}], a[{(4+b)*32+n*4}:{(4+b)*32+n*4+3}], v[{24+4*k}:{27+4*k}], v[{d}:{d+3}]")
        self.softmax(8, 4)
    def qkb(self):
        a = self.a
        kseq = [(cp, b, s_) for cp in range(4) for b in range(2) for s_ in range(2)]
        NK, NQ = 6, 5; kb = [8, 12, 16, 20, 32, 36]; order = []
        def rk(k):
            cp, b, s_ = kseq[k]; r = kb[k % NK]; a(f"ds_read_b128 v[{r}:{r+3}], v61 offset:{b*8192 + (cp*2+s_)*1024}"); order.append(("k", k))
        def rq(j):
            q = 40 + 4 * (j % NQ); a(f"ds_read_b128 v[{q}:{q+3}], v{6+(j&1)} offset:{(j>>1)*128}"); order.append(("q", j))
        a(f"v_add_u32 v61, {sLDSW}, v1")
        rq(0); rk(0); rk(1); rq(1); rk(2); rk(3); rq(2); rk(4); rk(5); rq(3); rq(4)
        for k in range(16):
            j = k >> 1
            need = max([i for i, x in enumerate(order) if x in (("q", j), ("k", k))])
            a(f"s_waitcnt lgkmcnt({len(order) - need - 1})")
            r = kb[k % NK]; q = 40 + 4 * (j % NQ); d = ACC + 8 + 4 * kseq[k][2]
            a(f"v_mfma_f32_16x16x32_bf16 v[{d}:{d+3}], v[{r}:{r+3}], v[{q}:{q+3}], v[{d}:{d+3}]")
            if k >= 1 and k - 1 + NK < 16: rk(k - 1 + NK)
            if k >= 2 and k % 2 == 0 and j - 1 + NQ < 8: rq(j - 1 + NQ)
        self.softmax(12, 4)
    def bop(self, t, r, bb):
        grp, b = t // 4, t % 4; out = []
        for tt in range(4):
            ctl = "quad_perm:[0,1,2,3]" if tt == b else (f"row_shr:{4*(tt-b)}" if tt > b else f"row_shl:{4*(b-tt)}")
            out.append(f"v_mov_b32_dpp v{bb+tt}, v{8+4*grp+r} {ctl} row_mask:0xf bank_mask:{hex(1<<tt)}")
        return out
    def srcA(self, t, r, hf):
        if t >= 6: vb = (t - 6) * 32 + (r * 2 + hf) * 4; return f"a[{vb}:{vb+3}]"
        vb = 64 + t * 32 + (r * 2 + hf) * 4; return f"v[{vb}:{vb+3}]"
    def pv(self, steps, k0, k1, prologue=False, extra=None):
        a = self.a; bb = lambda k: 48 + 4 * (k % 3); extra = extra or {}
        if prologue:
            for k in range(k0, k0 + 2):
                for i in self.bop(*steps[k], bb(k)): a(i)
        for k in range(k0, k1):
            t, r = steps[k]
            nx = self.bop(*steps[k + 2], bb(k + 2)) if k + 2 < len(steps) else []
            for hf in range(2):
                a(f"v_mfma_f32_16x16x32_bf16 v[{40+4*hf}:{43+4*hf}], {self.srcA(t, r, hf)}, v[{bb(k)}:{bb(k)+3}], v[{40+4*hf}:{43+4*hf}]")
                for i in nx[2*hf:2*hf+2]: a(i)
            if k in extra: a(extra[k])
    def pvlds(self):
        a = self.a
        a(f"v_add_u32 v63, {sPV}, v1")
        steps = [(t, r) for t in (6, 7) for r in range(4)]; bb = lambda k: 48 + 4 * (k % 3)
        def rd(k):
            t, r = steps[k]; b = 16 + 8 * (k % 3)
            for hf in range(2): a(f"ds_read_b128 v[{b+4*hf}:{b+4*hf+3}], v63 offset:{(t-6)*8192 + (r*2+hf)*1024}")
        rd(0); rd(1); rd(2)
        for k in range(2):
            for i in self.bop(*steps[k], bb(k)): a(i)
        for k in range(8):
            nx = self.bop(*steps[k + 2], bb(k + 2)) if k + 2 < 8 else []
            issued = 3 if k == 0 else min(8, k + 2)
            a(f"s_waitcnt lgkmcnt({(issued - k - 1)*2})")
            b = 16 + 8 * (k % 3)
            for hf in range(2):
                a(f"v_mfma_f32_16x16x32_bf16 v[{40+4*hf}:{43+4*hf}], v[{b+4*hf}:{b+4*hf+3}], v[{bb(k)}:{bb(k)+3}], v[{40+4*hf}:{43+4*hf}]")
                for i in nx[2*hf:2*hf+2]: a(i)
            if k >= 1 and k + 2 < 8: rd(k + 2)
    def s0(self):
        a = self.a
        a(f"""v_add_f32_dpp {vL}, {vL}, {vL} row_ror:4 {DPPALL}
        s_add_u32 {sT}, {sPV}, 8192
        v_add_u32 v58, {sT}, v1
        v_add_f32_dpp {vL}, {vL}, {vL} row_ror:8 {DPPALL}
        v_bfe_u32 v11, v1, 5, 1
        v_mov_b32 v63, {vL}
        v_lshlrev_b32 v11, 5, v11
        s_lshl_b32 {sT}, {sWAVE}, 3
        v_permlane16_swap_b32 {vL}, v63
        ds_write_b128 v58, v[40:43]
        ds_write_b128 v58, v[44:47] offset:1024
        v_add_f32 {vL}, {vL}, v63
        v_mov_b32 v63, {vL}
        s_add_u32 {sT}, {sT}, {L_ML}
        v_add_u32 v11, {sT}, v11
        v_permlane32_swap_b32 {vL}, v63
        v_add_f32 {vL}, {vL}, v63
        s_mov_b64 exec, 5
        ds_write_b64 v11, v[60:61]
        s_mov_b64 exec, -1
        v_lshlrev_b32 v56, 3, v0
        v_add_u32 v56, {L_BB + 8192}, v56
        v_bfe_u32 v10, v0, 2, 1
        v_lshlrev_b32 v11, 5, v10
        v_add_u32 v11, {L_ML}, v11
        s_waitcnt lgkmcnt(0)
        s_barrier
        ds_read_b128 v[16:19], v11
        ds_read_b128 v[20:23], v11 offset:16
        ds_read_b64 v[48:49], v56
        ds_read_b64 v[50:51], v56 offset:16384
        ds_read_b64 v[52:53], v56 offset:32768
        ds_read_b64 v[54:55], v56 offset:49152
        v_bfe_u32 v57, v0, 1, 1
        v_bfe_u32 v8, v0, 3, 2
        v_lshl_add_u32 v57, v8, 1, v57
        v_lshrrev_b32 v8, 5, v0
        v_lshlrev_b32 v9, 4, v57
        v_lshl_add_u32 v9, v8, 7, v9
        v_lshl_add_u32 v9, v10, 10, v9
        v_and_b32 v57, 3, v57
        v_lshlrev_b32 v57, 3, v57
        v_bfe_u32 v57, {sN}, v57, 8
        v_mov_b32 v8, 0xff
        s_sub_u32 {sT}, {sLAMP}, {sRECP}
        v_lshl_add_u32 v10, v10, 9, {sT}
        s_cmp_eq_u32 {sWAVE}, 0
        s_cselect_b32 {sT2}, 0x22, 0
        s_or_b32 {sT2}, {sT2}, 0x55555555
        s_waitcnt lgkmcnt(4)
        v_min3_f32 v12, v16, v18, v20
        v_min_f32 v12, v12, v22
        v_sub_f32 v16, v12, v16
        v_sub_f32 v18, v12, v18
        v_sub_f32 v20, v12, v20
        v_sub_f32 v22, v12, v22
        v_exp_f32 v16, v16
        v_exp_f32 v18, v18
        v_exp_f32 v20, v20
        v_exp_f32 v22, v22
        s_waitcnt lgkmcnt(0)
        v_mul_f32 v48, v48, v16
        v_mul_f32 v49, v49, v16
        v_fmac_f32 v48, v50, v18
        v_fmac_f32 v49, v51, v18
        v_fmac_f32 v48, v52, v20
        v_fmac_f32 v49, v53, v20
        v_fmac_f32 v48, v54, v22
        v_fmac_f32 v49, v55, v22
        v_mul_f32 v13, v16, v17
        v_fmac_f32 v13, v18, v19
        v_mov_b32_dpp v50, v48 quad_perm:[1,1,3,3] {DPPALL}
        v_mov_b32_dpp v51, v49 quad_perm:[1,1,3,3] {DPPALL}
        v_bfi_b32 v48, v8, v57, v48
        s_mov_b64 exec, 0x22
        v_fmac_f32 v13, v20, v21
        v_fma_f32 v49, v22, v23, v13
        v_mov_b32 v48, v12
        v_mov_b32 v50, {sN}
        v_mov_b32 v9, v10
        s_cmp_eq_u32 {sFAST}, 1
        s_mov_b32 exec_lo, {sT2}
        s_mov_b32 exec_hi, 0x55555555""")
        self.local_store(f"buffer_store_dwordx4 v[48:51], v9, {WS}, {sRECP} offen")
        a("s_mov_b64 exec, -1")
    def perm_inplace(self):
        a = self.a; free = 59; m = [[None] * 8, [None] * 8]
        for p in range(2):
            for w in range(4):
                A = 24 + p * 8 + w; B = A + 4
                a(f"v_perm_b32 v{free}, v{B}, v{A}, {sSELLO}\nv_perm_b32 v{A}, v{B}, v{A}, {sSELHI}")
                m[p][2 * w] = free; m[p][2 * w + 1] = A; free = B
        return m
    def early_job(self):
        a = self.a
        a(f"""s_cmp_ge_u32 {sVB}, 4
        s_cbranch_scc1 .Lev_x
        v_cmp_ne_u32 s[0:1], 0, v58
        s_nop 1
        s_bcnt1_i32_b64 {sT2}, s[0:1]
        s_cmp_lt_u32 {sT2}, {2 * self.o["thr"]}
        s_cbranch_scc1 .Lev_x
        s_mov_b64 exec, -1""")
        self.job(sVB, sBoff, sLDSW)
        a(f"s_add_u32 {sVB}, {sVB}, 1")
        a.label(".Lev_x")
    def s1(self):
        a = self.a
        a("""v_bfe_u32 v62, v1, 8, 2
        v_lshlrev_b32 v63, 7, v62
        v_and_b32 v61, 0x70, v1
        v_add_u32 v63, v63, v61
        v_lshlrev_b32 v62, 14, v62
        v_and_b32 v61, 0xf0, v1
        v_add_u32 v62, v62, v61""")
        oregs = [8, 12, 16, 20, 40, 44, 4, 52]
        loads = [f"buffer_load_dwordx3 v[56:58], v63, {WS}, {sLAMG} offen sc1"]
        for k in range(8): loads.append(f"buffer_load_dwordx4 v[{oregs[k]}:{oregs[k]+3}], v62, {WS}, {sRECG[k>>1]} offen offset:{(k&1)*2048} sc1")
        pm = []
        def shadow():
            a(f"""v_bfe_u32 v61, v1, 4, 2
            v_lshlrev_b32 v61, 3, v61
            v_bfe_u32 v61, {sN}, v61, 8
            s_waitcnt vmcnt({0 if self.o.get("s1d") == 2 else (1 if self.o.get("s1d") else 9)})""")
            pm.append(self.perm_inplace())
        if self.o.get("s1d"): shadow()
        W, WL, T = "v39", "v48", "v49"
        def mid():
            a(f"""v_min_f32_dpp {W}, v56, v56 row_ror:1 {DPPALL}
            v_and_b32 v50, 0x70, v1
            v_add_u32 v51, {L_YP}, v50
            v_min_f32_dpp {W}, {W}, {W} row_ror:2 {DPPALL}
            v_lshrrev_b32 {T}, 7, v1
            v_lshl_add_u32 v50, {T}, 15, v50
            v_min_f32_dpp {W}, {W}, {W} row_ror:4 {DPPALL}
            v_mov_b32 {T}, {W}
            s_nop 1
            v_permlane16_swap_b32 {W}, {T}
            v_min_f32 {W}, {W}, {T}
            v_mov_b32 {T}, {W}
            s_nop 1
            v_permlane32_swap_b32 {W}, {T}
            v_min_f32 {W}, {W}, {T}
            v_sub_f32 {W}, {W}, v56
            v_exp_f32 {W}, {W}
            s_nop 0
            v_mul_f32 {WL}, {W}, v57""")
        self.poll(loads, [(0xff, [(f"v{o_}", "v61") for o_ in oregs], True), (0xffffffff, [("v58", sN)], True)], ["v60", None],
                  shadow=None if self.o.get("s1d") else shadow, hook=self.early_job if self.o.get("thr") else None, mid=mid)
        m = pm[0]
        wsum = [f"v_add_f32_dpp {WL}, {WL}, {WL} row_ror:1 {DPPALL}", f"v_add_f32_dpp {WL}, {WL}, {WL} row_ror:2 {DPPALL}",
                f"v_add_f32_dpp {WL}, {WL}, {WL} row_ror:4 {DPPALL}\nv_mov_b32 {T}, {WL}",
                f"v_permlane16_swap_b32 {WL}, {T}\nv_add_f32 {WL}, {WL}, {T}\nv_mov_b32 {T}, {WL}",
                f"v_permlane32_swap_b32 {WL}, {T}\nv_add_f32 {WL}, {WL}, {T}", f"v_rcp_f32 {WL}, {WL}", "", ""]
        for k in range(8):
            for i in (0, 2, 1, 3):
                if k == 0: a(f"v_mul_f32_dpp v{8+i}, {W}, v{8+i} row_newbcast:0 {DPPALL}")
                else: a(f"v_fmac_f32_dpp v{8+i}, {W}, v{oregs[k]+i} row_newbcast:{k} {DPPALL}")
            if wsum[k]: a(wsum[k])
        a(f"""v_permlane32_swap_b32 v8, v10
        s_lshl_b32 {sT}, {sWAVE}, 7
        v_permlane32_swap_b32 v9, v11
        v_add_f32 v8, v8, v10
        v_add_f32 v9, v9, v11
        v_mov_b32 v10, v8
        v_mov_b32 v11, v9
        s_add_u32 {sT}, {sT}, {L_YP}
        v_permlane16_swap_b32 v8, v10
        v_permlane16_swap_b32 v9, v11
        v_add_f32 v8, v8, v10
        v_add_f32 v9, v9, v11
        v_mul_f32 v8, v8, {WL}
        v_mul_f32 v9, v9, {WL}
        v_cvt_pk_bf16_f32 v8, v8, v9
        v_mov_b32 v9, v8
        v_lshrrev_b32 {T}, 6, v1
        v_lshl_add_u32 {T}, {T}, 3, {sT}
        v_permlane32_swap_b32 v8, v9""")
        for k in range(8): a(f"v_dot2_f32_bf16 v{40+k}, v{m[0][k]}, v8, 0")
        for k in range(8): a(f"v_dot2_f32_bf16 v{40+k}, v{m[1][k]}, v9, v{40+k}")
        for k in range(4): a(f"v_add_f32_dpp v{40+k}, v{40+k}, v{40+k} row_ror:8 row_mask:0xf bank_mask:0x3")
        for k in range(4): a(f"v_add_f32_dpp v{40+k}, v{44+k}, v{44+k} row_ror:8 row_mask:0xf bank_mask:0xc")
        for k in range(2): a(f"v_add_f32_dpp v{40+k}, v{40+k}, v{40+k} row_shl:4 row_mask:0xf bank_mask:0x5")
        for k in range(2): a(f"v_add_f32_dpp v{40+k}, v{42+k}, v{42+k} row_shr:4 row_mask:0xf bank_mask:0xa")
        a(f"v_mov_b32 v2, {L_ML + 80}")
        for k in range(2): a(f"v_add_f32_dpp v{40+k}, v{40+k}, v{40+k} quad_perm:[2,3,0,1] {DPPALL}")
        a(f"s_cmp_lg_u32 {sWAVE}, 0")
        for k in range(2): a(f"v_add_f32_dpp v{40+k}, v{40+k}, v{40+k} quad_perm:[1,0,3,2] {DPPALL}")
        a(f"""ds_write_b64 {T}, v[40:41]
        s_cbranch_scc1 .Ls1_other
        v_mov_b32 v3, {sVB}
        ds_write_b32 v2, v3
        v_mov_b32 v48, 0xff
        s_cmp_eq_u32 {sL}, 3
        s_waitcnt lgkmcnt(0)
        s_barrier
        ds_read_b128 v[8:11], v51
        ds_read_b128 v[12:15], v51 offset:128
        ds_read_b128 v[16:19], v51 offset:256
        ds_read_b128 v[20:23], v51 offset:384
        s_cselect_b64 exec, 0xff, -1
        s_waitcnt lgkmcnt(2)""")
        for i in range(4): a(f"v_add_f32 v{8+i}, v{8+i}, v{12+i}")
        a("s_waitcnt lgkmcnt(0)")
        for i in range(4): a(f"v_add_f32 v{16+i}, v{16+i}, v{20+i}")
        for i in range(4): a(f"v_add_f32 v{8+i}, v{8+i}, v{16+i}")
        a(f"v_bfi_b32 v8, v48, v61, v8\nbuffer_store_dwordx4 v[8:11], v50, {WS}, {sYXP} offen sc1\ns_mov_b64 exec, -1")
        def other():
            a.label(".Ls1_other"); a("s_waitcnt lgkmcnt(0)\ns_barrier"); self.stamp(); a("s_branch .Lloader")
        self.ool.append(other)
    def wbuf(self, kk): return 8 + 4 * kk if kk < 8 else (56 + 4 * (kk - 8) if kk < 10 else 8 + 4 * (kk - 10))
    def s3addr(self, oob):
        self.a(f"""v_bfe_u32 v6, v1, 8, 2
        v_mul_u32_u24 v7, 448, v6
        v_mul_u32_u24 v6, 3584, v6
        v_bfe_u32 v4, v1, 4, 4
        v_lshl_add_u32 v6, v4, 3, v6
        v_add_u32 v6, {sWQ}, v6
        v_lshl_add_u32 v7, v4, 5, v7
        v_cmp_gt_u32 vcc, 14, v4
        v_mov_b32 v4, {oob}
        s_nop 0
        v_cndmask_b32 v7, v4, v7, vcc""")
    def s3w(self):
        for kk in range(10):
            b = self.wbuf(kk)
            self.a(f"ds_read_b64_tr_b16 v[{b}:{b+1}], v6 offset:{kk*256}\nds_read_b64_tr_b16 v[{b+2}:{b+3}], v6 offset:{kk*256+128}")
    def w0prep(self):
        self.setw()
        self.a(f"""s_and_b32 {sH0}, {sN}, 0xffff
        s_lshr_b32 {sH1}, {sN}, 16
        s_add_u32 s36, s24, {sXSo}
        s_addc_u32 s37, s25, 0
        s_mov_b32 s38, {QS - XS + 2048}""")
        self.s3addr(0x10000); self.s3w()
    def s2(self):
        a = self.a
        a("v_lshrrev_b32 v2, 7, v1\nv_mul_u32_u24 v2, 1792, v2\nv_and_b32 v3, 0x70, v1\nv_add_u32 v2, v2, v3")
        def shadow():
            a(f"""v_lshrrev_b32 v42, 1, v3
            v_lshrrev_b32 v3, 9, v1
            v_lshl_add_u32 v42, v3, 2, v42
            s_lshl_b32 {sT2}, {sCB}, 6
            v_add_u32 v42, {sT2}, v42
            v_lshlrev_b32 v43, 1, v42
            v_lshrrev_b32 v3, 2, v1
            s_lshl_b32 {sT2}, {sWAVE}, 8
            s_add_u32 {sT2}, {sT2}, {L_XO}
            v_add_u32 v3, {sT2}, v3
            ds_read_b32 v52, v3
            v_bfe_u32 v5, v1, 4, 2
            v_lshlrev_b32 v5, 3, v5
            v_bfe_u32 v5, {sN}, v5, 8
            v_mov_b32 v41, {sN}
            s_waitcnt lgkmcnt(0)
            v_lshlrev_b32 v53, 16, v52
            v_and_b32 v52, 0xffff0000, v52""")
            self.w0prep()
        self.poll([f"buffer_load_dwordx4 v[44:47], v2, {WS}, {sYXG} offen sc1", f"buffer_load_dwordx4 v[48:51], v2, {WS}, {sYXG2} offen sc1"],
                  [(0xff, [("v44", "v5"), ("v48", "v5")], True)], ["v4"], shadow=shadow)
        a(f"""v_add_f32 v44, v44, v48
        v_add_f32 v46, v46, v50
        v_add_f32 v45, v45, v49
        v_add_f32 v47, v47, v51
        v_permlane32_swap_b32 v44, v46
        s_cmp_eq_u32 {sL}, 3
        v_permlane32_swap_b32 v45, v47
        v_add_f32 v44, v44, v46
        v_add_f32 v45, v45, v47
        s_nop 0
        v_add_f32_dpp v44, v44, v44 row_ror:8 {DPPALL}
        v_add_f32_dpp v45, v45, v45 row_ror:8 {DPPALL}
        v_mov_b32 v46, v44
        v_mov_b32 v47, v45
        s_nop 0
        v_permlane16_swap_b32 v44, v46
        v_permlane16_swap_b32 v45, v47
        v_add_f32 v44, v44, v46
        v_add_f32 v45, v45, v47
        v_cvt_pk_bf16_f32 v44, v44, v45
        v_and_b32 v45, 0xffff0000, v44
        v_lshlrev_b32 v44, 16, v44
        v_add_f32 v44, v44, v53
        v_add_f32 v45, v45, v52
        v_cvt_pk_bf16_f32 v40, v44, v45""")
    def s3(self):
        a = self.a
        self.poll([f"buffer_load_dwordx4 v[44:47], v7, {XI}, 0 offen sc1", f"buffer_load_dwordx4 v[48:51], v7, {XI}, 0 offen offset:16 sc1"],
                  [self.t16([f"v{44+i}" for i in range(8)])], ["v40"], lanemask=0x3fff3fff)
        for i in range(4): a(f"v_perm_b32 v{40+i}, v{45+2*i}, v{44+2*i}, {sSELHI}")
        if self.o.get("help"): a(f"v_mov_b32 v2, {L_ML + 68}\nds_write_b32 v2, v2")
        a.label("sub_s3b")
        for i in range(8): a(f"v_mov_b32 v{44+i}, {sONES}")
        a("s_waitcnt lgkmcnt(0)")
        def bc(kk):
            bb = 44 + 4 * (kk & 1)
            for i in (0, 2): a(f"v_mov_b64_dpp v[{bb+i}:{bb+i+1}], v[{40+i}:{41+i}] row_newbcast:{kk} row_mask:0xf bank_mask:0x3")
        S, Q2, T1, T2 = "v2", "v3", "v4", "v5"
        st = [[f"v_dot2_f32_bf16 {S}, v40, {sONES}, 0", f"v_dot2_f32_bf16 {Q2}, v40, v40, 0", f"v_dot2_f32_bf16 {S}, v41, {sONES}, {S}", f"v_dot2_f32_bf16 {Q2}, v41, v41, {Q2}"],
              [f"v_dot2_f32_bf16 {S}, v42, {sONES}, {S}", f"v_dot2_f32_bf16 {Q2}, v42, v42, {Q2}", f"v_dot2_f32_bf16 {S}, v43, {sONES}, {S}", f"v_dot2_f32_bf16 {Q2}, v43, v43, {Q2}"]]
        for ctl in ["row_ror:8", "row_ror:4", "row_ror:2", "row_ror:1"]:
            st.append([f"v_add_f32_dpp {S}, {S}, {S} {ctl} {DPPALL}", f"v_add_f32_dpp {Q2}, {Q2}, {Q2} {ctl} {DPPALL}"])
        st[-1] += [f"v_mov_b32 {T1}, {S}", f"v_mov_b32 {T2}, {Q2}"]
        st.append([f"v_permlane16_swap_b32 {S}, {T1}", f"v_permlane16_swap_b32 {Q2}, {T2}", f"v_add_f32 {S}, {S}, {T1}", f"v_add_f32 {Q2}, {Q2}, {T2}", f"v_mov_b32 {T1}, {S}", f"v_mov_b32 {T2}, {Q2}"])
        st.append([f"v_permlane32_swap_b32 {S}, {T1}", f"v_permlane32_swap_b32 {Q2}, {T2}", f"v_add_f32 {S}, {S}, {T1}", f"v_add_f32 {Q2}, {Q2}, {T2}"])
        st.append([f"v_mul_f32 {S}, {hex(f2u(1.0/448))}, {S}", f"v_mul_f32 {Q2}, {hex(f2u(1.0/448))}, {Q2}", f"v_fma_f32 {Q2}, -{S}, {S}, {Q2}"])
        st.append([f"v_max_f32 {Q2}, 0, {Q2}", f"v_add_f32 {Q2}, {hex(f2u(1e-5))}, {Q2}", f"v_rsq_f32 {Q2}, {Q2}"])
        st.append([f"v_mul_f32 {S}, {S}, {Q2}"])
        bc(0)
        for kk in range(14):
            if kk + 1 < 14: bc(kk + 1)
            else: a("s_nop 1")
            if kk >= 10: a(f"s_waitcnt lgkmcnt({(13-kk)*2})")
            b = self.wbuf(kk); bb = 44 + 4 * (kk & 1)
            a(f"v_mfma_f32_16x16x32_bf16 v[52:55], v[{b}:{b+3}], v[{bb}:{bb+3}], {'0' if kk == 0 else 'v[52:55]'}")
            if 1 <= kk <= 4:
                k2 = kk + 9; b2 = self.wbuf(k2)
                a(f"ds_read_b64_tr_b16 v[{b2}:{b2+1}], v6 offset:{k2*256}\nds_read_b64_tr_b16 v[{b2+2}:{b2+3}], v6 offset:{k2*256+128}")
            if kk < len(st):
                for i in st[kk]: a(i)
        a(f"""v_lshrrev_b32 v48, 4, v1
        v_mov_b32 v49, {sN}
        v_lshlrev_b32 v50, 1, v1
        v_add_u32 v50, {QS - XS}, v50
        s_mov_b32 {sT}, 0x10001
        s_nop 2""")
        for i in range(4): a(f"v_mul_f32_dpp v{44+i}, v{52+i}, {S} row_shl:8 {DPPALL}")
        for i in range(4): a(f"v_fma_f32 v{52+i}, v{52+i}, {Q2}, -v{44+i}")
        a(f"""v_cvt_pk_bf16_f32 v52, v52, v53
        v_cvt_pk_bf16_f32 v53, v54, v55
        v_perm_b32 v40, v52, v49, {sSELLO}
        v_perm_b32 v41, v52, v49, {sSELHI}
        v_perm_b32 v42, v53, v49, {sSELLO}
        v_perm_b32 v43, v53, v49, {sSELHI}""")
    def q_check(self): return self.t16(["v40", "v41", "v44", "v45"])
    def sub_g0(self):
        a = self.a
        a.label("sub_g0issue")
        a(f"""s_add_u32 {sT4}, {sQSG}, {XCCS - QS}
        v_and_b32 v52, 0x1ff, v1
        v_lshlrev_b32 v49, 1, v1
        buffer_load_dwordx2 v[50:51], v52, {WS}, {sT4} offen sc1
        buffer_load_dwordx4 v[40:43], v49, {WS}, {sQSG} offen sc1
        buffer_load_dwordx4 v[44:47], v49, {WS}, {sQSG} offen offset:16 sc1""")
        self.ret()
        a.label("sub_g0check")
        self.validate([self.q_check(), (0xffffffff, [("v51", sN)], True)], ["v48", None])
        a(f"s_cbranch_vccz .Lg0ok\ns_cmp_eq_u32 {sSPIN}, 0\ns_cbranch_scc1 .Lg0bail\ns_sub_u32 {sSPIN}, {sSPIN}, 1")
        self.ret()
        a.label(".Lg0ok")
        a(f"""s_getreg_b32 {sT2}, hwreg(HW_REG_XCC_ID, 0, 4)
        v_cmp_ne_u32 vcc, {sT2}, v50
        s_nop 1
        s_cmp_eq_u64 vcc, 0
        s_cselect_b32 {sFAST}, 1, 0""")
        a.label(".Lg0bail")
        for i in range(4): a(f"v_perm_b32 v{40+i}, v{41+2*i}, v{40+2*i}, {sSELHI}")
        a(f"""v_add_u32 v48, {L_Q}, v1
        ds_write_b128 v48, v[40:43]
        s_add_u32 {sT}, {sFAST}, 1
        v_mov_b32 v50, {sT}
        v_mov_b32 v53, {L_ML + 64}
        s_waitcnt lgkmcnt(0)
        ds_write_b32 v53, v50
        s_mov_b32 s2, 1""")
        self.ret()

    def prologue(self):
        a = self.a; o = self.o
        a(f"""s_cmp_ge_u32 s2, 256
        s_cbranch_scc1 .Lend
        s_load_dwordx16 s[64:79], s[0:1], 0
        s_load_dwordx8 s[80:87], s[0:1], 64
        s_load_dwordx2 s[88:89], s[0:1], 96
        {"s_memrealtime s[94:95]" if self.stamps else ""}
        v_lshrrev_b32 v1, 6, v0
        s_and_b32 {sG}, s2, 7
        v_readfirstlane_b32 {sWAVE}, v1
        s_lshr_b32 {sC}, s2, 3
        v_and_b32 v1, 63, v0
        v_lshlrev_b32 v1, 4, v1
        s_mov_b32 {sSELLO}, 0x05040100
        s_mov_b32 {sSELHI}, 0x07060302
        s_mov_b32 {sSC}, {hex(f2u(SCALE))}
        s_mov_b32 {sONES}, 0x3f803f80
        s_mov_b32 {sSPIN}, 0x40000
        s_mov_b32 {sFAST}, 0
        s_mov_b32 {sL}, 0
        s_mov_b32 {sWQ}, {L_WQA}
        s_lshl_b32 {sLDSW}, {sWAVE}, 14
        s_lshl_b32 {sAoff}, {sG}, 23
        s_lshl_b32 {sT}, {sC}, 13
        s_add_u32 {sAoff}, {sAoff}, {sT}
        s_add_u32 {sBoff}, {sAoff}, {12288*512}
        s_lshl_b32 {sT}, {sWAVE}, 21
        s_add_u32 {sAoff}, {sAoff}, {sT}
        s_lshl_b32 {sT}, {sWAVE}, 18
        s_add_u32 {sBoff}, {sBoff}, {sT}""")
        self.consts()
        a("s_waitcnt lgkmcnt(0)")
        def srd(d, lo, size): a(f"s_mov_b32 s{d}, s{lo}\ns_mov_b32 s{d+1}, s{lo+1}\ns_mov_b32 s{d+2}, {hex(size)}\ns_mov_b32 s{d+3}, 0x20000")
        a(f"s_load_dword {sN}, s[88:89], {EPOCH}")
        srd(28, 70, 3670016); srd(32, 72, 3670016); srd(36, 64, 896)
        a(f"""s_cmp_eq_u32 {sWAVE}, 1
        s_cselect_b32 s28, s80, s28
        s_cselect_b32 s29, s81, s29
        s_cmp_eq_u32 {sWAVE}, 3
        s_cselect_b32 s32, s82, s32
        s_cselect_b32 s33, s83, s33
        s_mov_b32 m0, {L_SCR}
        s_cmp_ge_u32 {sWAVE}, 2
        s_cbranch_scc1 .Lst_wo
        {"s_branch .Lst_j" if o.get("notwq") == 2 else ("s_cmp_eq_u32 " + sWAVE + ", 0" + chr(10) + "s_cbranch_scc1 .Lst_j" if o.get("notwq") == 1 else "")}
        v_lshrrev_b32 v58, 7, v1
        v_lshlrev_b32 v58, 13, v58
        v_and_b32 v59, 0x70, v1
        v_lshl_add_u32 v58, v59, 3, v58
        s_lshl_b32 {sT}, {sG}, 10
        s_mul_i32 {sT2}, {sC}, {14*8192}
        s_add_u32 {sT}, {sT}, {sT2}
        s_add_u32 {sT2}, {sT}, {6*8192}
        buffer_load_dword v58, {RL}, {sT} offen {o['pWT']} lds
        buffer_load_dword v58, {RL}, {sT2} offen {o['pWT']} lds
        s_branch .Lst_j""")
        a.label(".Lst_wo")
        if o.get("wob"): a(f"s_cmp_eq_u32 {sWAVE}, 3\ns_cbranch_scc1 .Lst_j")
        a(f"""v_lshlrev_b32 v58, 3, v1
        s_lshl_b32 {sT2}, {sG}, 5
        s_add_u32 {sT2}, {sT2}, {sC}
        s_mul_i32 {sT2}, {sT2}, 14336
        s_add_u32 {sT3}, {sT2}, 6144
        buffer_load_dword v58, {WO}, {sT2} offen lds
        buffer_load_dword v58, {WO}, {sT3} offen lds""")
        a.label(".Lst_j")
        a(f"s_mov_b64 s[28:29], s[70:71]\ns_mov_b32 {sRL}, {L_WQA}")
        self.call("sub_wq")
        L = self.only_wave(0)
        self.s3addr(0x1000)
        a(f"v_lshrrev_b32 v47, 1, v7\nbuffer_load_dwordx4 v[40:43], v47, {XI}, 0 offen")
        a.label(L)
        a(f"""v_and_b32 v48, 0x70, v1
        v_lshrrev_b32 v48, 1, v48
        v_lshrrev_b32 v49, 9, v1
        v_lshl_add_u32 v48, v49, 2, v48
        s_sub_u32 {sT2}, {sC}, 28
        s_lshl_b32 {sT2}, {sT2}, 2
        s_add_u32 {sT2}, {sT2}, {sWAVE}
        s_lshl_b32 {sT2}, {sT2}, 6
        v_add_u32 v48, {sT2}, v48
        buffer_load_dword v53, v48, {XI}, 0 offen""")
        tok0 = self.vm
        srd(8, 66, 0x4000000); srd(12, 68, 0x4000000)
        def dmaX(t, loff):
            self.aoff(t, sRS); a(f"s_mov_b32 s{36+t}, {sRS}\ns_add_u32 {sRL}, {sLDSW}, {loff}"); self.call("sub_dmaX"); self.vm += 8
        dmaX(6, L_BB)
        srd(24, 88, WS_SIZE); srd(16, 76, 0x4000000); srd(20, 78, 0x4000000)
        a(f"""s_mov_b64 s[44:45], s[72:73]
        s_mov_b64 s[46:47], s[82:83]
        s_mov_b64 s[48:49], s[84:85]
        s_mov_b64 s[32:33], s[72:73]
        s_mov_b64 s[28:29], s[80:81]
        s_mov_b32 s2, 0
        s_add_u32 {sPV}, {sLDSW}, {L_BB}
        s_mov_b32 {sT5}, 1""")
        if self.stamps: a(f"s_mov_b32 s{ST0}, s94")
        a(f"""s_cmp_ge_u32 {sC}, 14
        s_cselect_b32 {sT2}, 1, 0
        s_mul_i32 {sT3}, {sT2}, 14
        s_sub_u32 {sT3}, {sC}, {sT3}
        s_lshl_b32 {sT4}, {sG}, 1
        s_add_u32 {sT4}, {sT4}, {sT2}
        s_mul_i32 {sT4}, {sT4}, {256*896}
        s_lshl_b32 {sT3}, {sT3}, 6
        s_add_u32 {sT4}, {sT4}, {sT3}
        s_mul_i32 {sT}, {sWAVE}, {64*896}
        s_add_u32 {sWOr[0]}, {sT4}, {sT}
        s_add_u32 {sWOr[1]}, {sWOr[0]}, {8*896}
        s_add_u32 {sWOr[2]}, {sWOr[0]}, {16*896}
        s_add_u32 {sWOr[3]}, {sWOr[0]}, {24*896}
        s_lshl_b32 {sT}, {sG}, 16
        s_lshl_b32 {sT3}, {sC}, 11
        s_add_u32 {sRECP}, {sT}, {sT3}
        s_lshl_b32 {sT3}, {sT2}, 10
        s_add_u32 {sT}, {sT}, {sT3}
        s_lshl_b32 {sT3}, {sWAVE}, 8
        s_add_u32 {sRECG[0]}, {sT}, {sT3}
        s_add_u32 {sRECG[1]}, {sRECG[0]}, 4096
        s_add_u32 {sRECG[2]}, {sRECG[0]}, 8192
        s_add_u32 {sRECG[3]}, {sRECG[0]}, 12288
        s_lshl_b32 {sT}, {sG}, 10
        s_add_u32 {sT}, {sT}, {LAM}
        s_lshl_b32 {sT3}, {sC}, 4
        s_add_u32 {sLAMP}, {sT}, {sT3}
        s_lshl_b32 {sT3}, {sT2}, 9
        s_add_u32 {sLAMG}, {sT}, {sT3}
        s_mul_i32 {sT}, {sG}, 28
        s_add_u32 {sT}, {sT}, {sC}
        s_lshl_b32 {sT}, {sT}, 7
        s_add_u32 {sYXP}, {sT}, {YX}
        s_lshl_b32 {sT}, {sG}, 11
        s_add_u32 {sXSo}, {sT}, {XS}
        s_add_u32 {sQSG}, {sT}, {QS}
        s_lshl_b32 {sT3}, {sC}, 6
        s_add_u32 {sQSP}, {sQSG}, {sT3}
        s_waitcnt lgkmcnt(0)
        s_sub_u32 {sCB}, {sC}, 28
        s_lshl_b32 {sCB}, {sCB}, 2
        s_add_u32 {sCB}, {sCB}, {sWAVE}
        s_lshl_b32 {sT}, {sG}, 15
        s_lshl_b32 {sT3}, {sCB}, 7
        s_add_u32 {sT}, {sT}, {sT3}
        s_add_u32 {sYXG}, {sT}, {YX}
        s_add_u32 {sYXG2}, {sYXG}, {8*1792}
        s_add_u32 {sN}, {sN}, {hex(STEP)}
        s_and_b32 {sH0}, {sN}, 0xffff
        s_lshr_b32 {sH1}, {sN}, 16
        s_mov_b32 {sVB}, {o['kbpre']}""")
        dmaX(7, L_BB + 8192)
        a(f"s_mov_b32 {sRL}, {L_WQB}")
        if not o.get("nowqb"): self.call("sub_wq")
        a(f"""v_mov_b32 v46, 0
        v_mov_b32 v47, 0
        v_mov_b32 v45, {L_ML + 64}
        ds_write_b64 v45, v[46:47]
        v_lshrrev_b32 v45, 1, v1
        v_add_u32 v45, {L_Z}, v45
        ds_write_b64 v45, v[46:47]
        s_waitcnt lgkmcnt(0)""")
        self.waitvm(tok0)
        a(f"""s_barrier
        v_lshrrev_b32 v48, 2, v1
        s_lshl_b32 {sT}, {sWAVE}, 8
        s_add_u32 {sT}, {sT}, {L_XO}
        v_add_u32 v48, {sT}, v48
        ds_write_b32 v48, v53""")
        L = self.only_wave(0)
        self.s3w()
        self.call("sub_s3b")
        a(f"""s_getreg_b32 {sT2}, hwreg(HW_REG_XCC_ID, 0, 4)
        s_mul_i32 {sT3}, {sC}, 48
        s_sub_u32 {sT3}, {XCCS - QS}, {sT3}
        v_writelane_b32 v40, {sT2}, 1
        v_writelane_b32 v41, {sN}, 1
        v_writelane_b32 v48, {sT3}, 1
        s_mov_b32 exec_lo, 0x10003
        s_mov_b32 exec_hi, 0x10001
        buffer_store_dwordx4 v[40:43], v48, {WS}, {sQSP} offen sc1
        s_mov_b64 exec, -1""")
        if o.get("gw", 0): a("s_mov_b32 s2, 1")
        self.consts()
        a.label(L)
        if o.get("ss"): self.stamp()
        g0 = o["g0"]
        for t in range(g0): self.loadK(t)
        L = self.only_wave(o.get("gw", 0)); self.call("sub_g0issue"); a.label(L)
        for t in range(g0, 8):
            self.loadK(t)
            L = self.only_wave(o.get("gw", 0))
            a(f"s_cmp_lg_u32 s2, 0\ns_cbranch_scc1 {L}\ns_waitcnt vmcnt(8)")
            if t == 7: a.label(".Lg0loop")
            self.call("sub_g0check")
            a(f"s_cmp_lg_u32 s2, 0\ns_cbranch_scc1 {L}")
            self.call("sub_g0issue")
            if t == 7: a("s_waitcnt vmcnt(0)\ns_branch .Lg0loop")
            a.label(L)
        tokK = self.vm
        if o.get("ss"): self.stamp()
        a(f"s_add_u32 {sN}, {sN}, {hex(STEP)}")
        self.loadV(0); tokV1 = self.loadV(1)
        a(f"v_mov_b32 v46, {L_ML + 64}")
        a.label(".Lqflag")
        a(f"""ds_read_b32 v44, v46
        s_waitcnt lgkmcnt(0)
        v_readfirstlane_b32 {sFAST}, v44
        s_nop 3
        s_cmp_eq_u32 {sFAST}, 0
        s_cbranch_scc1 .Lqflag
        s_sub_u32 {sFAST}, {sFAST}, 1""")
        self.waitvm(tokK)
        self.call("sub_qka0"); self.loadV(2)
        self.call("sub_qka1")
        tokV3 = self.loadV(3)
        self.call("sub_pvlds")
        self.waitvm(tokV1); self.call("sub_pv01")
        nt_ = o.get("kbtail", 0)
        for t in range(o["kbpre"] - nt_): self.job(t, sBoff, sLDSW)
        if o.get("kbw"):
            a(f"s_mov_b32 {sT}, {o['kbw']}\ns_bitcmp1_b32 {sT}, {sWAVE}\ns_cbranch_scc0 .Lkbw")
            self.job(o["kbpre"], sBoff, sLDSW)
            a(f"s_add_u32 {sVB}, {sVB}, 1")
            a.label(".Lkbw")
        tokV4 = self.loadV(4)
        self.waitvm(tokV3); self.call("sub_pv23")
        tokV5 = self.loadV(5)
        self.waitvm(tokV4); self.call("sub_pv4"); self.vm += 4
        for t in range(o["kbpre"] - nt_, o["kbpre"]): self.job(t, sBoff, sLDSW); self.vm += 8
        self.waitvm(tokV5)
        a("s_branch sub_pv5")
    def build(self):
        a = self.a; o = self.o
        self.prologue()
        stepsA = [(t, r) for t in range(8) for r in range(4)]
        xyl = [f"buffer_load_dwordx4 a[{t*32+n*4}:{t*32+n*4+3}], v3, {VA}, s{42+t} offen offset:{vimm(n)} {o['pXY2']}" for t in range(2) for n in range(8)]
        def l0():
            a.label("sub_qka0"); self.qka(0); self.ret()
            a.label("sub_qka1"); self.qka(1); self.softmax(8, 8); self.ret()
            steps0 = stepsA[:24]
            a.label("sub_pv01"); self.pv(steps0, 0, 8, prologue=True); self.ret()
            a.label("sub_pv23"); self.pv(steps0, 8, 16); self.ret()
            a.label("sub_pv4"); self.ldwo(); self.pv(steps0, 16, 20); self.ret()
            a.label("sub_pv5"); self.pv(steps0, 20, 24); a("s_branch .Lchain")
        self.ool.append(l0)
        a.label(".LlayerA")
        self.qka(0); self.qka(1, extra=xyl[:8])
        self.softmax(8, 8)
        ex = {2 * k: xyl[8 + k] for k in range(8)}
        ex[9] = f"v_add_u32 v23, {sPV}, v1\nds_read_b128 v[96:99], v23 offset:8192\nds_read_b128 v[100:103], v23 offset:9216"
        ex[17] = "v_bfe_u32 v16, v1, 4, 3\nv_bfe_u32 v17, v1, 7, 1\nv_lshl_add_u32 v16, v17, 5, v16"
        ex[18] = "v_mul_u32_u24 v16, 896, v16\nv_bfe_u32 v17, v1, 8, 2\nv_lshl_add_u32 v16, v17, 4, v16"
        for k in range(4): ex[19 + k] = f"buffer_load_dwordx4 v[{24+4*k}:{27+4*k}], v16, {WO}, {sWOr[k]} offen"
        ex[23] = "s_waitcnt vmcnt(4) lgkmcnt(0)"
        self.pv(stepsA, 0, 32, prologue=True, extra=ex)
        a.label(".Lchain")
        self.stamp(); self.s0(); self.stamp()
        a(f"s_cmp_ge_u32 {sC}, 28\ns_cbranch_scc1 .Lno_s1")
        self.s1()
        self.stamp()
        a(f"s_cmp_eq_u32 {sL}, 3\ns_cbranch_scc1 .Lfin\ns_cmp_lg_u32 {sL}, 2\ns_cbranch_scc1 .Lprep")
        self.call("sub_breg")
        a.label(".Lprep")
        self.w0prep()
        a.label(".Ls3")
        def s2cu():
            a.label(".Lno_s1")
            a(f"v_mov_b32 v16, {L_ML + 80}\nv_mov_b32 v17, {max(o['s2pre'], o['kbpre'])}\nds_write_b32 v16, v17\ns_waitcnt vmcnt(0) lgkmcnt(0)\ns_barrier")
            self.stamp()
            a(f"s_cmp_lg_u32 {sL}, 0\ns_cbranch_scc1 .Ls2a")
            for t in range(o["kbpre"], o["s2pre"]): self.job(t, sBoff, sLDSW)
            a(f"s_mov_b32 {sVB}, {max(o['s2pre'], o['kbpre'])}\ns_branch .Ls2b")
            a.label(".Ls2a")
            a(f"s_cmp_eq_u32 {sL}, 3\ns_cbranch_scc1 .Ls2b\ns_call_b64 s[0:1], .Ljobs")
            a.label(".Ls2b")
            a(f"""s_cmp_lt_u32 {sCB}, 14
            s_cbranch_scc0 .Lloader
            s_cmp_lg_u32 {sL}, 3
            s_cbranch_scc1 .Ls2
            s_cmp_lg_u32 {sG}, 0
            s_cbranch_scc1 .Lfin""")
            a.label(".Ls2")
            self.s2()
            a(f"""s_cbranch_scc1 .Lout
            v_perm_b32 v44, v40, v41, {sSELLO}
            v_perm_b32 v45, v40, v41, {sSELHI}
            s_cmp_eq_u32 {sFAST}, 1
            s_mov_b32 exec_lo, 0xff
            s_mov_b32 exec_hi, 0xff""")
            self.local_store(f"buffer_store_dwordx2 v[44:45], v43, {WS}, {sXSo} offen")
            a(f"""s_mov_b64 exec, -1
            ds_write_b32 v3, v40
            s_cmp_eq_u32 {sWAVE}, 0
            s_cbranch_scc1 .Ls3
            s_waitcnt lgkmcnt(0)
            s_branch .Lloader""")
        self.ool.insert(0, s2cu)
        self.stamp()
        self.s3()
        a(f"""s_cmp_eq_u32 s2, 0
        s_cbranch_scc1 .Lret
        s_cmp_eq_u32 {sFAST}, 1
        s_mov_b32 exec_lo, {sT}
        s_mov_b32 exec_hi, {sT}""")
        self.local_store(f"buffer_store_dwordx4 v[40:43], v48, {WS}, {sQSP} offen")
        a("s_mov_b64 exec, -1")
        self.stamp()
        def shadow():
            self.consts()
            a(f"v_add_u32 v51, {L_Q}, v1")
            self.cinit(); self.advance()
        self.poll([f"buffer_load_dwordx4 v[40:43], v50, {XI}, 0 offen sc1", f"buffer_load_dwordx4 v[44:47], v50, {XI}, 0 offen offset:16 sc1"],
                  [self.q_check()], ["v48"], shadow=shadow)
        for i in range(4): a(f"v_perm_b32 v{40+i}, v{41+2*i}, v{40+2*i}, {sSELHI}")
        a(f"ds_write_b128 v51, v[40:43]\ns_cmp_eq_u32 {sL}, 2\ns_waitcnt lgkmcnt(0)")
        a.label(".Lqready")
        a("s_barrier")
        if self.stamps: self.stamp(); a(f"s_cmp_eq_u32 {sL}, 2")
        a(f"s_cbranch_scc1 .LlayerA\ns_cmp_eq_u32 {sL}, 1\ns_cbranch_scc1 .Llayer1")
        a.label(".Llayer3")
        self.qk2(); self.ldwo()
        self.pv([(t, r) for t in range(2) for r in range(4)], 0, 8, prologue=True)
        a("s_branch .Lchain")
        a.label(".Lret"); self.ret()
        a.label(".Llayer1")
        self.qkb()
        a(f"s_waitcnt vmcnt({1 if o.get('wob') else 0})\ns_barrier")
        a.label("sub_pvlds"); self.pvlds(); self.retif0(); self.ldwo()
        a("s_branch .Lchain")
        a.label(".Lloader")
        a(f"s_cmp_eq_u32 {sL}, 3\ns_cbranch_scc1 .Lfin")
        self.setw(); self.consts()
        a(f"s_cmp_lg_u32 {sL}, 0\ns_cbranch_scc1 .Lld_n0")
        a(f"""v_mov_b32 v44, {L_ML + 80}
        ds_read_b32 v45, v44
        s_waitcnt lgkmcnt(0)
        v_readfirstlane_b32 s0, v45
        s_lshl_b32 s1, {sWAVE}, 18
        s_sub_u32 s1, {sBoff}, s1""")
        def own(jn):
            L = a.newlabel("jo"); a(f"s_cmp_gt_u32 {sVB}, {jn}\ns_cbranch_scc1 {L}"); self.job(jn, sBoff, sLDSW); a.label(L)
        def w0s(jn, w):
            L = self.only_wave(w); a(f"s_cmp_gt_u32 s0, {jn}\ns_cbranch_scc1 {L}"); self.job(jn, "s1", 0); a.label(L)
        if o["kbpre"] < 1: own(0); w0s(0, 1)
        if o["kbpre"] < 2: own(1); w0s(1, 2)
        own(2); w0s(2, 3); w0s(3, 2)
        L = self.only_wave(1); self.call("sub_repair"); a.label(L)
        a(f"s_cmp_gt_u32 {sVB}, 3\ns_cbranch_scc1 .Lld_pre")
        own(3)
        a("s_waitcnt vmcnt(6)\ns_branch .Lhelp" if o["kbpre"] < 2 else "s_branch .Lhelp")
        a.label(".Lld_pre")
        if o["kbpre"] < 2: a("s_waitcnt vmcnt(0)")
        a.label(".Lhelp")
        if o.get("wob"):
            a(f"""s_cmp_lg_u32 {sL}, 0
            s_cbranch_scc1 .Lld_done
            v_lshlrev_b32 v58, 3, v1
            s_lshl_b32 {sT2}, {sG}, 5
            s_add_u32 {sT2}, {sT2}, {sC}
            s_mul_i32 {sT2}, {sT2}, 14336
            s_mul_i32 {sT3}, {sWAVE}, 4864
            s_add_u32 {sT2}, {sT2}, {sT3}
            s_sub_u32 {sT2}, {sT2}, 4864
            s_mov_b32 m0, {L_SCR}
            s_mov_b32 exec_hi, 0x3f
            buffer_load_dword v58, {WO}, {sT2} offen lds
            s_mov_b64 exec, -1""")
        if o.get("help"):
            a(f"""s_cmp_lg_u32 {sL}, 0
            s_cbranch_scc1 .Lld_done
            v_mov_b32 v44, {L_ML + 68}
            v_lshlrev_b32 v46, 3, v1
            s_xor_b32 {sRS}, {sBoff}, {o.get('hx', 1) << 23}
            s_mov_b32 m0, {L_SCR}""")
            offs = [TILE, 0]
            for k, off in enumerate(offs[:o["help"]]):
                for extra in (0, 1):
                    Lx = a.newlabel("hp")
                    if extra: a(f"s_cmp_lg_u32 {sWAVE}, {1 + k}\ns_cbranch_scc1 {Lx}")
                    a(f"""s_waitcnt vmcnt(0)
                    ds_read_b32 v45, v44
                    s_waitcnt lgkmcnt(0)
                    v_readfirstlane_b32 {sT}, v45
                    s_nop 3
                    s_cmp_lg_u32 {sT}, 0
                    s_cbranch_scc1 .Lld_done""")
                    if extra: a(f"s_add_u32 {sT}, {sRS}, {off - (1 + k) * 262144 + (1 << 23)}\ns_sub_u32 {sT}, {sT}, {1 << 23}")
                    else: a(f"s_add_u32 {sT}, {sRS}, {off}")
                    a(f"buffer_load_dword v46, {VBs}, {sT} offen lds")
                    a.label(Lx)
        a("s_branch .Lld_done")
        a.label(".Lld_n0")
        a(f"s_cmp_ge_u32 {sC}, 28\ns_cbranch_scc1 .Lld_done\ns_call_b64 s[0:1], .Ljobs")
        a.label(".Lld_done")
        self.cinit()
        self.stamp(); self.stamp()
        self.advance()
        a(f"s_cmp_eq_u32 {sL}, 2\ns_branch .Lqready")
        a.label(".Ljobs")
        a(f"s_cmp_eq_u32 {sL}, 1\ns_cbranch_scc1 .Lld_1")
        self.call("sub_breg")
        a("s_waitcnt lgkmcnt(0)\ns_setpc_b64 s[0:1]")
        a.label(".Lld_1")
        L = self.only_wave(1); self.call("sub_repair"); a("s_waitcnt vmcnt(0)"); a.label(L)
        a("s_setpc_b64 s[0:1]")
        a.label(".Lout")
        a(f"""s_mov_b32 s36, s48
        s_mov_b32 s37, s49
        s_mov_b32 s38, 896
        s_mov_b32 exec_lo, 0xff
        s_mov_b32 exec_hi, 0xff
        buffer_store_dword v40, v42, {XI}, 0 offen
        s_mov_b64 exec, 1
        s_cmp_lg_u32 {sCB}, 0
        s_cbranch_scc1 .Lnoep
        v_mov_b32 v43, {EPOCH}
        buffer_store_dword v41, v43, {WS}, 0 offen""")
        a.label(".Lnoep")
        a("s_mov_b64 exec, -1")
        a.label(".Lfin")
        if self.stamps:
            a(f"s_mov_b32 {sT5}, {NSTAMP-1}")
            self.stamp(True)
            a(f"""s_lshl_b32 {sT}, {sC}, 3
            s_add_u32 {sT}, {sT}, {sG}
            s_lshl_b32 {sT}, {sT}, 2
            s_add_u32 {sT}, {sT}, {sWAVE}
            s_mul_i32 {sT}, {sT}, {NSTAMP*8}
            s_add_u32 {sT}, {sT}, {STAMP}
            v_mov_b32 v8, 0""")
            for i in range(NSTAMP):
                a(f"v_mov_b32 v10, s{ST0+i}\nv_mov_b32 v11, 0\nbuffer_store_dwordx2 v[10:11], v8, {WS}, {sT} offen offset:{i*8}\ns_nop 1")
        a.label(".Lend")
        a("s_endpgm")
        k = 0
        while k < len(self.ool): self.ool[k](); k += 1
        self.subs_mem(); self.sub_g0()
        return "\n".join(l.rstrip() for l in wrap(a.text()).split("\n"))

if __name__ == "__main__":
    open("m_a.s", "w").write(G(stamps=(0, 1)).build())
    open("m_d.s", "w").write(G(stamps=(2, 3), pst=1).build())
    open("m.s", "w").write(G().build())
```

```python
import sys, struct
from asmlib import *

BLK = 0x100000
REC = 0
YX  = 0x80000
LAM = 0xC0000
XS  = 0xC2000
QS  = 0xE0000
XCCS = 0xF0000
EPOCH = 0xD0000
STAMP = 0x600000
WS_SIZE = 0x800000
L_KB = 0
L_BB = 65536
L_WQA = 131072
L_WQB = L_WQA + 14336
L_ML = L_WQB + 14336
L_Q = L_ML + 128
L_YP = L_Q + 1024
L_SCR = L_YP + 512
L_Z = L_SCR + 256
L_XO = L_Z + 512
LDS_TOTAL = 163840
assert L_XO + 1024 <= LDS_TOTAL
SCALE = 0.0625 * 1.4426950408889634
STEP = 0x01010101
def f2u(x): return struct.unpack("<I", struct.pack("<f", x))[0]

sWAVE, sG, sC = "s3", "s4", "s5"
sSELLO, sSELHI = "s6", "s7"
KA, VA, KBs, VBs, WS, RL, WO, XI = "s[8:11]", "s[12:15]", "s[16:19]", "s[20:23]", "s[24:27]", "s[28:31]", "s[32:35]", "s[36:39]"
EXS = "s[40:41]"
sRS, sRL, sWQ, sONES = "s50", "s51", "s52", "s53"
sAoff, sBoff, sT, sSC, sFAST, sL = "s54", "s55", "s56", "s57", "s58", "s59"
sT2, sT3, sSPIN, sLDSW = "s60", "s61", "s62", "s63"
RET = "s[64:65]"
sPV, sT4, sT5 = "s66", "s67", "s68"
sRECP, sLAMP, sLAMG, sYXP, sYXG, sYXG2, sXSo, sQSG, sQSP = ["s%d" % i for i in range(69, 78)]
sRECG = ["s78", "s79", "s80", "s81"]
sWOr = ["s82", "s83", "s84", "s85"]
sH0, sH1, sCB, sVB, sN = "s86", "s87", "s88", "s89", "s90"
ST0, NSTAMP = 91, 11
TILE = 1048576
vNM, vL, vPM = "v60", "v61", "v62"
DPPALL = "row_mask:0xf bank_mask:0xf"
ACC = 16
def kimm(n): return (n & 1) * 1024 + (n >> 1) * 128
def vimm(n): return (n >> 1) * 512 + (n & 1) * 256

class G:
    def __init__(self, stamps=None, **opt):
        self.a = Asm(); self.stamps = stamps; self.vm = 0; self.ool = []
        self.o = dict(g0=5, gw=3, wob=1, s2pre=3, thr=8, kbpre=0, dry=0, pA="nt", pXY="", pXY2="", pB="nt", pWT="", pWQ="nt")
        self.o.update(opt)
    def stamp(self, always=False):
        if not self.stamps: return
        a = self.a; L = a.newlabel("st")
        if not always:
            a(f"s_cmp_lt_u32 {sL}, {self.stamps[0]}\ns_cbranch_scc1 {L}\ns_cmp_gt_u32 {sL}, {self.stamps[1]}\ns_cbranch_scc1 {L}")
        a(f"s_cmp_ge_u32 {sT5}, {NSTAMP}\ns_cbranch_scc1 {L}")
        a(f"s_memrealtime s[0:1]\ns_mov_b32 m0, {sT5}\ns_waitcnt lgkmcnt(0)\ns_movreld_b32 s{ST0}, s0\ns_add_u32 {sT5}, {sT5}, 1")
        a.label(L)
    def vmem(self, ins): self.a(ins); self.vm += 1; return self.vm
    def waitvm(self, tok):
        n = self.vm - tok
        if n <= 63: self.a(f"s_waitcnt vmcnt({n})")
    def call(self, name): self.a(f"s_call_b64 {RET}, {name}")
    def ret(self): self.a(f"s_setpc_b64 {RET}")
    def only_wave(self, w):
        L = self.a.newlabel("ow"); self.a(f"s_cmp_lg_u32 {sWAVE}, {w}\ns_cbranch_scc1 {L}"); return L
    def retif0(self): self.a(f"s_cmp_eq_u32 {sL}, 0\ns_cbranch_scc1 .Lret")
    def local_store(self, ins):
        a = self.a; Ls, Lb = a.newlabel("ss"), a.newlabel("sb")
        a(f"s_cbranch_scc0 {Ls}\n{ins}"); a.label(Lb)
        self.ool.append(lambda: (a.label(Ls), a("\n".join(i + " sc1" for i in ins.split("\n")) + f"\ns_branch {Lb}")))
    def validate(self, groups, tmp):
        a = self.a; accs = []
        for gi, (mask, items, inplace) in enumerate(groups):
            t = tmp[gi]
            if inplace:
                for r, tg in items: a(f"v_xor_b32 {r}, {tg}, {r}")
                rs = [r for r, _ in items]
                if len(rs) == 1: accs.append(rs[0]); continue
                if len(rs) == 2: a(f"v_or_b32 {t}, {rs[0]}, {rs[1]}")
                else:
                    a(f"v_or3_b32 {t}, {rs[0]}, {rs[1]}, {rs[2]}"); k = 3
                    while k < len(rs):
                        if k + 1 < len(rs): a(f"v_or3_b32 {t}, {t}, {rs[k]}, {rs[k+1]}"); k += 2
                        else: a(f"v_or_b32 {t}, {t}, {rs[k]}"); k += 1
            else:
                a(f"v_xor_b32 {t}, {items[0][1]}, {items[0][0]}")
                for r, tg in items[1:]: a(f"v_bitop3_b32 {t}, {t}, {r}, {tg} bitop3:0xf6")
            if mask != 0xffffffff: a(f"v_and_b32 {t}, {hex(mask)}, {t}")
            accs.append(t)
        for t in accs[1:]: a(f"v_or_b32 {accs[0]}, {accs[0]}, {t}")
        a(f"v_cmp_ne_u32 vcc, 0, {accs[0]}")
    def poll(self, loads, groups, tmp, shadow=None, lanemask=None, hook=None, mid=None):
        a = self.a
        Lr, Ld, Lw = a.newlabel("pr"), a.newlabel("pd"), a.newlabel("pw")
        for l in loads: a(l)
        if shadow: shadow()
        if lanemask is not None: a(f"s_mov_b32 exec_lo, {hex(lanemask[0])}\ns_mov_b32 exec_hi, {hex(lanemask[1])}")
        if mid: a(f"s_mov_b64 {EXS}, -1")
        a.label(Lw)
        if mid:
            a(f"s_waitcnt vmcnt({len(loads)-1})"); mid(); a(f"s_mov_b64 exec, {EXS}")
        a("s_waitcnt vmcnt(0)")
        self.validate(groups, tmp)
        a(f"s_cbranch_vccnz {Lr}")
        a.label(Ld)
        a("s_mov_b64 exec, -1")
        if self.o.get("pst"): self.stamp()
        def retry():
            a.label(Lr)
            if hook: hook()
            a("s_wqm_b64 exec, vcc" if groups[0][0] == 0xff else "s_mov_b64 exec, vcc")
            for l in loads: a(l)
            if mid: a(f"s_mov_b64 {EXS}, exec\ns_mov_b64 exec, -1")
            a(f"s_sub_u32 {sSPIN}, {sSPIN}, 1\ns_cbranch_scc0 {Lw}\ns_mov_b32 {sSPIN}, 0\ns_waitcnt vmcnt(0)\ns_branch {Ld}")
        self.ool.append(retry)
    def t16(self, regs): return (0xffff, [(r, sH0 if i % 2 == 0 else sH1) for i, r in enumerate(regs)], False)
    def consts(self):
        a = self.a
        a(f"""v_bfe_u32 v58, v1, 4, 4
        v_bfe_u32 v59, v1, 8, 2
        v_lshlrev_b32 v3, 11, v59
        v_lshl_add_u32 v3, v58, 4, v3
        v_bfe_u32 v63, v1, 5, 1
        v_lshlrev_b32 v63, 9, v63
        v_lshl_add_u32 v63, v59, 4, v63
        v_and_b32 v59, 16, v1
        v_lshl_add_u32 v63, v59, 2, v63
        v_lshrrev_b32 v58, 2, v58
        v_lshl_add_u32 v2, v58, 11, v63
        v_add_u32 v63, {L_Q}, v63
        v_mov_b32 {vPM}, 0xffff
        v_lshlrev_b32 {vPM}, v59, {vPM}""")
        for b in range(4): a(f"v_mov_b32 v{4+b}, {L_Z}")
        a("s_nop 0")
        for b in range(4): a(f"v_mov_b32_dpp v{4+b}, v63 quad_perm:[0,1,2,3] row_mask:0xf bank_mask:{hex(1<<b)}")
    def cinit(self):
        a = self.a
        a(f"v_mov_b32 v63, {hex(f2u(-1e30))}\nv_mov_b32 v{ACC}, 0\nv_mov_b32 v{ACC+8}, 0")
        a(f"v_mov_b32_dpp v{ACC}, v63 quad_perm:[0,1,2,3] row_mask:0xf bank_mask:0xc")
        a(f"v_mov_b32_dpp v{ACC+8}, v63 quad_perm:[0,1,2,3] row_mask:0xf bank_mask:0x3")
        for i in range(1, 8): a(f"v_mov_b32 v{ACC+i}, v{ACC}\nv_mov_b32 v{ACC+8+i}, v{ACC+8}")
    def advance(self):
        self.a(f"""s_add_u32 {sL}, {sL}, 1
        s_mov_b32 {sVB}, 4
        s_add_u32 {sN}, {sN}, {hex(STEP)}
        s_xor_b32 {sYXP}, {sYXP}, {BLK}
        s_xor_b32 {sYXG}, {sYXG}, {BLK}
        s_xor_b32 {sYXG2}, {sYXG2}, {BLK}""")
    def setw(self):
        self.a(f"""s_bitcmp1_b32 {sL}, 0
        s_cselect_b32 s32, s44, s46
        s_cselect_b32 s33, s45, s47
        s_cselect_b32 {sWQ}, 0, 14336
        s_add_u32 {sWQ}, {sWQ}, {L_WQA}""")
    def aoff(self, t, dst):
        self.a(f"s_add_u32 {dst}, {sG}, {t}\ns_and_b32 {dst}, {dst}, 7\ns_lshl_b32 {dst}, {dst}, 18\ns_add_u32 {dst}, {dst}, {sAoff}")
    def loadK(self, t):
        self.aoff(t, sT)
        for n in range(8): tok = self.vmem(f"buffer_load_dwordx4 a[{t*32+n*4}:{t*32+n*4+3}], v2, {KA}, {sT} offen offset:{kimm(n)} {self.o['pA']}")
        return tok
    def loadV(self, t):
        self.aoff(t, sT)
        for n in range(8):
            b = 64 + t * 32 + n * 4
            tok = self.vmem(f"buffer_load_dwordx4 v[{b}:{b+3}], v3, {VA}, {sT} offen offset:{vimm(n)} {self.o['pA']}")
        return tok
    def dma_body(self, vaddr, srd, soff, immf, pol, units=range(8), loff=0):
        for n in units:
            self.a(f"s_add_u32 m0, {sRL}, {loff + n*1024 - immf(n)}\ns_nop 0\nbuffer_load_dwordx4 {vaddr}, {srd}, {soff} offen offset:{immf(n)} {pol} lds")
    def job(self, jn, base, lds):
        self.a(f"s_mov_b32 {sRS}, {base}\ns_mov_b32 {sRL}, {lds}\ns_mov_b32 {sT4}, {jn}"); self.call("sub_job")
    def subs_mem(self):
        a = self.a; o = self.o
        a.label("sub_dmaX"); self.dma_body("v3", VA, sRS, vimm, o["pXY"]); self.ret()
        a.label("sub_job")
        a(f"""s_cmp_ge_u32 {sT4}, 2
        s_cbranch_scc1 .Ljob_v
        s_lshl_b32 {sT}, {sT4}, 20
        s_add_u32 {sRS}, {sRS}, {sT}
        s_lshl_b32 {sT}, {sT4}, 13
        s_add_u32 {sRL}, {sRL}, {sT}""")
        self.dma_body("v2", KBs, sRS, kimm, o["pB"]); self.ret()
        a.label(".Ljob_v")
        a(f"s_cmp_eq_u32 {sT4}, 2\ns_cbranch_scc0 .Ljob_v1")
        self.dma_body("v3", VBs, sRS, vimm, o["pB"], loff=L_BB); self.ret()
        a.label(".Ljob_v1")
        a(f"s_add_u32 {sRS}, {sRS}, {TILE}")
        self.dma_body("v3", VBs, sRS, vimm, o["pB"], units=range(2, 8), loff=L_BB + 8192); self.ret()
        a.label("sub_repair")
        for w in range(4):
            a(f"s_add_u32 {sRS}, {sBoff}, {TILE + (w-1)*262144}")
            for n in range(2):
                a(f"s_mov_b32 m0, {L_BB + w*16384 + 8192 + n*1024 - n*256}\ns_nop 0\nbuffer_load_dwordx4 v3, {VBs}, {sRS} offen offset:{n*256} {o['pB']} lds")
        self.ret()
        a.label("sub_breg")
        a(f"v_add_u32 v40, {sLDSW}, v1\nv_add_u32 v41, {sPV}, v1")
        for n in range(16): a(f"ds_read_b128 a[{128+4*n}:{131+4*n}], v40 offset:{n*1024}")
        for n in list(range(8)) + list(range(10, 16)): a(f"ds_read_b128 v[{64+4*n}:{67+4*n}], v41 offset:{n*1024}")
        self.ret()
        a.label("sub_wq")
        a(f"""v_lshrrev_b32 v58, 7, v1
        v_lshlrev_b32 v58, 13, v58
        v_and_b32 v59, 0x70, v1
        s_lshl_b32 {sT2}, {sWAVE}, 5
        v_xor_b32 v59, {sT2}, v59
        v_add_u32 v58, v58, v59
        s_lshl_b32 {sT}, {sG}, 10
        s_lshr_b32 {sT2}, {sC}, 2
        s_lshl_b32 {sT2}, {sT2}, 7
        s_add_u32 {sT}, {sT}, {sT2}
        s_and_b32 {sT2}, {sC}, 3
        s_mul_i32 {sT2}, {sT2}, {112*8192}
        s_add_u32 {sT}, {sT}, {sT2}
        s_mul_i32 {sT2}, {sWAVE}, 3
        s_cmp_eq_u32 {sWAVE}, 3
        s_cselect_b32 {sT2}, 10, {sT2}
        s_lshl_b32 {sT3}, {sT2}, 16
        s_add_u32 {sT}, {sT}, {sT3}
        s_lshl_b32 {sT2}, {sT2}, 10
        s_add_u32 m0, {sRL}, {sT2}""")
        for n in range(4):
            if n == 3: a(f"s_cmp_lt_u32 {sWAVE}, 2\ns_cbranch_scc1 .Lwq_end")
            a(f"s_nop 0\nbuffer_load_dwordx4 v58, {RL}, {sT} offen {o['pWQ']} lds")
            if n < 3: a(f"s_add_u32 {sT}, {sT}, 65536\ns_add_u32 m0, m0, 1024")
        a.label(".Lwq_end")
        self.ret()
    def ldwo(self):
        a = self.a
        a("""v_bfe_u32 v16, v1, 4, 3
        v_bfe_u32 v17, v1, 7, 1
        v_lshl_add_u32 v16, v17, 5, v16
        v_mul_u32_u24 v16, 896, v16
        v_bfe_u32 v17, v1, 8, 2
        v_lshl_add_u32 v16, v17, 4, v16""")
        for k in range(4): a(f"buffer_load_dwordx4 v[{24+4*k}:{27+4*k}], v16, {WO}, {sWOr[k]} offen")
    def softmax(self, base, n):
        a = self.a
        sregs = [f"v{base+i}" for i in range(n)]
        for i in range(8): a(f"v_mov_b32 v{40+i}, 0")
        for i, r in enumerate(sregs):
            g = (base - 8) // 4 + i // 4; rp = i % 4
            src = ACC + 8 * g + 4 * (rp >> 1) + 2 * (rp & 1)
            a(f"v_add_f32_dpp {r}, v{src+1}, v{src} quad_perm:[1,1,3,3] {DPPALL}")
        a(f"v_max3_f32 {vNM}, {sregs[0]}, {sregs[1]}, {sregs[2]}"); k = 3
        while k < n:
            if k + 1 < n: a(f"v_max3_f32 {vNM}, {vNM}, {sregs[k]}, {sregs[k+1]}"); k += 2
            else: a(f"v_max_f32 {vNM}, {vNM}, {sregs[k]}"); k += 1
        z = iter(range(48, 60))
        def zz(k):
            for _ in range(k): a(f"v_mov_b32 v{next(z)}, 0")
        zz(2); a(f"v_max_f32_dpp {vNM}, {vNM}, {vNM} row_ror:4 {DPPALL}")
        zz(2); a(f"v_max_f32_dpp {vNM}, {vNM}, {vNM} row_ror:8 {DPPALL}")
        for sw in ("v_permlane16_swap_b32", "v_permlane32_swap_b32"):
            a(f"v_mov_b32 v63, {vNM}"); zz(2); a(f"{sw} {vNM}, v63\nv_max_f32 {vNM}, {vNM}, v63")
        a(f"v_mul_f32 {vNM}, {sSC}, {vNM}\nv_sub_f32 {vNM}, 0, {vNM}")
        for r in sregs: a(f"v_fma_f32 {r}, {r}, {sSC}, {vNM}")
        for r in sregs: a(f"v_exp_f32 {r}, {r}")
        zz(4)
        a(f"v_add_f32 {vL}, {sregs[0]}, {sregs[1]}\nv_add_f32 v63, {sregs[2]}, {sregs[3]}")
        for i in range(4, n, 2): a(f"v_add_f32 {vL}, {vL}, {sregs[i]}\nv_add_f32 v63, v63, {sregs[i+1]}")
        for r in sregs: a(f"v_cvt_pk_bf16_f32 {r}, {r}, {r}")
        a(f"v_add_f32 {vL}, {vL}, v63")
        for r in sregs: a(f"v_and_b32_dpp {r}, {r}, {vPM} quad_perm:[0,0,2,2] {DPPALL}")
    def qka(self, part, extra=()):
        a = self.a; NB = 6; extra = list(extra)
        seq = [(cp, 2 * p + bb) for p in range(2) for cp in range(4) for bb in range(2)]
        def rd(k):
            cp, b = seq[k]; q = 32 + 4 * (k % NB); a(f"ds_read_b128 v[{q}:{q+3}], v{4+b} offset:{cp*128}")
        if part == 0:
            for k in range(NB): rd(k)
        for k in range(8 * part, 8 * part + 8):
            cp, b = seq[k]
            issued = NB if k == 0 else min(16, NB + k - 1)
            a(f"s_waitcnt lgkmcnt({issued - k - 1})")
            q = 32 + 4 * (k % NB)
            for grp in range(2):
                for s_ in range(2):
                    t = b + 4 * grp; d = ACC + 8 * grp + 4 * s_; n = cp * 2 + s_
                    c = "0" if k == 0 else f"v[{d}:{d+3}]"
                    a(f"v_mfma_f32_16x16x32_bf16 v[{d}:{d+3}], a[{t*32+n*4}:{t*32+n*4+3}], v[{q}:{q+3}], {c}")
                if grp == 0 and extra: a(extra.pop(0))
            if k >= 1 and k - 1 + NB < 16: rd(k - 1 + NB)
    def qk2(self):
        a = self.a
        seq = [(cp, b) for cp in range(4) for b in range(2)]
        for k, (cp, b) in enumerate(seq): a(f"ds_read_b128 v[{24+4*k}:{27+4*k}], v{4+b} offset:{cp*128}")
        for k, (cp, b) in enumerate(seq):
            a(f"s_waitcnt lgkmcnt({7-k})")
            for s_ in range(2):
                d = ACC + 4 * s_; n = cp * 2 + s_
                a(f"v_mfma_f32_16x16x32_bf16 v[{d}:{d+3}], a[{(4+b)*32+n*4}:{(4+b)*32+n*4+3}], v[{24+4*k}:{27+4*k}], v[{d}:{d+3}]")
        self.softmax(8, 4)
    def qkb(self):
        a = self.a
        kseq = [(cp, b, s_) for cp in range(4) for b in range(2) for s_ in range(2)]
        NK, NQ = 6, 5; kb = [8, 12, 16, 20, 32, 36]; order = []
        def rk(k):
            cp, b, s_ = kseq[k]; r = kb[k % NK]; a(f"ds_read_b128 v[{r}:{r+3}], v61 offset:{b*8192 + (cp*2+s_)*1024}"); order.append(("k", k))
        def rq(j):
            q = 40 + 4 * (j % NQ); a(f"ds_read_b128 v[{q}:{q+3}], v{6+(j&1)} offset:{(j>>1)*128}"); order.append(("q", j))
        a(f"v_add_u32 v61, {sLDSW}, v1")
        rq(0); rk(0); rk(1); rq(1); rk(2); rk(3); rq(2); rk(4); rk(5); rq(3); rq(4)
        for k in range(16):
            j = k >> 1
            need = max([i for i, x in enumerate(order) if x in (("q", j), ("k", k))])
            a(f"s_waitcnt lgkmcnt({len(order) - need - 1})")
            r = kb[k % NK]; q = 40 + 4 * (j % NQ); d = ACC + 8 + 4 * kseq[k][2]
            a(f"v_mfma_f32_16x16x32_bf16 v[{d}:{d+3}], v[{r}:{r+3}], v[{q}:{q+3}], v[{d}:{d+3}]")
            if k >= 1 and k - 1 + NK < 16: rk(k - 1 + NK)
            if k >= 2 and k % 2 == 0 and j - 1 + NQ < 8: rq(j - 1 + NQ)
        self.softmax(12, 4)
    def bop(self, t, r, bb):
        grp, b = t // 4, t % 4; out = []
        for tt in range(4):
            ctl = "quad_perm:[0,1,2,3]" if tt == b else (f"row_shr:{4*(tt-b)}" if tt > b else f"row_shl:{4*(b-tt)}")
            out.append(f"v_mov_b32_dpp v{bb+tt}, v{8+4*grp+r} {ctl} row_mask:0xf bank_mask:{hex(1<<tt)}")
        return out
    def srcA(self, t, r, hf):
        if t >= 6: vb = (t - 6) * 32 + (r * 2 + hf) * 4; return f"a[{vb}:{vb+3}]"
        vb = 64 + t * 32 + (r * 2 + hf) * 4; return f"v[{vb}:{vb+3}]"
    def pv(self, steps, k0, k1, prologue=False, extra=None):
        a = self.a; bb = lambda k: 48 + 4 * (k % 3); extra = extra or {}
        if prologue:
            for k in range(k0, k0 + 2):
                for i in self.bop(*steps[k], bb(k)): a(i)
        for k in range(k0, k1):
            t, r = steps[k]
            nx = self.bop(*steps[k + 2], bb(k + 2)) if k + 2 < len(steps) else []
            for hf in range(2):
                a(f"v_mfma_f32_16x16x32_bf16 v[{40+4*hf}:{43+4*hf}], {self.srcA(t, r, hf)}, v[{bb(k)}:{bb(k)+3}], v[{40+4*hf}:{43+4*hf}]")
                for i in nx[2*hf:2*hf+2]: a(i)
            if k in extra: a(extra[k])
    def pvlds(self):
        a = self.a
        a(f"v_add_u32 v63, {sPV}, v1")
        steps = [(t, r) for t in (6, 7) for r in range(4)]; bb = lambda k: 48 + 4 * (k % 3)
        def rd(k):
            t, r = steps[k]; b = 16 + 8 * (k % 3)
            for hf in range(2): a(f"ds_read_b128 v[{b+4*hf}:{b+4*hf+3}], v63 offset:{(t-6)*8192 + (r*2+hf)*1024}")
        rd(0); rd(1); rd(2)
        for k in range(2):
            for i in self.bop(*steps[k], bb(k)): a(i)
        for k in range(8):
            nx = self.bop(*steps[k + 2], bb(k + 2)) if k + 2 < 8 else []
            issued = 3 if k == 0 else min(8, k + 2)
            a(f"s_waitcnt lgkmcnt({(issued - k - 1)*2})")
            b = 16 + 8 * (k % 3)
            for hf in range(2):
                a(f"v_mfma_f32_16x16x32_bf16 v[{40+4*hf}:{43+4*hf}], v[{b+4*hf}:{b+4*hf+3}], v[{bb(k)}:{bb(k)+3}], v[{40+4*hf}:{43+4*hf}]")
                for i in nx[2*hf:2*hf+2]: a(i)
            if k >= 1 and k + 2 < 8: rd(k + 2)
    def s0(self):
        a = self.a
        a(f"""v_add_f32_dpp {vL}, {vL}, {vL} row_ror:4 {DPPALL}
        s_add_u32 {sT}, {sPV}, 8192
        v_add_u32 v58, {sT}, v1
        v_add_f32_dpp {vL}, {vL}, {vL} row_ror:8 {DPPALL}
        v_bfe_u32 v11, v1, 5, 1
        v_mov_b32 v63, {vL}
        v_lshlrev_b32 v11, 5, v11
        s_lshl_b32 {sT}, {sWAVE}, 3
        v_permlane16_swap_b32 {vL}, v63
        ds_write_b128 v58, v[40:43]
        ds_write_b128 v58, v[44:47] offset:1024
        v_add_f32 {vL}, {vL}, v63
        v_mov_b32 v63, {vL}
        s_add_u32 {sT}, {sT}, {L_ML}
        v_add_u32 v11, {sT}, v11
        v_permlane32_swap_b32 {vL}, v63
        v_add_f32 {vL}, {vL}, v63
        s_mov_b64 exec, 5
        ds_write_b64 v11, v[60:61]
        s_mov_b64 exec, -1
        v_lshlrev_b32 v56, 3, v0
        v_add_u32 v56, {L_BB + 8192}, v56
        v_bfe_u32 v10, v0, 2, 1
        v_lshlrev_b32 v11, 5, v10
        v_add_u32 v11, {L_ML}, v11
        s_waitcnt lgkmcnt(0)
        s_barrier
        ds_read_b128 v[16:19], v11
        ds_read_b128 v[20:23], v11 offset:16
        ds_read_b64 v[48:49], v56
        ds_read_b64 v[50:51], v56 offset:16384
        ds_read_b64 v[52:53], v56 offset:32768
        ds_read_b64 v[54:55], v56 offset:49152
        v_bfe_u32 v57, v0, 1, 1
        v_bfe_u32 v8, v0, 3, 2
        v_lshl_add_u32 v57, v8, 1, v57
        v_lshrrev_b32 v8, 5, v0
        v_lshlrev_b32 v9, 4, v57
        v_lshl_add_u32 v9, v8, 7, v9
        v_lshl_add_u32 v9, v10, 10, v9
        v_and_b32 v57, 3, v57
        v_lshlrev_b32 v57, 3, v57
        v_bfe_u32 v57, {sN}, v57, 8
        v_mov_b32 v8, 0xff
        s_sub_u32 {sT}, {sLAMP}, {sRECP}
        v_lshl_add_u32 v10, v10, 9, {sT}
        s_cmp_eq_u32 {sWAVE}, 0
        s_cselect_b32 {sT2}, 0x22, 0
        s_or_b32 {sT2}, {sT2}, 0x55555555
        s_waitcnt lgkmcnt(4)
        v_min3_f32 v12, v16, v18, v20
        v_min_f32 v12, v12, v22
        v_sub_f32 v16, v12, v16
        v_sub_f32 v18, v12, v18
        v_sub_f32 v20, v12, v20
        v_sub_f32 v22, v12, v22
        v_exp_f32 v16, v16
        v_exp_f32 v18, v18
        v_exp_f32 v20, v20
        v_exp_f32 v22, v22
        s_waitcnt lgkmcnt(0)
        v_mul_f32 v48, v48, v16
        v_mul_f32 v49, v49, v16
        v_fmac_f32 v48, v50, v18
        v_fmac_f32 v49, v51, v18
        v_fmac_f32 v48, v52, v20
        v_fmac_f32 v49, v53, v20
        v_fmac_f32 v48, v54, v22
        v_fmac_f32 v49, v55, v22
        v_mul_f32 v13, v16, v17
        v_fmac_f32 v13, v18, v19
        v_mov_b32_dpp v50, v48 quad_perm:[1,1,3,3] {DPPALL}
        v_mov_b32_dpp v51, v49 quad_perm:[1,1,3,3] {DPPALL}
        v_bfi_b32 v48, v8, v57, v48
        s_mov_b64 exec, 0x22
        v_fmac_f32 v13, v20, v21
        v_fma_f32 v49, v22, v23, v13
        v_mov_b32 v48, v12
        v_mov_b32 v50, {sN}
        v_mov_b32 v9, v10
        s_cmp_eq_u32 {sFAST}, 1
        s_mov_b32 exec_lo, {sT2}
        s_mov_b32 exec_hi, 0x55555555""")
        self.local_store(f"buffer_store_dwordx4 v[48:51], v9, {WS}, {sRECP} offen")
        a("s_mov_b64 exec, -1")
    def perm_inplace(self):
        a = self.a; free = 59; m = [[None] * 8, [None] * 8]
        for p in range(2):
            for w in range(4):
                A = 24 + p * 8 + w; B = A + 4
                a(f"v_perm_b32 v{free}, v{B}, v{A}, {sSELLO}\nv_perm_b32 v{A}, v{B}, v{A}, {sSELHI}")
                m[p][2 * w] = free; m[p][2 * w + 1] = A; free = B
        return m
    def early_job(self):
        a = self.a
        a(f"""s_cmp_ge_u32 {sVB}, 4
        s_cbranch_scc1 .Lev_x
        v_cmp_ne_u32 s[0:1], 0, v58
        s_nop 1
        s_bcnt1_i32_b64 {sT2}, s[0:1]
        s_cmp_lt_u32 {sT2}, {2 * self.o["thr"]}
        s_cbranch_scc1 .Lev_x
        s_mov_b64 exec, -1""")
        self.job(sVB, sBoff, sLDSW)
        a(f"s_add_u32 {sVB}, {sVB}, 1")
        a.label(".Lev_x")
    def s1(self):
        a = self.a
        a("""v_bfe_u32 v62, v1, 8, 2
        v_lshlrev_b32 v63, 7, v62
        v_and_b32 v61, 0x70, v1
        v_add_u32 v63, v63, v61
        v_lshlrev_b32 v62, 14, v62
        v_and_b32 v61, 0xf0, v1
        v_add_u32 v62, v62, v61""")
        oregs = [8, 12, 16, 20, 40, 44, 4, 52]
        loads = [f"buffer_load_dwordx3 v[56:58], v63, {WS}, {sLAMG} offen sc1"]
        for k in range(8): loads.append(f"buffer_load_dwordx4 v[{oregs[k]}:{oregs[k]+3}], v62, {WS}, {sRECG[k>>1]} offen offset:{(k&1)*2048} sc1")
        pm = []
        def shadow():
            a(f"""v_bfe_u32 v61, v1, 4, 2
            v_lshlrev_b32 v61, 3, v61
            v_bfe_u32 v61, {sN}, v61, 8
            s_waitcnt vmcnt({0 if self.o.get("s1d") == 2 else (1 if self.o.get("s1d") else 9)})""")
            pm.append(self.perm_inplace())
        if self.o.get("s1d"): shadow()
        W, WL, T = "v39", "v48", "v49"
        def mid():
            a(f"""v_min_f32_dpp {W}, v56, v56 row_ror:1 {DPPALL}
            v_and_b32 v50, 0x70, v1
            v_add_u32 v51, {L_YP}, v50
            v_min_f32_dpp {W}, {W}, {W} row_ror:2 {DPPALL}
            v_lshrrev_b32 {T}, 7, v1
            v_lshl_add_u32 v50, {T}, 15, v50
            v_min_f32_dpp {W}, {W}, {W} row_ror:4 {DPPALL}
            v_mov_b32 {T}, {W}
            s_nop 1
            v_permlane16_swap_b32 {W}, {T}
            v_min_f32 {W}, {W}, {T}
            v_mov_b32 {T}, {W}
            s_nop 1
            v_permlane32_swap_b32 {W}, {T}
            v_min_f32 {W}, {W}, {T}
            v_sub_f32 {W}, {W}, v56
            v_exp_f32 {W}, {W}
            s_nop 0
            v_mul_f32 {WL}, {W}, v57""")
        self.poll(loads, [(0xff, [(f"v{o_}", "v61") for o_ in oregs], True), (0xffffffff, [("v58", sN)], True)], ["v60", None],
                  shadow=None if self.o.get("s1d") else shadow, hook=self.early_job if self.o.get("thr") else None, mid=mid)
        m = pm[0]
        wsum = [f"v_add_f32_dpp {WL}, {WL}, {WL} row_ror:1 {DPPALL}", f"v_add_f32_dpp {WL}, {WL}, {WL} row_ror:2 {DPPALL}",
                f"v_add_f32_dpp {WL}, {WL}, {WL} row_ror:4 {DPPALL}\nv_mov_b32 {T}, {WL}",
                f"v_permlane16_swap_b32 {WL}, {T}\nv_add_f32 {WL}, {WL}, {T}\nv_mov_b32 {T}, {WL}",
                f"v_permlane32_swap_b32 {WL}, {T}\nv_add_f32 {WL}, {WL}, {T}", f"v_rcp_f32 {WL}, {WL}", "", ""]
        for k in range(8):
            for i in (0, 2, 1, 3):
                if k == 0: a(f"v_mul_f32_dpp v{8+i}, {W}, v{8+i} row_newbcast:0 {DPPALL}")
                else: a(f"v_fmac_f32_dpp v{8+i}, {W}, v{oregs[k]+i} row_newbcast:{k} {DPPALL}")
            if wsum[k]: a(wsum[k])
        a(f"""v_permlane32_swap_b32 v8, v10
        s_lshl_b32 {sT}, {sWAVE}, 7
        v_permlane32_swap_b32 v9, v11
        v_add_f32 v8, v8, v10
        v_add_f32 v9, v9, v11
        v_mov_b32 v10, v8
        v_mov_b32 v11, v9
        s_add_u32 {sT}, {sT}, {L_YP}
        v_permlane16_swap_b32 v8, v10
        v_permlane16_swap_b32 v9, v11
        v_add_f32 v8, v8, v10
        v_add_f32 v9, v9, v11
        v_mul_f32 v8, v8, {WL}
        v_mul_f32 v9, v9, {WL}
        v_cvt_pk_bf16_f32 v8, v8, v9
        v_mov_b32 v9, v8
        v_lshrrev_b32 {T}, 6, v1
        v_lshl_add_u32 {T}, {T}, 3, {sT}
        v_permlane32_swap_b32 v8, v9""")
        for k in range(8): a(f"v_dot2_f32_bf16 v{40+k}, v{m[0][k]}, v8, 0")
        for k in range(8): a(f"v_dot2_f32_bf16 v{40+k}, v{m[1][k]}, v9, v{40+k}")
        for k in range(4): a(f"v_add_f32_dpp v{40+k}, v{40+k}, v{40+k} row_ror:8 row_mask:0xf bank_mask:0x3")
        for k in range(4): a(f"v_add_f32_dpp v{40+k}, v{44+k}, v{44+k} row_ror:8 row_mask:0xf bank_mask:0xc")
        for k in range(2): a(f"v_add_f32_dpp v{40+k}, v{40+k}, v{40+k} row_shl:4 row_mask:0xf bank_mask:0x5")
        for k in range(2): a(f"v_add_f32_dpp v{40+k}, v{42+k}, v{42+k} row_shr:4 row_mask:0xf bank_mask:0xa")
        a(f"v_mov_b32 v2, {L_ML + 80}")
        for k in range(2): a(f"v_add_f32_dpp v{40+k}, v{40+k}, v{40+k} quad_perm:[2,3,0,1] {DPPALL}")
        a(f"s_cmp_lg_u32 {sWAVE}, 0")
        for k in range(2): a(f"v_add_f32_dpp v{40+k}, v{40+k}, v{40+k} quad_perm:[1,0,3,2] {DPPALL}")
        a(f"""ds_write_b64 {T}, v[40:41]
        s_cbranch_scc1 .Ls1_other
        v_mov_b32 v3, {sVB}
        ds_write_b32 v2, v3
        v_mov_b32 v48, 0xff
        s_cmp_eq_u32 {sL}, 3
        s_waitcnt lgkmcnt(0)
        s_barrier
        ds_read_b128 v[8:11], v51
        ds_read_b128 v[12:15], v51 offset:128
        ds_read_b128 v[16:19], v51 offset:256
        ds_read_b128 v[20:23], v51 offset:384
        s_cselect_b64 exec, 0xff, -1
        s_waitcnt lgkmcnt(2)""")
        for i in range(4): a(f"v_add_f32 v{8+i}, v{8+i}, v{12+i}")
        a("s_waitcnt lgkmcnt(0)")
        for i in range(4): a(f"v_add_f32 v{16+i}, v{16+i}, v{20+i}")
        for i in range(4): a(f"v_add_f32 v{8+i}, v{8+i}, v{16+i}")
        a(f"v_bfi_b32 v8, v48, v61, v8\nbuffer_store_dwordx4 v[8:11], v50, {WS}, {sYXP} offen sc1\ns_mov_b64 exec, -1")
        def other():
            a.label(".Ls1_other"); a("s_waitcnt lgkmcnt(0)\ns_barrier"); self.stamp(); a("s_branch .Lloader")
        self.ool.append(other)
    NW = 6
    def wbuf(self, e): return 8 + 4 * (e % self.NW)
    def s3addr(self, oob):
        self.a(f"""v_bfe_u32 v56, v1, 8, 2
        v_mul_u32_u24 v57, 3, v56
        v_cmp_eq_u32 vcc, 3, v56
        v_bfe_u32 v58, v1, 6, 2
        v_bfe_u32 v59, v1, 4, 2
        v_cndmask_b32 v57, v57, 10, vcc
        v_lshlrev_b32 v4, 10, v57
        v_lshl_add_u32 v4, v58, 7, v4
        v_lshl_add_u32 v4, v59, 3, v4
        v_lshl_add_u32 v4, v56, 5, v4
        v_add_u32 v4, {sWQ}, v4
        v_xor_b32 v5, 32, v4
        v_xor_b32 v6, 64, v4
        v_xor_b32 v7, 0x60, v4
        v_add_u32 v58, {sC}, v58
        v_and_b32 v58, 3, v58
        v_mul_u32_u24 v58, 14, v58
        v_add3_u32 v2, v58, v57, v59
        v_lshlrev_b32 v2, 5, v2
        v_and_b32 v56, 0x230, v1
        v_cmp_eq_u32 vcc, 48, v56
        v_mov_b32 v57, {oob}
        s_nop 0
        v_cndmask_b32 v2, v2, v57, vcc""")
    def s3rd(self, e):
        kk, cg = e >> 2, e & 3; b = self.wbuf(e)
        return f"ds_read_b64_tr_b16 v[{b}:{b+1}], v{4+cg} offset:{kk*1024}\nds_read_b64_tr_b16 v[{b+2}:{b+3}], v{4+cg} offset:{kk*1024+512}"
    def s3w(self):
        for e in range(self.NW): self.a(self.s3rd(e))
    def w0prep(self):
        self.setw()
        self.a(f"""s_and_b32 {sH0}, {sN}, 0xffff
        s_lshr_b32 {sH1}, {sN}, 16
        s_add_u32 s36, s24, {sXSo}
        s_addc_u32 s37, s25, 0
        s_mov_b32 s38, 1792""")
        self.s3addr(0x10000); self.s3w()
    def s2(self):
        a = self.a
        a("v_lshrrev_b32 v32, 7, v1\nv_mul_u32_u24 v32, 1792, v32\nv_and_b32 v33, 0x70, v1\nv_add_u32 v32, v32, v33")
        def shadow():
            a(f"""v_lshrrev_b32 v42, 1, v33
            v_lshrrev_b32 v33, 9, v1
            v_lshl_add_u32 v42, v33, 2, v42
            s_lshl_b32 {sT2}, {sCB}, 6
            v_add_u32 v42, {sT2}, v42
            v_lshlrev_b32 v43, 1, v42
            v_lshrrev_b32 v33, 2, v1
            s_lshl_b32 {sT2}, {sWAVE}, 8
            s_add_u32 {sT2}, {sT2}, {L_XO}
            v_add_u32 v33, {sT2}, v33
            ds_read_b32 v52, v33
            v_bfe_u32 v35, v1, 4, 2
            v_lshlrev_b32 v35, 3, v35
            v_bfe_u32 v35, {sN}, v35, 8
            v_mov_b32 v41, {sN}
            s_waitcnt lgkmcnt(0)
            v_lshlrev_b32 v53, 16, v52
            v_and_b32 v52, 0xffff0000, v52""")
            self.w0prep()
        self.poll([f"buffer_load_dwordx4 v[44:47], v32, {WS}, {sYXG} offen sc1", f"buffer_load_dwordx4 v[48:51], v32, {WS}, {sYXG2} offen sc1"],
                  [(0xff, [("v44", "v35"), ("v48", "v35")], True)], ["v34"], shadow=shadow)
        a(f"""v_add_f32 v44, v44, v48
        v_add_f32 v46, v46, v50
        v_add_f32 v45, v45, v49
        v_add_f32 v47, v47, v51
        v_permlane32_swap_b32 v44, v46
        s_cmp_eq_u32 {sL}, 3
        v_permlane32_swap_b32 v45, v47
        v_add_f32 v44, v44, v46
        v_add_f32 v45, v45, v47
        s_nop 0
        v_add_f32_dpp v44, v44, v44 row_ror:8 {DPPALL}
        v_add_f32_dpp v45, v45, v45 row_ror:8 {DPPALL}
        v_mov_b32 v46, v44
        v_mov_b32 v47, v45
        s_nop 0
        v_permlane16_swap_b32 v44, v46
        v_permlane16_swap_b32 v45, v47
        v_add_f32 v44, v44, v46
        v_add_f32 v45, v45, v47
        v_cvt_pk_bf16_f32 v44, v44, v45
        v_and_b32 v45, 0xffff0000, v44
        v_lshlrev_b32 v44, 16, v44
        v_add_f32 v44, v44, v53
        v_add_f32 v45, v45, v52
        v_cvt_pk_bf16_f32 v40, v44, v45""")
    def s3pre(self):
        a = self.a
        for i in range(8): a(f"v_mov_b32 v{52+i}, {sONES}")
        a(f"""v_bfe_u32 v35, v1, 8, 2
        v_lshlrev_b32 v34, 4, v35
        v_and_b32 v33, 64, v1
        v_add_u32 v34, v34, v33
        v_lshlrev_b32 v35, 3, v35
        v_bfe_u32 v35, {sN}, v35, 8""")
    def s3(self):
        a = self.a
        self.poll([f"buffer_load_dwordx4 v[36:39], v2, {XI}, 0 offen sc1", f"buffer_load_dwordx4 v[48:51], v2, {XI}, 0 offen offset:16 sc1"],
                  [self.t16([f"v{36+i}" for i in range(4)] + [f"v{48+i}" for i in range(4)])], ["v32"], shadow=self.s3pre, lanemask=(0x77777777, 0xffffffff))
        a(f"""v_perm_b32 v60, v37, v36, {sSELHI}
        v_perm_b32 v61, v39, v38, {sSELHI}
        v_perm_b32 v62, v49, v48, {sSELHI}
        v_perm_b32 v63, v51, v50, {sSELHI}""")
        a.label("sub_s3b")
        S, Q2, T1, T2 = "v2", "v3", "v32", "v33"
        def bc(kk):
            bb = 52 + 4 * (kk & 1)
            out = [f"v_mov_b64_dpp v[{bb+i}:{bb+i+1}], v[{60+i}:{61+i}] row_newbcast:{kk} row_mask:0xf bank_mask:0x3" for i in (0, 2)]
            if kk == 3: out += [f"v_mov_b64_dpp v[{bb+i}:{bb+i+1}], v[{60+i}:{61+i}] row_newbcast:3 row_mask:0x3 bank_mask:0xc" for i in (0, 2)]
            return out
        a(f"v_dot2_f32_bf16 {S}, v60, {sONES}, 0\nv_dot2_f32_bf16 {Q2}, v60, v60, 0\ns_waitcnt lgkmcnt(0)")
        for i in bc(0) + bc(1): a(i)
        st = [[f"v_dot2_f32_bf16 {S}, v61, {sONES}, {S}", f"v_dot2_f32_bf16 {Q2}, v61, v61, {Q2}", f"v_dot2_f32_bf16 {S}, v62, {sONES}, {S}"],
              [f"v_dot2_f32_bf16 {Q2}, v62, v62, {Q2}", f"v_dot2_f32_bf16 {S}, v63, {sONES}, {S}", f"v_dot2_f32_bf16 {Q2}, v63, v63, {Q2}"]]
        for ctl in ["row_ror:8", "row_ror:4", "row_ror:2", "row_ror:1"]:
            st.append([f"v_add_f32_dpp {S}, {S}, {S} {ctl} {DPPALL}", f"v_add_f32_dpp {Q2}, {Q2}, {Q2} {ctl} {DPPALL}"])
        st[-1] += [f"v_mov_b32 {T1}, {S}", f"v_mov_b32 {T2}, {Q2}"]
        st.append([f"v_permlane16_swap_b32 {S}, {T1}", f"v_permlane16_swap_b32 {Q2}, {T2}", f"v_add_f32 {S}, {S}, {T1}", f"v_add_f32 {Q2}, {Q2}, {T2}", f"v_mov_b32 {T1}, {S}", f"v_mov_b32 {T2}, {Q2}"])
        st.append([f"v_permlane32_swap_b32 {S}, {T1}", f"v_permlane32_swap_b32 {Q2}, {T2}", f"v_add_f32 {S}, {S}, {T1}", f"v_add_f32 {Q2}, {Q2}, {T2}"])
        st.append([f"v_mul_f32 {S}, {hex(f2u(1.0/448))}, {S}", f"v_mul_f32 {Q2}, {hex(f2u(1.0/448))}, {Q2}", f"v_fma_f32 {Q2}, -{S}, {S}, {Q2}"])
        st.append([f"v_max_f32 {Q2}, 0, {Q2}", f"v_add_f32 {Q2}, {hex(f2u(1e-5))}, {Q2}", f"v_rsq_f32 {Q2}, {Q2}"])
        st.append([f"v_mov_b32 {T1}, 0xff"])
        st.append([f"v_mul_f32 {S}, {S}, {Q2}"])
        NW = self.NW
        for e in range(16):
            kk, cg = e >> 2, e & 3
            if e >= NW:
                issued = min(16, NW + e - 1)
                a(f"s_waitcnt lgkmcnt({(issued - e - 1) * 2})")
            b = self.wbuf(e); bb = 52 + 4 * (kk & 1); d = 36 + 4 * cg
            a(f"v_mfma_f32_16x16x32_bf16 v[{d}:{d+3}], v[{b}:{b+3}], v[{bb}:{bb+3}], {'0' if kk == 0 else f'v[{d}:{d+3}]'}")
            if e >= 1 and e - 1 + NW < 16: a(self.s3rd(e - 1 + NW))
            if e == 4:
                for i in bc(2): a(i)
            if e == 8:
                for i in bc(3): a(i)
            if e < len(st):
                for i in st[e]: a(i)
        a(f"s_mov_b32 {sT}, 0x110011\ns_nop 4")
        for i in range(4): a(f"v_mov_b32_dpp v{36+i}, v{40+i} quad_perm:[0,1,2,3] row_mask:0xf bank_mask:0xa")
        for i in range(4): a(f"v_mov_b32_dpp v{44+i}, v{48+i} quad_perm:[0,1,2,3] row_mask:0xf bank_mask:0xa")
        for i in range(4): a(f"v_mul_f32_dpp v{40+i}, v{36+i}, {S} row_shl:8 {DPPALL}")
        for i in range(4): a(f"v_mul_f32_dpp v{48+i}, v{44+i}, {S} row_shl:8 {DPPALL}")
        for i in range(4): a(f"v_fma_f32 v{36+i}, v{36+i}, {Q2}, -v{40+i}")
        for i in range(4): a(f"v_fma_f32 v{44+i}, v{44+i}, {Q2}, -v{48+i}")
        a(f"v_bfi_b32 v36, {T1}, v35, v36\nv_bfi_b32 v44, {T1}, v35, v44")
    QR = [32, 36, 40, 44, 48, 52, 8, 12]
    def q_loads(self):
        return [f"buffer_load_dwordx4 v[{self.QR[2*p+h]}:{self.QR[2*p+h]+3}], {'v56' if p < 2 else 'v61'}, {WS}, {sQSG} offen offset:{(p&1)*2048 + h*16} sc1" for p in range(4) for h in range(2)]
    def q_addr(self):
        self.a(f"""v_lshlrev_b32 v56, 1, v1
        v_add_u32 v61, 4096, v56
        v_and_b32 v57, 16, v1
        v_add_u32 v60, 8, v57
        v_bfe_u32 v57, {sN}, v57, 8
        v_bfe_u32 v60, {sN}, v60, 8""")
    def q_check(self): return (0xff, [(f"v{r}", "v57" if i % 2 == 0 else "v60") for i, r in enumerate(self.QR)], True)
    def q_sum(self):
        a = self.a; R = self.QR
        for h in range(2):
            for i in range(4): a(f"v_add_f32 v{R[h]+i}, v{R[h]+i}, v{R[2+h]+i}\nv_add_f32 v{R[4+h]+i}, v{R[4+h]+i}, v{R[6+h]+i}")
        for h in range(2):
            for i in range(4): a(f"v_add_f32 v{R[h]+i}, v{R[h]+i}, v{R[4+h]+i}")
        for i in range(4): a(f"v_cvt_pk_bf16_f32 v{32+i}, v{32+2*i}, v{33+2*i}")
        a(f"v_add_u32 v58, {L_Q}, v1\nds_write_b128 v58, v[32:35]")
    def sub_g0(self):
        a = self.a
        a.label("sub_g0issue")
        self.q_addr()
        a(f"""s_add_u32 {sT4}, {sQSG}, {XCCS - QS}
        v_and_b32 v18, 0x1ff, v1
        buffer_load_dwordx2 v[16:17], v18, {WS}, {sT4} offen sc1""")
        for l in self.q_loads(): a(l)
        self.ret()
        a.label("sub_g0check")
        self.validate([self.q_check(), (0xffffffff, [("v17", sN)], True)], ["v58", None])
        a(f"s_cbranch_vccz .Lg0ok\ns_cmp_eq_u32 {sSPIN}, 0\ns_cbranch_scc1 .Lg0bail\ns_sub_u32 {sSPIN}, {sSPIN}, 1")
        self.ret()
        a.label(".Lg0ok")
        a(f"""s_getreg_b32 {sT2}, hwreg(HW_REG_XCC_ID, 0, 4)
        v_cmp_ne_u32 vcc, {sT2}, v16
        s_nop 1
        s_cmp_eq_u64 vcc, 0
        s_cselect_b32 {sFAST}, 1, 0""")
        a.label(".Lg0bail")
        self.q_sum()
        a(f"""s_add_u32 {sT}, {sFAST}, 1
        v_mov_b32 v16, {sT}
        v_mov_b32 v17, {L_ML + 64}
        s_waitcnt lgkmcnt(0)
        ds_write_b32 v17, v16
        s_mov_b32 s2, 1""")
        self.ret()

    def prologue(self):
        a = self.a; o = self.o
        a(f"""s_cmp_ge_u32 s2, 256
        s_cbranch_scc1 .Lend
        s_load_dwordx16 s[64:79], s[0:1], 0
        s_load_dwordx8 s[80:87], s[0:1], 64
        s_load_dwordx2 s[88:89], s[0:1], 96
        {"s_memrealtime s[94:95]" if self.stamps else ""}
        v_lshrrev_b32 v1, 6, v0
        s_and_b32 {sG}, s2, 7
        v_readfirstlane_b32 {sWAVE}, v1
        s_lshr_b32 {sC}, s2, 3
        v_and_b32 v1, 63, v0
        v_lshlrev_b32 v1, 4, v1
        s_mov_b32 {sSELLO}, 0x05040100
        s_mov_b32 {sSELHI}, 0x07060302
        s_mov_b32 {sSC}, {hex(f2u(SCALE))}
        s_mov_b32 {sONES}, 0x3f803f80
        s_mov_b32 {sSPIN}, 0x40000
        s_mov_b32 {sFAST}, 0
        s_mov_b32 {sL}, 0
        s_mov_b32 {sWQ}, {L_WQA}
        s_lshl_b32 {sLDSW}, {sWAVE}, 14
        s_lshl_b32 {sAoff}, {sG}, 23
        s_lshl_b32 {sT}, {sC}, 13
        s_add_u32 {sAoff}, {sAoff}, {sT}
        s_add_u32 {sBoff}, {sAoff}, {12288*512}
        s_lshl_b32 {sT}, {sWAVE}, 21
        s_add_u32 {sAoff}, {sAoff}, {sT}
        s_lshl_b32 {sT}, {sWAVE}, 18
        s_add_u32 {sBoff}, {sBoff}, {sT}""")
        self.consts()
        a("s_waitcnt lgkmcnt(0)")
        def srd(d, lo, size): a(f"s_mov_b32 s{d}, s{lo}\ns_mov_b32 s{d+1}, s{lo+1}\ns_mov_b32 s{d+2}, {hex(size)}\ns_mov_b32 s{d+3}, 0x20000")
        a(f"s_load_dword {sN}, s[88:89], {EPOCH}")
        srd(28, 70, 3670016); srd(32, 72, 3670016); srd(36, 64, 896)
        a(f"""s_mov_b32 m0, {L_SCR}
        s_cmp_lg_u32 {sWAVE}, 1
        s_cbranch_scc1 .Lst_j
        v_lshlrev_b32 v58, 3, v1
        s_lshl_b32 {sT2}, {sG}, 5
        s_add_u32 {sT2}, {sT2}, {sC}
        s_mul_i32 {sT2}, {sT2}, 14336
        s_add_u32 {sT3}, {sT2}, 6144
        buffer_load_dword v58, {WO}, {sT2} offen lds
        buffer_load_dword v58, {WO}, {sT3} offen lds""")
        a.label(".Lst_j")
        a(f"s_mov_b64 s[28:29], s[70:71]\ns_mov_b32 {sRL}, {L_WQA}")
        self.call("sub_wq")
        L = self.only_wave(0)
        self.s3addr(0x1000)
        a(f"v_lshrrev_b32 v47, 1, v2\nbuffer_load_dwordx4 v[60:63], v47, {XI}, 0 offen")
        a.label(L)
        a(f"""v_and_b32 v48, 0x70, v1
        v_lshrrev_b32 v48, 1, v48
        v_lshrrev_b32 v49, 9, v1
        v_lshl_add_u32 v48, v49, 2, v48
        s_sub_u32 {sT2}, {sC}, 28
        s_lshl_b32 {sT2}, {sT2}, 2
        s_add_u32 {sT2}, {sT2}, {sWAVE}
        s_lshl_b32 {sT2}, {sT2}, 6
        v_add_u32 v48, {sT2}, v48
        buffer_load_dword v50, v48, {XI}, 0 offen""")
        tok0 = self.vm
        srd(8, 66, 0x4000000); srd(12, 68, 0x4000000)
        def dmaX(t, loff):
            self.aoff(t, sRS); a(f"s_mov_b32 s{36+t}, {sRS}\ns_add_u32 {sRL}, {sLDSW}, {loff}"); self.call("sub_dmaX"); self.vm += 8
        dmaX(6, L_BB)
        srd(24, 88, WS_SIZE); srd(16, 76, 0x4000000); srd(20, 78, 0x4000000)
        a(f"""s_mov_b64 s[44:45], s[72:73]
        s_mov_b64 s[46:47], s[82:83]
        s_mov_b64 s[48:49], s[84:85]
        s_mov_b64 s[32:33], s[72:73]
        s_mov_b64 s[28:29], s[80:81]
        s_mov_b32 s2, 0
        s_add_u32 {sPV}, {sLDSW}, {L_BB}
        s_mov_b32 {sT5}, 1""")
        if self.stamps: a(f"s_mov_b32 s{ST0}, s94")
        a(f"""s_cmp_ge_u32 {sC}, 14
        s_cselect_b32 {sT2}, 1, 0
        s_mul_i32 {sT3}, {sT2}, 14
        s_sub_u32 {sT3}, {sC}, {sT3}
        s_lshl_b32 {sT4}, {sG}, 1
        s_add_u32 {sT4}, {sT4}, {sT2}
        s_mul_i32 {sT4}, {sT4}, {256*896}
        s_lshl_b32 {sT3}, {sT3}, 6
        s_add_u32 {sT4}, {sT4}, {sT3}
        s_mul_i32 {sT}, {sWAVE}, {64*896}
        s_add_u32 {sWOr[0]}, {sT4}, {sT}
        s_add_u32 {sWOr[1]}, {sWOr[0]}, {8*896}
        s_add_u32 {sWOr[2]}, {sWOr[0]}, {16*896}
        s_add_u32 {sWOr[3]}, {sWOr[0]}, {24*896}
        s_lshl_b32 {sT}, {sG}, 16
        s_lshl_b32 {sT3}, {sC}, 11
        s_add_u32 {sRECP}, {sT}, {sT3}
        s_lshl_b32 {sT3}, {sT2}, 10
        s_add_u32 {sT}, {sT}, {sT3}
        s_lshl_b32 {sT3}, {sWAVE}, 8
        s_add_u32 {sRECG[0]}, {sT}, {sT3}
        s_add_u32 {sRECG[1]}, {sRECG[0]}, 4096
        s_add_u32 {sRECG[2]}, {sRECG[0]}, 8192
        s_add_u32 {sRECG[3]}, {sRECG[0]}, 12288
        s_lshl_b32 {sT}, {sG}, 10
        s_add_u32 {sT}, {sT}, {LAM}
        s_lshl_b32 {sT3}, {sC}, 4
        s_add_u32 {sLAMP}, {sT}, {sT3}
        s_lshl_b32 {sT3}, {sT2}, 9
        s_add_u32 {sLAMG}, {sT}, {sT3}
        s_mul_i32 {sT}, {sG}, 28
        s_add_u32 {sT}, {sT}, {sC}
        s_lshl_b32 {sT}, {sT}, 7
        s_add_u32 {sYXP}, {sT}, {YX}
        s_lshl_b32 {sT}, {sG}, 11
        s_add_u32 {sXSo}, {sT}, {XS}
        s_lshl_b32 {sT}, {sG}, 13
        s_add_u32 {sQSG}, {sT}, {QS}
        s_and_b32 {sT3}, {sC}, 3
        s_lshl_b32 {sT3}, {sT3}, 11
        s_add_u32 {sQSP}, {sQSG}, {sT3}
        s_lshr_b32 {sT3}, {sC}, 2
        s_lshl_b32 {sT3}, {sT3}, 8
        s_add_u32 {sQSP}, {sQSP}, {sT3}
        s_waitcnt lgkmcnt(0)
        s_sub_u32 {sCB}, {sC}, 28
        s_lshl_b32 {sCB}, {sCB}, 2
        s_add_u32 {sCB}, {sCB}, {sWAVE}
        s_lshl_b32 {sT}, {sG}, 15
        s_lshl_b32 {sT3}, {sCB}, 7
        s_add_u32 {sT}, {sT}, {sT3}
        s_add_u32 {sYXG}, {sT}, {YX}
        s_add_u32 {sYXG2}, {sYXG}, {8*1792}
        s_add_u32 {sN}, {sN}, {hex(STEP)}
        s_and_b32 {sH0}, {sN}, 0xffff
        s_lshr_b32 {sH1}, {sN}, 16
        s_mov_b32 {sVB}, {o['kbpre']}""")
        dmaX(7, L_BB + 8192)
        a(f"s_mov_b32 {sRL}, {L_WQB}")
        if not o.get("nowqb"): self.call("sub_wq")
        a(f"""v_mov_b32 v46, 0
        v_mov_b32 v47, 0
        v_mov_b32 v45, {L_ML + 64}
        ds_write_b64 v45, v[46:47]
        v_lshrrev_b32 v45, 1, v1
        v_add_u32 v45, {L_Z}, v45
        ds_write_b64 v45, v[46:47]
        s_waitcnt lgkmcnt(0)""")
        self.waitvm(tok0)
        a(f"""s_barrier
        v_lshrrev_b32 v48, 2, v1
        s_lshl_b32 {sT}, {sWAVE}, 8
        s_add_u32 {sT}, {sT}, {L_XO}
        v_add_u32 v48, {sT}, v48
        ds_write_b32 v48, v50""")
        L = self.only_wave(0)
        self.s3w(); self.s3pre()
        self.call("sub_s3b")
        a(f"""s_getreg_b32 {sT2}, hwreg(HW_REG_XCC_ID, 0, 4)
        s_lshl_b32 {sT3}, {sC}, 4
        s_add_u32 {sT3}, {sT3}, {sQSG}
        s_add_u32 {sT3}, {sT3}, {XCCS - QS}
        s_sub_u32 {sT3}, {sT3}, {sQSP}
        s_mov_b32 exec_lo, {sT}
        s_mov_b32 exec_hi, {sT}
        buffer_store_dwordx4 v[44:47], v34, {WS}, {sQSP} offen offset:128 sc1
        v_writelane_b32 v36, {sT2}, 1
        v_writelane_b32 v37, {sN}, 1
        v_writelane_b32 v34, {sT3}, 1
        s_mov_b32 exec_lo, 0x110013
        buffer_store_dwordx4 v[36:39], v34, {WS}, {sQSP} offen sc1
        s_mov_b64 exec, -1""")
        if o.get("gw", 0): a("s_mov_b32 s2, 1")
        self.consts()
        a.label(L)
        if o.get("ss"): self.stamp()
        g0 = o["g0"]
        for t in range(g0): self.loadK(t)
        L = self.only_wave(o.get("gw", 0)); self.call("sub_g0issue"); a.label(L)
        for t in range(g0, 8):
            self.loadK(t)
            L = self.only_wave(o.get("gw", 0))
            a(f"s_cmp_lg_u32 s2, 0\ns_cbranch_scc1 {L}\ns_waitcnt vmcnt(8)")
            if t == 7: a.label(".Lg0loop")
            self.call("sub_g0check")
            a(f"s_cmp_lg_u32 s2, 0\ns_cbranch_scc1 {L}")
            self.call("sub_g0issue")
            if t == 7: a("s_waitcnt vmcnt(0)\ns_branch .Lg0loop")
            a.label(L)
        tokK = self.vm
        if o.get("ss"): self.stamp()
        a(f"s_add_u32 {sN}, {sN}, {hex(STEP)}")
        self.loadV(0); tokV1 = self.loadV(1)
        a(f"v_mov_b32 v46, {L_ML + 64}")
        a.label(".Lqflag")
        a(f"""ds_read_b32 v44, v46
        s_waitcnt lgkmcnt(0)
        v_readfirstlane_b32 {sFAST}, v44
        s_nop 3
        s_cmp_eq_u32 {sFAST}, 0
        s_cbranch_scc1 .Lqflag
        s_sub_u32 {sFAST}, {sFAST}, 1""")
        self.waitvm(tokK)
        self.call("sub_qka0"); self.loadV(2)
        self.call("sub_qka1")
        tokV3 = self.loadV(3)
        self.call("sub_pvlds")
        self.waitvm(tokV1); self.call("sub_pv01")
        nt_ = o.get("kbtail", 0)
        for t in range(o["kbpre"] - nt_): self.job(t, sBoff, sLDSW)
        if o.get("kbw"):
            a(f"s_mov_b32 {sT}, {o['kbw']}\ns_bitcmp1_b32 {sT}, {sWAVE}\ns_cbranch_scc0 .Lkbw")
            self.job(o["kbpre"], sBoff, sLDSW)
            a(f"s_add_u32 {sVB}, {sVB}, 1")
            a.label(".Lkbw")
        tokV4 = self.loadV(4)
        self.waitvm(tokV3); self.call("sub_pv23")
        tokV5 = self.loadV(5)
        self.waitvm(tokV4); self.call("sub_pv4"); self.vm += 4
        for t in range(o["kbpre"] - nt_, o["kbpre"]): self.job(t, sBoff, sLDSW); self.vm += 8
        self.waitvm(tokV5)
        a("s_branch sub_pv5")
    def build(self):
        a = self.a; o = self.o
        self.prologue()
        stepsA = [(t, r) for t in range(8) for r in range(4)]
        xyl = [f"buffer_load_dwordx4 a[{t*32+n*4}:{t*32+n*4+3}], v3, {VA}, s{42+t} offen offset:{vimm(n)} {o['pXY2']}" for t in range(2) for n in range(8)]
        def l0():
            a.label("sub_qka0"); self.qka(0); self.ret()
            a.label("sub_qka1"); self.qka(1); self.softmax(8, 8); self.ret()
            steps0 = stepsA[:24]
            a.label("sub_pv01"); self.pv(steps0, 0, 8, prologue=True); self.ret()
            a.label("sub_pv23"); self.pv(steps0, 8, 16); self.ret()
            a.label("sub_pv4"); self.ldwo(); self.pv(steps0, 16, 20); self.ret()
            a.label("sub_pv5"); self.pv(steps0, 20, 24); a("s_branch .Lchain")
        self.ool.append(l0)
        a.label(".LlayerA")
        self.qka(0); self.qka(1, extra=xyl[:8])
        self.softmax(8, 8)
        ex = {2 * k: xyl[8 + k] for k in range(8)}
        ex[9] = f"v_add_u32 v23, {sPV}, v1\nds_read_b128 v[96:99], v23 offset:8192\nds_read_b128 v[100:103], v23 offset:9216"
        ex[17] = "v_bfe_u32 v16, v1, 4, 3\nv_bfe_u32 v17, v1, 7, 1\nv_lshl_add_u32 v16, v17, 5, v16"
        ex[18] = "v_mul_u32_u24 v16, 896, v16\nv_bfe_u32 v17, v1, 8, 2\nv_lshl_add_u32 v16, v17, 4, v16"
        for k in range(4): ex[19 + k] = f"buffer_load_dwordx4 v[{24+4*k}:{27+4*k}], v16, {WO}, {sWOr[k]} offen"
        ex[23] = "s_waitcnt vmcnt(4) lgkmcnt(0)"
        self.pv(stepsA, 0, 32, prologue=True, extra=ex)
        a.label(".Lchain")
        self.stamp(); self.s0(); self.stamp()
        a(f"s_cmp_ge_u32 {sC}, 28\ns_cbranch_scc1 .Lno_s1")
        self.s1()
        self.stamp()
        a(f"s_cmp_eq_u32 {sL}, 3\ns_cbranch_scc1 .Lfin\ns_cmp_lg_u32 {sL}, 2\ns_cbranch_scc1 .Lprep")
        self.call("sub_breg")
        a.label(".Lprep")
        self.w0prep()
        a.label(".Ls3")
        def s2cu():
            a.label(".Lno_s1")
            a(f"v_mov_b32 v16, {L_ML + 80}\nv_mov_b32 v17, {max(o['s2pre'], o['kbpre'])}\nds_write_b32 v16, v17\ns_waitcnt vmcnt(0) lgkmcnt(0)\ns_barrier")
            self.stamp()
            a(f"s_cmp_lg_u32 {sL}, 0\ns_cbranch_scc1 .Ls2a")
            for t in range(o["kbpre"], o["s2pre"]): self.job(t, sBoff, sLDSW)
            a(f"s_mov_b32 {sVB}, {max(o['s2pre'], o['kbpre'])}\ns_branch .Ls2b")
            a.label(".Ls2a")
            a(f"s_cmp_eq_u32 {sL}, 3\ns_cbranch_scc1 .Ls2b\ns_call_b64 s[0:1], .Ljobs")
            a.label(".Ls2b")
            a(f"""s_cmp_lt_u32 {sCB}, 14
            s_cbranch_scc0 .Lloader
            s_cmp_lg_u32 {sL}, 3
            s_cbranch_scc1 .Ls2
            s_cmp_lg_u32 {sG}, 0
            s_cbranch_scc1 .Lfin""")
            a.label(".Ls2")
            self.s2()
            a(f"""s_cbranch_scc1 .Lout
            v_perm_b32 v44, v40, v41, {sSELLO}
            v_perm_b32 v45, v40, v41, {sSELHI}
            s_cmp_eq_u32 {sFAST}, 1
            s_mov_b32 exec_lo, 0xff
            s_mov_b32 exec_hi, 0xff""")
            self.local_store(f"buffer_store_dwordx2 v[44:45], v43, {WS}, {sXSo} offen")
            a(f"""s_mov_b64 exec, -1
            ds_write_b32 v33, v40
            s_cmp_eq_u32 {sWAVE}, 0
            s_cbranch_scc1 .Ls3
            s_waitcnt lgkmcnt(0)
            s_branch .Lloader""")
        self.ool.insert(0, s2cu)
        self.stamp()
        self.s3()
        a(f"""s_cmp_eq_u32 s2, 0
        s_cbranch_scc1 .Lret
        s_cmp_eq_u32 {sFAST}, 1
        s_mov_b32 exec_lo, {sT}
        s_mov_b32 exec_hi, {sT}""")
        self.local_store(f"buffer_store_dwordx4 v[36:39], v34, {WS}, {sQSP} offen\nbuffer_store_dwordx4 v[44:47], v34, {WS}, {sQSP} offen offset:128")
        a("s_mov_b64 exec, -1")
        self.stamp()
        a(f"s_cmp_eq_u32 {sL}, 0\ns_cbranch_scc1 .Ls4one")
        def s4one():
            a.label(".Ls4one")
            self.q_addr()
            self.poll(self.q_loads(), [self.q_check()], ["v58"], shadow=lambda: (self.consts(), self.cinit(), self.advance()))
            self.q_sum()
            a(f"s_cmp_eq_u32 {sL}, 2\ns_waitcnt lgkmcnt(0)\ns_branch .Lqready")
        self.ool.append(s4one)
        a.label(".Ls4w")
        a(f"""v_and_b32 v56, 0x1f0, v1
        v_lshrrev_b32 v57, 9, v1
        v_lshl_add_u32 v61, v57, 12, v56
        s_lshl_b32 {sT}, {sWAVE}, 9
        s_add_u32 {sT4}, {sQSG}, {sT}""")
        def shadow():
            a(f"""v_lshrrev_b32 v56, 1, v56
            v_lshl_add_u32 v56, v57, 2, v56
            s_lshl_b32 {sT}, {sWAVE}, 8
            s_add_u32 {sT}, {sT}, {L_Q}
            v_add_u32 v56, {sT}, v56
            v_bfe_u32 v57, v1, 4, 2
            v_lshlrev_b32 v57, 3, v57
            v_bfe_u32 v57, {sN}, v57, 8""")
            self.consts(); self.cinit(); self.advance()
        self.poll([f"buffer_load_dwordx4 v[32:35], v61, {WS}, {sT4} offen sc1", f"buffer_load_dwordx4 v[40:43], v61, {WS}, {sT4} offen offset:2048 sc1"],
                  [(0xff, [("v32", "v57"), ("v40", "v57")], True)], ["v58"], shadow=shadow)
        a(f"""v_add_f32 v32, v32, v40
        v_add_f32 v34, v34, v42
        v_add_f32 v33, v33, v41
        v_add_f32 v35, v35, v43
        v_permlane32_swap_b32 v32, v34
        s_cmp_eq_u32 {sL}, 2
        v_permlane32_swap_b32 v33, v35
        v_add_f32 v32, v32, v34
        v_add_f32 v33, v33, v35
        v_cvt_pk_bf16_f32 v32, v32, v33
        ds_write_b32 v56, v32
        s_waitcnt lgkmcnt(0)""")
        a.label(".Lqready")
        a("s_barrier")
        if self.stamps: self.stamp(); a(f"s_cmp_eq_u32 {sL}, 2")
        a(f"s_cbranch_scc1 .LlayerA\ns_cmp_eq_u32 {sL}, 1\ns_cbranch_scc1 .Llayer1")
        a.label(".Llayer3")
        self.qk2(); self.ldwo()
        self.pv([(t, r) for t in range(2) for r in range(4)], 0, 8, prologue=True)
        a("s_branch .Lchain")
        a.label(".Lret"); self.ret()
        a.label(".Llayer1")
        self.qkb()
        a(f"s_waitcnt vmcnt({1 if o.get('wob') else 0})\ns_barrier")
        a.label("sub_pvlds"); self.pvlds(); self.retif0(); self.ldwo()
        a("s_branch .Lchain")
        a.label(".Lloader")
        a(f"s_cmp_eq_u32 {sL}, 3\ns_cbranch_scc1 .Lfin")
        self.setw(); self.consts()
        a(f"s_cmp_lg_u32 {sL}, 0\ns_cbranch_scc1 .Lld_n0")
        a(f"""v_mov_b32 v44, {L_ML + 80}
        ds_read_b32 v45, v44
        s_waitcnt lgkmcnt(0)
        v_readfirstlane_b32 s0, v45
        s_lshl_b32 s1, {sWAVE}, 18
        s_sub_u32 s1, {sBoff}, s1""")
        def own(jn):
            L = a.newlabel("jo"); a(f"s_cmp_gt_u32 {sVB}, {jn}\ns_cbranch_scc1 {L}"); self.job(jn, sBoff, sLDSW); a.label(L)
        def w0s(jn, w):
            L = self.only_wave(w); a(f"s_cmp_gt_u32 s0, {jn}\ns_cbranch_scc1 {L}"); self.job(jn, "s1", 0); a.label(L)
        if o["kbpre"] < 1: own(0); w0s(0, 1)
        if o["kbpre"] < 2: own(1); w0s(1, 2)
        own(2); w0s(2, 3); w0s(3, 2)
        L = self.only_wave(1); self.call("sub_repair"); a.label(L)
        a(f"s_cmp_gt_u32 {sVB}, 3\ns_cbranch_scc1 .Lld_pre")
        own(3)
        a("s_waitcnt vmcnt(6)\ns_branch .Lhelp" if o["kbpre"] < 2 else "s_branch .Lhelp")
        a.label(".Lld_pre")
        if o["kbpre"] < 2: a("s_waitcnt vmcnt(0)")
        a.label(".Lhelp")
        if o.get("wob"):
            a(f"""s_cmp_lg_u32 {sL}, 0
            s_cbranch_scc1 .Lld_done
            v_lshlrev_b32 v58, 3, v1
            s_lshl_b32 {sT2}, {sG}, 5
            s_add_u32 {sT2}, {sT2}, {sC}
            s_mul_i32 {sT2}, {sT2}, 14336
            s_mul_i32 {sT3}, {sWAVE}, 4864
            s_add_u32 {sT2}, {sT2}, {sT3}
            s_sub_u32 {sT2}, {sT2}, 4864
            s_mov_b32 m0, {L_SCR}
            s_mov_b32 exec_hi, 0x3f
            buffer_load_dword v58, {WO}, {sT2} offen lds
            s_mov_b64 exec, -1""")
        if o.get("help"):
            a(f"""s_cmp_lg_u32 {sL}, 0
            s_cbranch_scc1 .Lld_done
            v_mov_b32 v44, {L_ML + 68}
            v_lshlrev_b32 v46, 3, v1
            s_xor_b32 {sRS}, {sBoff}, {o.get('hx', 1) << 23}
            s_mov_b32 m0, {L_SCR}""")
            offs = [TILE, 0]
            for k, off in enumerate(offs[:o["help"]]):
                for extra in (0, 1):
                    Lx = a.newlabel("hp")
                    if extra: a(f"s_cmp_lg_u32 {sWAVE}, {1 + k}\ns_cbranch_scc1 {Lx}")
                    a(f"""s_waitcnt vmcnt(0)
                    ds_read_b32 v45, v44
                    s_waitcnt lgkmcnt(0)
                    v_readfirstlane_b32 {sT}, v45
                    s_nop 3
                    s_cmp_lg_u32 {sT}, 0
                    s_cbranch_scc1 .Lld_done""")
                    if extra: a(f"s_add_u32 {sT}, {sRS}, {off - (1 + k) * 262144 + (1 << 23)}\ns_sub_u32 {sT}, {sT}, {1 << 23}")
                    else: a(f"s_add_u32 {sT}, {sRS}, {off}")
                    a(f"buffer_load_dword v46, {VBs}, {sT} offen lds")
                    a.label(Lx)
        a("s_branch .Lld_done")
        a.label(".Lld_n0")
        a(f"s_cmp_ge_u32 {sC}, 28\ns_cbranch_scc1 .Lld_done\ns_call_b64 s[0:1], .Ljobs")
        a.label(".Lld_done")
        self.stamp(); self.stamp()
        a(f"s_cmp_lg_u32 {sL}, 0\ns_cbranch_scc1 .Ls4w")
        self.cinit()
        self.advance()
        a(f"s_cmp_eq_u32 {sL}, 2\ns_branch .Lqready")
        a.label(".Ljobs")
        a(f"s_cmp_eq_u32 {sL}, 1\ns_cbranch_scc1 .Lld_1")
        self.call("sub_breg")
        a("s_waitcnt lgkmcnt(0)\ns_setpc_b64 s[0:1]")
        a.label(".Lld_1")
        L = self.only_wave(1); self.call("sub_repair"); a("s_waitcnt vmcnt(0)"); a.label(L)
        a("s_setpc_b64 s[0:1]")
        a.label(".Lout")
        a(f"""s_mov_b32 s36, s48
        s_mov_b32 s37, s49
        s_mov_b32 s38, 896
        s_mov_b32 exec_lo, 0xff
        s_mov_b32 exec_hi, 0xff
        buffer_store_dword v40, v42, {XI}, 0 offen
        s_mov_b64 exec, 1
        s_cmp_lg_u32 {sCB}, 0
        s_cbranch_scc1 .Lnoep
        v_mov_b32 v43, {EPOCH}
        buffer_store_dword v41, v43, {WS}, 0 offen""")
        a.label(".Lnoep")
        a("s_mov_b64 exec, -1")
        a.label(".Lfin")
        if self.stamps:
            a(f"s_mov_b32 {sT5}, {NSTAMP-1}")
            self.stamp(True)
            a(f"""s_lshl_b32 {sT}, {sC}, 3
            s_add_u32 {sT}, {sT}, {sG}
            s_lshl_b32 {sT}, {sT}, 2
            s_add_u32 {sT}, {sT}, {sWAVE}
            s_mul_i32 {sT}, {sT}, {NSTAMP*8}
            s_add_u32 {sT}, {sT}, {STAMP}
            v_mov_b32 v8, 0""")
            for i in range(NSTAMP):
                a(f"v_mov_b32 v10, s{ST0+i}\nv_mov_b32 v11, 0\nbuffer_store_dwordx2 v[10:11], v8, {WS}, {sT} offen offset:{i*8}\ns_nop 1")
        a.label(".Lend")
        a("s_endpgm")
        k = 0
        while k < len(self.ool): self.ool[k](); k += 1
        self.subs_mem(); self.sub_g0()
        return "\n".join(l.rstrip() for l in wrap(a.text()).split("\n"))

if __name__ == "__main__":
    open("t_a.s", "w").write(G(stamps=(0, 1)).build())
    open("t_d.s", "w").write(G(stamps=(2, 3), pst=1).build())
    open("t.s", "w").write(G().build())
```
